```python
import torch

def _softmax(x, axis=-1):
    return torch.softmax(x, dim=axis)
def _gelu(x):
    return torch.nn.functional.gelu(x, approximate="tanh")
def _silu(x):
    return torch.nn.functional.silu(x)
def _sigmoid(x):
    return torch.sigmoid(x)
def _layernorm(x, axis=-1, eps=1e-5):
    m = x.mean(dim=axis, keepdim=True)
    v = x.var(dim=axis, keepdim=True, unbiased=False)
    return (x - m) / torch.sqrt(v + eps)
def _scatter_add(tgt, idx, src, axis=0):
    return tgt.clone().index_add_(axis, idx, src)
def _segment_sum(src, seg, n):
    out = torch.zeros((n,) + src.shape[1:], dtype=src.dtype)
    return out.index_add_(0, seg, src)
def _pad(x, pw):
    flat = tuple(v for pair in reversed(pw) for v in pair)
    return torch.nn.functional.pad(x, flat)

kernel_name = 'gated_mix__ssm_conv_s4d__dense_activation_relu__prompt'

def setup_inputs():

    _w = (lambda a: (lambda t: t.to(torch.bfloat16) if t.is_floating_point() else t)(torch.as_tensor(a)))
    def _A_setup():
        Bsz, L, D, N = 1, 2048, 640, 128
        return {
            "u": _w((lambda *s: torch.randn(*s, dtype=torch.bfloat16) * 0.05)(Bsz, L, D)),
            "log_A_real": _w((lambda *s: torch.randn(*s, dtype=torch.bfloat16) * 6.4)(D, N) * 0.5),
            "A_imag": _w((lambda *s: torch.randn(*s, dtype=torch.bfloat16) * 0.2)(D, N) * 3.14),
            "C_real": _w((lambda *s: torch.randn(*s, dtype=torch.bfloat16) * 0.8)(D, N) / N ** 0.5),
            "C_imag": _w((lambda *s: torch.randn(*s, dtype=torch.bfloat16) * 0.8)(D, N) / N ** 0.5),
            "log_dt": _w((lambda *s: torch.randn(*s, dtype=torch.bfloat16) * 0.2)(D) * 0.5 - 4.0),
            "D_skip": _w((lambda *s: torch.randn(*s, dtype=torch.bfloat16) * 0.2)(D)),
        }
    _A_in = _A_setup()

    def _B_setup():
        B, S, D, Dff = 1, 2048, 640, 1728
        return {
            "x": _w((lambda *s: torch.randn(*s, dtype=torch.bfloat16) * 0.05)(B, S, D)),
            "w1": _w((lambda *s: torch.randn(*s, dtype=torch.bfloat16) * 0.05)(D, Dff)),
            "w2": _w((lambda *s: torch.randn(*s, dtype=torch.bfloat16) * 0.05)(Dff, D)),
        }
    _B_in = _B_setup()

    return {
        "A_u": _A_in["u"],
        "A_log_A_real": _A_in["log_A_real"],
        "A_A_imag": _A_in["A_imag"],
        "A_C_real": _A_in["C_real"],
        "A_C_imag": _A_in["C_imag"],
        "A_log_dt": _A_in["log_dt"],
        "A_D_skip": _A_in["D_skip"],
        "B_x": _B_in["x"],
        "B_w1": _B_in["w1"],
        "B_w2": _B_in["w2"],
        "gate_w": _w((lambda *s: torch.randn(*s, dtype=torch.bfloat16) * 0.05)(640) * 16.0),
    }

def reference(A_u, A_log_A_real, A_A_imag, A_C_real, A_C_imag, A_log_dt, A_D_skip, B_x, B_w1, B_w2, gate_w):
    def _A_ref(u, log_A_real, A_imag, C_real, C_imag, log_dt, D_skip):
        L = u.shape[1]
        dt = torch.exp(log_dt)
        A = -torch.exp(log_A_real) + 1j * A_imag
        C = (C_real + 1j * C_imag) * dt[:, None]
        pos = (lambda x, dt: x.to(dt))(torch.arange(L), log_dt.dtype)
        P = torch.exp((A * dt[:, None])[:, :, None] * pos[None, None, :])
        K = 2.0 * torch.einsum("dn,dnl->dl", C, P).real
        L2 = 2 * L
        u_t = (lambda x, *d: x.permute(*d))(u, 0, 2, 1)
        Kf = (lambda x, *a, **k: torch.fft.rfft(x.float(), *a, **k))(K, L2)
        Uf = (lambda x, *a, **k: torch.fft.rfft(x.float(), *a, **k))(u_t, L2)
        y = (lambda x, *a, **k: torch.fft.irfft(x, *a, **k).to(torch.bfloat16))(Uf * Kf[None, :, :], L2)[:, :, :L]
        y = (lambda x, *d: x.permute(*d))(y, 0, 2, 1)
        return y + u * D_skip[None, None, :]

    def _B_ref(x, w1, w2):
        h = torch.einsum("bsd,df->bsf", x, w1)
        zero = torch.zeros_like(h)
        h = torch.maximum(h, zero)
        return torch.einsum("bsf,fd->bsd", h, w2)

    x = A_u
    g = _sigmoid((x * gate_w).sum(-1, keepdims=True))
    a = _A_ref(x, A_log_A_real, A_A_imag, A_C_real, A_C_imag, A_log_dt, A_D_skip)
    b = _B_ref(x, B_w1, B_w2)
    return g * a + (1 - g) * b
```

```python
import re

TRANS = ("v_exp_f32", "v_log_f32", "v_rcp_f32", "v_rsq_f32", "v_sqrt_f32", "v_sin_f32", "v_cos_f32")
_REG = re.compile(r"^(?:-|\|)*(v|s|a)(?:(\d+)|\[(\d+):(\d+)\])\|?$")


def regs_of(tok):
    tok = tok.strip()
    if tok in ("vcc", "vcc_lo", "vcc_hi"):
        return {("s", 106), ("s", 107)}
    if tok == "exec":
        return {("s", 126), ("s", 127)}
    if tok == "m0":
        return {("s", 124)}
    m = _REG.match(tok)
    if not m:
        return set()
    f = m.group(1)
    if m.group(2) is not None:
        return {(f, int(m.group(2)))}
    return {(f, i) for i in range(int(m.group(3)), int(m.group(4)) + 1)}


class Ins:
    def __init__(self, text):
        self.text = text
        t = text.split(";")[0].strip()
        parts = t.split(None, 1)
        self.mn = parts[0]
        rest = parts[1] if len(parts) > 1 else ""
        ops = [o.strip() for o in re.split(r",(?![^\[]*\])", rest)] if rest else []
        if ops:
            last = ops[-1].split()
            self.mods = last[1:]
            ops[-1] = last[0] if last else ""
        else:
            self.mods = []
        self.ops = ops
        mn = self.mn
        R = [regs_of(o) for o in ops]
        self.kind = "other"
        self.dst = set()
        self.src = set()
        self.srcC = set()
        self.storedata = set()
        if mn.startswith("v_mfma"):
            self.kind = "mfma"
            self.dst = R[0]
            self.src = R[1] | R[2]
            self.srcC = R[3]
        elif mn.startswith("v_"):
            self.kind = "trans" if mn.split("_e")[0] in TRANS or mn in TRANS else "valu"
            self.dst = set(R[0])
            k = 1
            if mn.startswith(("v_add_co", "v_sub_co", "v_addc_co", "v_subb_co")):
                self.dst |= R[1]
                k = 2
            for r in R[k:]:
                self.src |= r
            if mn.startswith(("v_fmac", "v_pk_fmac", "v_permlane", "v_writelane")):
                self.src |= R[0]
            if mn.startswith("v_permlane"):
                self.dst |= R[1]
            if mn.startswith("v_cndmask") and len(ops) == 3:
                self.src |= regs_of("vcc")
        elif mn.startswith("ds_"):
            self.kind = "ds"
            if mn.startswith(("ds_read", "ds_bpermute", "ds_permute", "ds_swizzle")):
                self.dst = R[0]
                for r in R[1:]:
                    self.src |= r
            else:
                for r in R:
                    self.src |= r
        elif mn.startswith(("buffer_", "global_")):
            self.kind = "vmem"
            lds = "lds" in self.mods
            if mn.startswith("buffer_load") and lds:
                for r in R:
                    self.src |= r
                self.src |= regs_of("m0")
                self.kind = "dma"
            elif "_load_" in mn:
                self.dst = R[0]
                for r in R[1:]:
                    self.src |= r
            else:
                for r in R:
                    self.src |= r
                if mn.endswith(("x4", "x3")):
                    self.storedata = R[0] if mn.startswith("buffer_") else R[1]
        elif mn.startswith("s_"):
            self.kind = "salu"
            if mn.startswith(("s_cmp", "s_bitcmp", "s_cbranch", "s_branch", "s_waitcnt", "s_nop", "s_barrier", "s_sleep", "s_setprio", "s_endpgm")):
                for r in R:
                    self.src |= r
            else:
                if R:
                    self.dst = R[0]
                for r in R[1:]:
                    self.src |= r
                if "saveexec" in mn:
                    self.dst = self.dst | regs_of("exec")

    def states(self):
        if self.mn == "s_nop":
            return int(self.ops[0], 0) + 1
        return 1


def need(p, c):
    n = 0
    pv = p.kind in ("valu", "trans")
    cv = c.kind in ("valu", "trans")
    cmem = c.kind in ("vmem", "dma", "ds")
    pdv = {r for r in p.dst if r[0] != "s"}
    pds = {r for r in p.dst if r[0] == "s"}
    if pv:
        if c.kind == "mfma" and pdv & (c.src | c.srcC):
            n = max(n, 2)
        if p.kind == "trans" and c.kind != "trans" and pdv & (c.src | c.srcC):
            n = max(n, 1)
        if pds & c.src:
            if cv:
                n = max(n, 4 if c.mn.startswith(("v_readlane", "v_writelane")) else 2)
            if c.kind in ("vmem", "dma"):
                n = max(n, 5)
            if c.kind == "salu":
                n = max(n, 1)
        if c.mn.startswith(("v_readfirstlane", "v_readlane")) and pdv & c.src:
            n = max(n, 1)
        if (c.mn.startswith("v_permlane") or "dpp" in c.mn or any(m.startswith(("row_", "quad_perm", "wave_")) for m in c.mods)) and pdv & c.src:
            n = max(n, 2)
    if p.kind == "mfma":
        big = "32x32" in p.mn
        if c.kind == "mfma":
            if p.dst & c.src:
                n = max(n, 12 if big else 8)
            if p.dst & c.srcC and p.dst != c.srcC:
                n = max(n, 10 if big else 6)
            if p.dst & c.dst and p.dst != c.srcC and not (p.dst & c.srcC):
                n = max(n, 12 if big else 8)
        elif cv or cmem:
            if p.dst & (c.src | c.dst):
                n = max(n, 12 if big else 8)
            if cv and p.srcC & c.dst:
                n = max(n, 7 if big else 3)
    if p.storedata and p.storedata & c.dst:
        n = max(n, 2)
    if p.kind == "salu" and ("s", 124) in p.dst and (c.kind == "dma" or "addtid" in c.mn):
        n = max(n, 1)
    return n


class Asm:
    def __init__(self):
        self.items = []
        self.nlabel = 0

    def __call__(self, text):
        for line in text.strip("\n").split("\n"):
            line = line.strip()
            if not line:
                continue
            if line.startswith(";"):
                self.items.append(("c", line))
            elif line.endswith(":") or line.startswith("."):
                self.items.append(("l", line))
            else:
                self.items.append(("i", Ins(line)))

    def newlabel(self, base="L"):
        self.nlabel += 1
        return f"{base}_{self.nlabel}"

    def render(self):
        out = []
        hist = []
        nops = 0
        for k, it in self.items:
            if k != "i":
                out.append(it if k == "l" else "    " + it)
                continue
            req = 0
            dist = 0
            for p in reversed(hist):
                r = need(p, it) - dist
                req = max(req, r)
                dist += p.states()
                if dist >= 13:
                    break
            if req > 0:
                nop = Ins(f"s_nop {req - 1}")
                out.append(f"    s_nop {req - 1}")
                hist.append(nop)
                nops += 1
            out.append("    " + it.text)
            hist.append(it)
            if it.mn in ("s_branch", "s_endpgm"):
                hist = []
            if len(hist) > 16:
                hist = hist[-16:]
        self.nops = nops
        return "\n".join(out) + "\n"


class VM:
    def __init__(self, a):
        self.a = a
        self.q = []

    def issue(self, name, text):
        self.a(text)
        self.q.append(name)

    def wait(self, *names, extra=""):
        idx = max((i for i, n in enumerate(self.q) if n in names), default=-1)
        if idx < 0:
            if extra:
                self.a(f"s_waitcnt {extra}")
            return
        n = len(self.q) - 1 - idx
        assert n <= 63, n
        self.a(f"s_waitcnt vmcnt({n}) {extra}".strip())
        self.q = self.q[idx + 1:]

    def drain(self):
        self.a("s_waitcnt vmcnt(0)")
        self.q = []
```

```python
import sys, struct
from asmlib import Asm, VM

NAME = "gated_mix__ssm_conv_s4d__dense_activation_relu__prompt"
DIAG = "--diag" in sys.argv
OUT = [x for x in sys.argv[1:] if not x.startswith("--")]
OUT = OUT[0] if OUT else f"cdna_kernels/{NAME}.s"

HFLAG, UFLAG, GFLAG, WFLAG, AFLAG, G_OFF = 0x0, 0x1000, 0x1100, 0x1200, 0x1400, 0x2000
UT = 0x10000
W2F = UT + 64 * 40960
HF = W2F + 54 * 40960
AG = HF + 32 * 54 * 4096
STAMP = AG + 160 * 16384
WS_END = STAMP + 512 * 4 * 64
SPIN_LIMIT = 400000


def f32(x):
    return "0x%08x" % struct.unpack("<I", struct.pack("<f", x))[0]


def vr(b, n=1):
    return f"v{b}" if n == 1 else f"v[{b}:{b + n - 1}]"


a = Asm()
U, LOGA, AIM, CR, CI, LDT, DSK = "s[16:17]", "s[18:19]", "s[20:21]", "s[22:23]", "s[24:25]", "s[26:27]", "s[28:29]"
DBG = "s[40:41]"
WSRD = "s[44:47]"
SRDA, SRDB, SRDC = "s[48:51]", "s[52:55]", "s[56:59]"
WAVE, TAG = "s3", "s4"


def stamp(i):
    if DIAG:
        a(f"s_memrealtime s[{70 + 2 * i}:{71 + 2 * i}]\ns_waitcnt lgkmcnt(0)")


def finish():
    if DIAG:
        a("s_branch L_dump")
    else:
        a("s_endpgm")


def srd(dst, lo, hi, off_s, size):
    if off_s is None:
        a(f"s_mov_b32 s{dst}, s{lo}\ns_mov_b32 s{dst + 1}, s{hi}")
    else:
        a(f"s_add_u32 s{dst}, s{lo}, {off_s}\ns_addc_u32 s{dst + 1}, s{hi}, 0")
    a(f"s_mov_b32 s{dst + 2}, {size}\ns_mov_b32 s{dst + 3}, 0x20000")


def poll(voff, vf, vt=None, vz=None, first_issued=False):
    lp, chk, retry, done = (a.newlabel(x) for x in ("Lp", "Lc", "Lr", "Ld"))
    a("s_mov_b32 s66, 0")
    if first_issued:
        a(f"s_branch {chk}")
    a(f"{lp}:")
    if voff:
        a(f"buffer_load_dword {vf}, {voff}, {WSRD}, 0 offen sc1")
    if vt:
        a(f"global_load_dword {vt}, {vz}, {DBG} sc1")
    a("s_waitcnt vmcnt(0)")
    a(f"{chk}:")
    if vt:
        a(f"v_readfirstlane_b32 {TAG}, {vt}\ns_cmp_eq_u32 {TAG}, 0")
        if voff:
            a(f"s_cbranch_scc1 {retry}")
        else:
            a(f"s_cbranch_scc0 {done}")
    if voff:
        a(f"v_cmp_ne_u32 vcc, {TAG}, {vf}\ns_cmp_eq_u64 vcc, 0\ns_cbranch_scc1 {done}")
    a(f"{retry}:\ns_sleep 1\ns_add_u32 s66, s66, 1\ns_cmp_lt_u32 s66, {SPIN_LIMIT}\ns_cbranch_scc1 {lp}\n{done}:")


def flag_store(soff, vtmp, vz):
    a(f"v_mov_b32 {vtmp}, {TAG}\ns_mov_b64 exec, 1")
    a(f"buffer_store_dword {vtmp}, {vz}, {WSRD}, {soff} offen sc1")
    a("s_mov_b64 exec, -1")


stamp(0)
a(f"""
s_cmp_ge_u32 s2, 512
s_cbranch_scc1 L_end
s_load_dwordx16 s[16:31], s[0:1], 0
s_load_dwordx8 s[32:39], s[0:1], 64
s_load_dwordx4 s[40:43], s[0:1], 96
v_lshrrev_b32 v2, 6, v0
v_and_b32 v1, 63, v0
v_mov_b32 v3, 0
v_readfirstlane_b32 {WAVE}, v2
s_and_b32 s5, s2, 7
s_lshr_b32 s6, s2, 3
s_mov_b32 s46, {WS_END}
s_mov_b32 s47, 0x20000
s_cmp_lt_u32 s2, 224
s_cbranch_scc1 L_gemm1
s_cmp_lt_u32 s2, 256
s_cbranch_scc1 L_tru
s_cmp_lt_u32 s2, 416
s_cbranch_scc1 L_conv
s_cmp_lt_u32 s2, 470
s_cbranch_scc1 L_trw
s_cmp_ge_u32 s2, 480
s_cbranch_scc1 L_tru
; ---- tag makers: a launch-unique nonce goes into d_debug[0] (first writer wins)
s_cmp_ge_u32 s2, 478
s_cbranch_scc1 L_end
s_cmp_lg_u32 {WAVE}, 0
s_cbranch_scc1 L_end
s_memrealtime s[64:65]
s_waitcnt lgkmcnt(0)
s_or_b32 s64, s64, 1
v_mov_b32 v4, s64
v_mov_b32 v5, 0
s_mov_b64 exec, 1
global_atomic_cmpswap v3, v[4:5], {DBG} sc1
s_waitcnt vmcnt(0)
L_end:
s_endpgm
""")


def transposer(mode):
    a(f"L_tr{mode}:\ns_setprio 2")
    if mode == "u":
        a("""
        s_lshl_b32 s7, s5, 3
        s_and_b32 s8, s6, 3
        s_add_u32 s7, s7, s8
        s_lshr_b32 s8, s2, 8
        s_lshl_b32 s8, s8, 2
        s_add_u32 s7, s7, s8
        """)
    else:
        a("s_sub_u32 s7, s2, 416")
    a(f"""
    s_mul_i32 s8, s7, 40960
    s_mul_i32 s9, {WAVE}, 10240
    v_lshrrev_b32 v4, 4, v1
    s_waitcnt lgkmcnt(0)
    s_mov_b32 s44, s42
    s_mov_b32 s45, s43
    """)
    srd(48, *((16, 17) if mode == "u" else (34, 35)), "s8", 40960)
    if mode == "u":
        a(f"s_lshl_b32 s10, {WAVE}, 2\nv_xor_b32 v7, s10, v1")
    for m in range(10):
        a(f"v_add_u32 v5, {4 * m}, v4\nv_mul_u32_u24 v5, 13, v5\nv_lshrrev_b32 v5, 6, v5")
        if mode == "u":
            a("v_and_b32 v5, 3, v5\nv_xor_b32 v5, v5, v7")
        else:
            a("v_lshlrev_b32 v5, 1, v5\nv_xor_b32 v5, v5, v1")
        a(f"v_lshlrev_b32 v5, 4, v5\ns_add_u32 s10, s9, {1024 * m}\ns_mov_b32 m0, s10")
        a(f"buffer_load_dwordx4 v5, {SRDA}, s10 offen lds")
    if mode == "u":
        srd(52, 36, 37, None, 1280)
        lab = a.newlabel("Lg")
        a(f"""
        s_cmp_ge_u32 {WAVE}, 2
        s_cbranch_scc1 {lab}
        v_lshlrev_b32 v5, 4, v0
        s_lshl_b32 s10, {WAVE}, 10
        s_add_u32 m0, s10, 40960
        buffer_load_dwordx4 v5, {SRDB}, 0 offen lds
        {lab}:
        """)
    a("v_bfe_u32 v5, v1, 2, 2\nv_and_b32 v6, 3, v1")
    if mode == "u":
        a(f"""
        v_lshl_add_u32 v8, v6, 3, v5
        v_mul_u32_u24 v8, 1280, v8
        v_lshl_or_b32 v9, v6, 2, v5
        v_lshrrev_b32 v10, 5, v1
        s_lshl_b32 s10, {WAVE}, 2
        v_or_b32 v10, s10, v10
        v_xor_b32 v9, v9, v10
        v_lshl_add_u32 v8, v9, 4, v8
        v_and_b32 v9, 1, v4
        v_lshl_add_u32 v8, v9, 3, v8
        """)
        second = 4 * 1280
    else:
        a(f"""
        v_lshrrev_b32 v9, 2, v1
        v_mul_u32_u24 v8, 1280, v9
        v_and_b32 v9, 7, v9
        s_lshl_b32 s10, {WAVE}, 1
        v_xor_b32 v9, s10, v9
        v_lshl_add_u32 v8, v9, 5, v8
        v_lshl_add_u32 v8, v6, 3, v8
        """)
        second = 16 * 1280
    a(f"""
    v_xor_b32 v9, 32, v8
    s_lshl_b32 s10, {WAVE}, 11
    v_lshl_add_u32 v10, v1, 4, s10
    s_add_u32 s8, s8, {UT if mode == 'u' else W2F}
    s_waitcnt vmcnt(0)
    s_barrier
    """)
    stamp(1)
    a(f"global_load_dword v11, v3, {DBG} sc1")
    for aa in range(5):
        for b in range(2):
            r = 16 + 8 * aa + 4 * b
            a(f"ds_read_b64_tr_b16 {vr(r, 2)}, v{8 + b} offset:{256 * aa}")
            a(f"ds_read_b64_tr_b16 {vr(r + 2, 2)}, v{8 + b} offset:{256 * aa + second}")
    for aa in range(5):
        a(f"s_waitcnt lgkmcnt({min(15, 16 - 4 * aa)})" if aa < 4 else "s_waitcnt lgkmcnt(0)")
        for b in range(2):
            r = 16 + 8 * aa + 4 * b
            a(f"buffer_store_dwordx4 {vr(r, 4)}, v10, {WSRD}, s8 offen offset:{1024 * b} sc1")
        a("s_add_u32 s8, s8, 8192")
    a("s_waitcnt vmcnt(0)\ns_barrier")
    poll(None, None, "v11", "v3", first_issued=True)
    lab = a.newlabel("Lf")
    a(f"s_cmp_lg_u32 {WAVE}, 3\ns_cbranch_scc1 {lab}\ns_lshl_b32 s10, s7, 2\ns_add_u32 s10, s10, {UFLAG if mode == 'u' else WFLAG}")
    flag_store("s10", "v12", "v3")
    a(f"{lab}:")
    stamp(2)
    if mode == "w":
        finish()
        return
    lab = a.newlabel("Lgd")
    a(f"""
    s_cmp_ge_u32 {WAVE}, 2
    s_cbranch_scc1 {lab}
    v_and_b32 v5, 15, v1
    s_lshl_b32 s10, {WAVE}, 4
    v_add_u32 v5, s10, v5
    v_mul_u32_u24 v8, 1280, v5
    v_and_b32 v6, 3, v5
    v_lshrrev_b32 v7, 3, v5
    v_lshl_or_b32 v6, v7, 2, v6
    v_xor_b32 v6, v6, v4
    v_lshl_add_u32 v8, v6, 4, v8
    v_xor_b32 v9, 64, v8
    v_xor_b32 v10, 0x80, v8
    v_xor_b32 v11, 0xc0, v8
    v_lshlrev_b32 v12, 4, v4
    """)
    for ks in range(20):
        a(f"ds_read_b128 {vr(16 + 8 * ks, 4)}, v{8 + (ks & 3)} offset:{256 * (ks >> 2)}")
        a(f"ds_read_b128 {vr(20 + 8 * ks, 4)}, v12 offset:{40960 + 64 * ks}")
    a("s_waitcnt lgkmcnt(0)")
    for ks in range(20):
        a(f"v_mfma_f32_16x16x32_bf16 v[180:183], {vr(16 + 8 * ks, 4)}, {vr(20 + 8 * ks, 4)}, {'0' if ks == 0 else 'v[180:183]'}")
    a(f"""
    v_cvt_pk_bf16_f32 v184, v180, v181
    v_cvt_pk_bf16_f32 v185, v182, v183
    v_lshlrev_b32 v180, 16, v184
    v_and_b32 v181, 0xffff0000, v184
    v_lshlrev_b32 v182, 16, v185
    v_and_b32 v183, 0xffff0000, v185
    """)
    for i in range(4):
        a(f"v_mul_f32 v{180 + i}, {f32(-1.4426950408889634)}, v{180 + i}")
    for i in range(4):
        a(f"v_exp_f32 v{180 + i}, v{180 + i}")
    for i in range(4):
        a(f"v_add_f32 v{180 + i}, 1.0, v{180 + i}")
    for i in range(4):
        a(f"v_rcp_f32 v{180 + i}, v{180 + i}")
    a(f"""
    v_cvt_pk_bf16_f32 v184, v180, v181
    v_cvt_pk_bf16_f32 v185, v182, v183
    v_lshlrev_b32 v180, 16, v184
    v_and_b32 v181, 0xffff0000, v184
    v_lshlrev_b32 v182, 16, v185
    v_and_b32 v183, 0xffff0000, v185
    s_lshl_b32 s10, s7, 7
    s_lshl_b32 s11, {WAVE}, 6
    s_add_u32 s10, s10, s11
    s_add_u32 s10, s10, {G_OFF}
    s_mov_b32 s12, 0x10001
    s_mov_b32 s13, 0x10001
    s_mov_b64 exec, s[12:13]
    buffer_store_dwordx4 v[180:183], v12, {WSRD}, s10 offen sc1
    s_mov_b64 exec, -1
    s_waitcnt vmcnt(0)
    s_lshl_b32 s10, s7, 3
    s_lshl_b32 s11, {WAVE}, 2
    s_add_u32 s10, s10, s11
    s_add_u32 s10, s10, {GFLAG2}
    """)
    flag_store("s10", "v12", "v3")
    a(f"{lab}:\ns_setprio 0\ns_cmp_lt_u32 s2, 256\ns_cbranch_scc1 L_tru_to_gemm2")
    finish()


GFLAG2 = 0x1800
transposer("u")
transposer("w")


def cmul(out, x, y, t):
    a(f"v_pk_mul_f32 {vr(t, 2)}, {vr(x, 2)}, {vr(y, 2)} op_sel:[0,0] op_sel_hi:[1,0]")
    return f"v_pk_fma_f32 {vr(out, 2)}, {vr(x, 2)}, {vr(y, 2)}, {vr(t, 2)} op_sel:[1,1,0] op_sel_hi:[0,1,1] neg_lo:[1,0,0]"


def bf16_round_int(l):
    if l < 256:
        return l
    e = l.bit_length() - 8
    q, r = l >> e, l & ((1 << e) - 1)
    h = 1 << (e - 1)
    if r > h or (r == h and (q & 1)):
        q += 1
    return q << e


L_U, L_KE, L_KO, L_T, L_KC = 0, 4608, 8768, 4608, 13312
TP = 544


def conv():
    L2E_HI = struct.unpack("<f", struct.pack("<f", 1.4426950408889634))[0]
    L2E_LO = 1.4426950408889634 - L2E_HI
    a(f"""
    L_conv:
    s_sub_u32 s7, s2, 256
    s_lshl_b32 s8, s7, 2
    s_add_u32 s8, s8, {WAVE}
    s_mul_i32 s9, {WAVE}, 20480
    s_lshl_b32 s10, s8, 8
    v_lshl_add_u32 v4, v1, 2, s10
    s_lshl_b32 s10, s8, 1
    v_mov_b32 v5, s10
    s_waitcnt lgkmcnt(0)
    global_load_ushort v14, v5, {LDT}
    global_load_dword v10, v4, {LOGA}
    global_load_dword v11, v4, {AIM}
    global_load_dword v12, v4, {CR}
    global_load_dword v13, v4, {CI}
    global_load_ushort v15, v5, {DSK}
    s_mov_b32 s44, s42
    s_mov_b32 s45, s43
    v_mov_b32 v6, 0
    v_mov_b32 v7, 0
    v_lshl_add_u32 v8, v1, 3, s9
    ds_write_b64 v8, v[6:7] offset:{L_U}
    v_add_u32 v16, {L_T}, v8
    v_and_b32 v4, 15, v1
    v_lshrrev_b32 v5, 4, v1
    v_mul_u32_u24 v17, {TP}, v4
    v_lshl_add_u32 v17, v5, 4, v17
    v_add_u32 v17, s9, v17
    s_mov_b32 s11, {f32(L2E_HI)}
    s_mov_b32 s12, {f32(L2E_LO)}
    s_mov_b32 s13, {f32(0.6931471805599453)}
    s_waitcnt vmcnt(4)
    """)
    a("v_lshlrev_b32 v20, 16, v14\nv_lshlrev_b32 v21, 16, v10\nv_and_b32 v22, 0xffff0000, v10")
    for i in range(3):
        a(f"v_mul_f32 v{24 + i}, s11, v{20 + i}")
    for i in range(3):
        a(f"v_fma_f32 v{28 + i}, v{20 + i}, s11, -v{24 + i}")
    for i in range(3):
        a(f"v_exp_f32 v{24 + i}, v{24 + i}")
    for i in range(3):
        a(f"v_fma_f32 v{28 + i}, v{20 + i}, s12, v{28 + i}")
    for i in range(3):
        a(f"v_mul_f32 v{28 + i}, s13, v{28 + i}")
    for i in range(3):
        a(f"v_fma_f32 v{24 + i}, v{24 + i}, v{28 + i}, v{24 + i}")
    a(f"""
    v_cvt_pk_bf16_f32 v20, v24, v24
    v_cvt_pk_bf16_f32 v21, v25, v26
    v_and_b32 v20, 0xffff0000, v20
    v_and_b32 v22, 0xffff0000, v21
    v_lshlrev_b32 v21, 16, v21
    v_mul_f32 v21, v21, v20
    v_mul_f32 v22, v22, v20
    v_mul_f32 v21, {f32(-1.4426950408889634)}, v21
    v_mul_f32 v22, {f32(-1.4426950408889634)}, v22
    s_waitcnt vmcnt(1)
    v_lshlrev_b32 v23, 16, v11
    v_and_b32 v24, 0xffff0000, v11
    v_mul_f32 v23, v23, v20
    v_mul_f32 v24, v24, v20
    v_mul_f32 v23, 0.15915494, v23
    v_mul_f32 v24, 0.15915494, v24
    """)
    B = [40, 80]
    R_, Z8, G1, GC, T1, O1 = 0, 2, 4, 6, 8, 10
    P = lambda m, k: B[m] + 12 + 2 * (k - 1)
    a(f"""
    v_add_f32 v25, v20, v20
    v_lshlrev_b32 v26, 16, v12
    v_and_b32 v27, 0xffff0000, v12
    v_lshlrev_b32 v28, 16, v13
    v_and_b32 v29, 0xffff0000, v13
    v_mul_f32 v{B[0] + R_}, v26, v25
    v_mul_f32 v{B[1] + R_}, v27, v25
    v_mul_f32 v{B[0] + R_ + 1}, -v28, v25
    v_mul_f32 v{B[1] + R_ + 1}, -v29, v25
    """)
    for e, dst, conj in ((8, Z8, True), (1, None, False), (128, G1, False)):
        for m in range(2):
            if e == 1:
                a(f"v_exp_f32 v{30 + m}, v{21 + m}\nv_fract_f32 v{32 + m}, v{23 + m}")
            else:
                a(f"v_mul_f32 v{30 + m}, {f32(float(e))}, v{21 + m}\nv_mul_f32 v{32 + m}, {f32(float(e))}, v{23 + m}")
        if e != 1:
            for m in range(2):
                a(f"v_exp_f32 v{30 + m}, v{30 + m}\nv_fract_f32 v{32 + m}, v{32 + m}")
        for m in range(2):
            a(f"v_cos_f32 v{34 + m}, v{32 + m}\nv_sin_f32 v{36 + m}, v{32 + m}")
        for m in range(2):
            d = P(m, 1) if dst is None else B[m] + dst
            a(f"v_mul_f32 v{d}, v{30 + m}, v{34 + m}\nv_mul_f32 v{d + 1}, {'-' if conj else ''}v{30 + m}, v{36 + m}")

    wr = [0]

    def put(row, regs):
        t = 120 + 2 * (wr[0] & 3)
        wr[0] += 1
        for m in range(2):
            if regs is None:
                a(f"v_mov_b32 v{t + m}, 0x3f80")
            else:
                a(f"v_cvt_pk_bf16_f32 v{t + m}, v{regs[m]}, v{regs[m] + 1}")
        a(f"ds_write_b64 v16, {vr(t, 2)} offset:{row * TP}")

    def cm2(out, x, y):
        f = [cmul(out(m), x(m), y(m), B[m] + T1) for m in range(2)]
        a(f[0])
        a(f[1])

    def rd(base):
        for ks in range(8):
            a(f"ds_read_b128 {vr(base + 4 * ks, 4)}, v17 offset:{L_T + 64 * ks}")

    off = lambda o: (lambda m: B[m] + o)
    pw = lambda k: (lambda m: P(m, k))
    RB, QA = 128, [160, 192]
    D = [224, 228, 232]
    for x in range(16):
        put(x, [B[0] + R_, B[1] + R_])
        if x < 15:
            cm2(off(R_), off(R_), off(Z8))
        if 1 <= x <= 6:
            cm2(pw(x + 1), pw(x), pw(1))
    rd(RB)
    put(0, None)
    for k in range(1, 8):
        put(k, [P(0, k), P(1, k)])
    put(8, [B[0] + G1, B[1] + G1])
    cm2(off(GC), off(G1), off(G1))
    for k in range(1, 8):
        cm2(off(O1), off(G1), pw(k))
        put(8 + k, [B[0] + O1, B[1] + O1])
    rd(QA[0])
    row = 0
    for i in range(2, 8):
        put(row, [B[0] + GC, B[1] + GC])
        row += 1
        for k in ((2, 4, 6) if i < 4 else (4,)):
            cm2(off(O1), off(GC), pw(k))
            put(row, [B[0] + O1, B[1] + O1])
            row += 1
        cm2(off(GC), off(GC), off(G1))
        if i == 2:
            a(f"""
            s_waitcnt vmcnt(0)
            v_lshlrev_b32 v15, 16, v15
            v_cmp_eq_u32 vcc, 0, v1
            v_mov_b32 v{D[0] + 1}, 0
            v_mov_b32 v{D[0] + 2}, 0
            v_mov_b32 v{D[0] + 3}, 0
            v_cndmask_b32 v{D[0]}, 0, v15, vcc
            s_waitcnt lgkmcnt(4)
            """)
            for ks in range(8):
                a(f"v_mfma_f32_16x16x32_bf16 {vr(D[0], 4)}, {vr(QA[0] + 4 * ks, 4)}, {vr(RB + 4 * ks, 4)}, {vr(D[0], 4)}")
    rd(QA[1])
    for i in range(8, 17):
        put(i - 8, [B[0] + GC, B[1] + GC])
        if i < 16:
            cm2(off(GC), off(GC), off(G1))
        if i == 11:
            a("s_waitcnt lgkmcnt(4)")
            for ks in range(8):
                a(f"v_mfma_f32_16x16x32_bf16 {vr(D[1], 4)}, {vr(QA[1] + 4 * ks, 4)}, {vr(RB + 4 * ks, 4)}, {'0' if ks == 0 else vr(D[1], 4)}")
    rd(QA[0])
    stamp(1)
    a(f"""
    v_lshlrev_b32 v18, 2, v1
    v_add_u32 v18, {UFLAG}, v18
    buffer_load_dword v19, v18, {WSRD}, 0 offen sc1
    global_load_dword v9, v3, {DBG} sc1
    """)
    a(f"""
    v_lshrrev_b32 v20, 1, v5
    v_and_b32 v21, 1, v5
    v_lshlrev_b32 v22, 9, v20
    v_lshl_add_u32 v22, v21, 4, v22
    v_lshl_add_u32 v22, v4, 5, v22
    v_add_u32 v22, s9, v22
    v_lshlrev_b32 v23, 8, v5
    v_lshlrev_b32 v24, 4, v4
    v_lshlrev_b32 v25, 3, v4
    v_cmp_gt_u32 vcc, 2, v5
    v_add_u32 v26, s9, v23
    v_mov_b32 v28, 0x80
    v_cndmask_b32 v24, v25, v24, vcc
    v_cndmask_b32 v28, v28, 8, vcc
    v_add_u32 v24, v26, v24
    v_add_u32 v25, v24, v28
    v_lshl_add_u32 v26, v4, 2, v26
    s_waitcnt lgkmcnt(0)
    """)
    for ks in range(8):
        a(f"v_mfma_f32_16x16x32_bf16 {vr(D[2], 4)}, {vr(QA[0] + 4 * ks, 4)}, {vr(RB + 4 * ks, 4)}, {'0' if ks == 0 else vr(D[2], 4)}")
    a(f"""
    ds_write_b128 v22, {vr(D[0], 4)} offset:{L_KC}
    ds_write_b64 v24, {vr(D[1], 2)} offset:{L_KC + 1024}
    ds_write_b64 v25, {vr(D[1] + 2, 2)} offset:{L_KC + 1024}
    v_sub_u32 v27, 63, v1
    v_lshl_add_u32 v28, v27, 3, s9
    v_lshl_add_u32 v29, v27, 4, s9
    """)
    for j in range(4):
        a(f"ds_write_b32 v26, v{D[2] + j} offset:{L_KC + 2048 + 64 * j}")
    E = {3: 40, 2: 44, 1: 48, 0: 52}
    for s, idx in ((3, 512), (2, 384), (1, 256)):
        a(f"ds_read_b64 {vr(E[s], 2)}, v28 offset:{L_KC + 4 * idx}\nds_read_b32 v{E[s] + 2}, v28 offset:{L_KC + 4 * idx + 8}")
    a(f"ds_read_b128 {vr(E[0], 4)}, v29 offset:{L_KC}\nds_read_b32 v{E[0] + 4}, v29 offset:{L_KC + 16}")
    a(f"""
    v_lshl_add_u32 v30, v1, 5, s9
    v_lshl_add_u32 v31, v1, 4, s9
    v_lshl_add_u32 v32, v1, 2, s9
    """)
    t = 64
    waits = {3: 6, 2: 4, 1: 2, 0: 0}
    pend = []
    for s, l0, Bn, step, areg, aoff in ((3, 1024, 16, 8, 30, 0), (2, 512, 8, 4, 31, 2048), (1, 256, 4, 2, 8, 3072), (0, 0, 4, 1, 8, 3584)):
        a(f"s_waitcnt lgkmcnt({waits[s] + len(pend)})" if False else "")
        if s == 3:
            a("s_waitcnt lgkmcnt(0)")
        val = lambda x: E[s] + (bf16_round_int(l0 + 64 + x) - (l0 + 64)) // step
        for base, sh in ((L_KE, 0), (L_KO, 1)):
            for m in range(Bn // 2):
                a(f"v_cvt_pk_bf16_f32 v{t + m}, v{val(Bn - sh - 2 * m)}, v{val(Bn - sh - 1 - 2 * m)}")
            if Bn == 16:
                a(f"ds_write_b128 v{areg}, {vr(t, 4)} offset:{base + aoff}\nds_write_b128 v{areg}, {vr(t + 4, 4)} offset:{base + aoff + 16}")
            elif Bn == 8:
                a(f"ds_write_b128 v{areg}, {vr(t, 4)} offset:{base + aoff}")
            else:
                a(f"ds_write_b64 v{areg}, {vr(t, 2)} offset:{base + aoff}")
            t += max(4, Bn // 2)
    a(f"""
    v_cvt_pk_bf16_f32 v33, v{E[0]}, v3
    s_nop 0
    v_readlane_b32 s10, v33, 63
    v_cmp_eq_u32 vcc, 0, v1
    v_mov_b32 v34, s10
    v_cndmask_b32 v34, 0, v34, vcc
    s_mov_b64 exec, 0xffff
    ds_write_b32 v32, v34 offset:{L_KE + 4096}
    ds_write_b32 v32, v3 offset:{L_KO + 4096}
    s_mov_b64 exec, -1
    """)
    stamp(2)
    a("s_waitcnt vmcnt(0)")
    poll("v18", "v19", "v9", "v3", first_issued=True)
    stamp(3)
    a(f"""
    v_lshrrev_b32 v20, 4, v0
    v_mul_u32_u24 v21, 40960, v20
    v_lshl_add_u32 v21, v4, 4, v21
    s_lshl_b32 s10, s7, 8
    s_add_u32 s10, s10, {UT}
    """)
    for n in range(4):
        a(f"buffer_load_dwordx4 {vr(40 + 4 * n, 4)}, v21, {WSRD}, s10 offen sc1")
        if n < 3:
            a(f"s_add_u32 s10, s10, {16 * 40960}")
    a(f"""
    v_and_b32 v22, 3, v1
    v_mul_u32_u24 v22, 20480, v22
    v_lshl_add_u32 v22, v20, 6, v22
    v_bfe_u32 v23, v1, 2, 2
    v_lshl_add_u32 v22, v23, 4, v22
    v_and_b32 v23, 1, v4
    v_mul_u32_u24 v23, {L_KO - 2 - L_KE}, v23
    v_lshl_add_u32 v23, v5, 4, v23
    v_lshlrev_b32 v24, 1, v4
    v_sub_u32 v23, v23, v24
    v_add_u32 v23, s9, v23
    v_add_u32 v24, {L_KE + 4064 - 512}, v23
    v_add_u32 v25, {L_KE + 4064 - 512 * 3}, v23
    v_add_u32 v26, {L_KE + 4064 - 512 * 5}, v23
    v_add_u32 v27, {L_KE + 4064 - 512 * 7}, v23
    ; B address: 480 + 32 i + 16 g
    v_lshlrev_b32 v28, 5, v4
    v_lshl_add_u32 v28, v5, 4, v28
    v_add_u32 v28, s9, v28
    v_add_u32 v28, {L_U + 480}, v28
    """)
    for n in range(4):
        a(f"s_waitcnt vmcnt({3 - n})\nds_write_b128 v22, {vr(40 + 4 * n, 4)} offset:{L_U + 512 + 1024 * n}")
    a("s_waitcnt lgkmcnt(0)\ns_barrier")
    stamp(4)
    ACC = 32
    AS, BS = [64, 128], [96, 160]

    def loads(s):
        L = []
        for m in range(8):
            L.append(f"ds_read_b128 {vr(BS[s] + 4 * m, 4)}, v28 offset:{512 * m}")
        for q in range(8):
            o = 128 if q % 2 == 0 else 0
            r = AS[s] + 4 * q
            L.append(f"ds_read2_b32 {vr(r, 2)}, v{24 + q // 2} offset0:{o} offset1:{o + 1}")
            L.append(f"ds_read2_b32 {vr(r + 2, 2)}, v{24 + q // 2} offset0:{o + 2} offset1:{o + 3}")
        for r in range(24, 29):
            L.append(f"v_subrev_u32 v{r}, 64, v{r}")
        return L

    for l in loads(0):
        a(l)
    for p in range(8):
        s = p & 1
        nxt = loads(s ^ 1) if p < 7 else []
        a("s_waitcnt lgkmcnt(0)")
        for q in range(8):
            for j in range(q, 8):
                c = "0" if (p == 0 and q == 0) else vr(ACC + 4 * j, 4)
                a(f"v_mfma_f32_16x16x32_bf16 {vr(ACC + 4 * j, 4)}, {vr(AS[s] + 4 * q, 4)}, {vr(BS[s] + 4 * (j - q), 4)}, {c}")
                if nxt:
                    a(nxt.pop(0))
        assert not nxt
    stamp(5)
    a(f"""
    s_and_b32 s10, {WAVE}, 1
    s_lshl_b32 s10, s10, 5
    s_lshr_b32 s11, {WAVE}, 1
    s_lshl_b32 s11, s11, 7
    s_add_u32 s10, s10, s11
    s_add_u32 s10, s10, s9
    v_lshlrev_b32 v20, 5, v4
    v_lshl_add_u32 v20, v5, 3, v20
    v_add_u32 v20, s10, v20
    v_bfe_u32 v21, v1, 2, 2
    v_mul_u32_u24 v22, 20480, v21
    v_and_b32 v23, 1, v21
    v_lshl_add_u32 v22, v23, 5, v22
    v_lshrrev_b32 v23, 1, v21
    v_lshl_add_u32 v22, v23, 7, v22
    v_and_b32 v23, 3, v1
    v_lshl_add_u32 v22, v23, 3, v22
    v_lshl_add_u32 v22, v5, 6, v22
    s_lshl_b32 s10, {WAVE}, 10
    v_add_u32 v22, s10, v22
    """)
    for j in range(8):
        a(f"v_cvt_pk_bf16_f32 v{64 + 2 * j}, v{ACC + 4 * j}, v{ACC + 4 * j + 1}\nv_cvt_pk_bf16_f32 v{65 + 2 * j}, v{ACC + 4 * j + 2}, v{ACC + 4 * j + 3}")
        a(f"ds_write_b64 v20, {vr(64 + 2 * j, 2)} offset:{L_KE + 512 * j}")
    a(f"""
    s_lshl_b32 s10, s7, 14
    s_lshl_b32 s11, {WAVE}, 12
    s_add_u32 s10, s10, s11
    s_add_u32 s10, s10, {AG}
    v_lshlrev_b32 v21, 4, v1
    s_waitcnt lgkmcnt(0)
    s_barrier
    """)
    for n in range(4):
        a(f"ds_read_b64_tr_b16 {vr(96 + 4 * n, 2)}, v22 offset:{L_KE + 256 * n}\nds_read_b64_tr_b16 {vr(98 + 4 * n, 2)}, v22 offset:{L_KE + 256 * n + 32}")
    for n in range(4):
        a(f"s_waitcnt lgkmcnt({6 - 2 * n})\nbuffer_store_dwordx4 {vr(96 + 4 * n, 4)}, v21, {WSRD}, s10 offen offset:{1024 * n} sc1")
    a(f"""
    s_mul_i32 s10, s7, 205
    s_lshr_b32 s10, s10, 12
    s_mul_i32 s11, s10, 20
    s_sub_u32 s11, s7, s11
    s_lshl_b32 s10, s10, 2
    s_add_u32 s10, s10, {WAVE}
    s_lshl_b32 s10, s10, 7
    s_lshl_b32 s11, s11, 2
    s_add_u32 s10, s10, s11
    s_add_u32 s10, s10, {AFLAG2}
    s_waitcnt vmcnt(0)
    """)
    flag_store("s10", "v12", "v3")
    stamp(6)
    finish()


AFLAG2 = 0x4000
conv()


def gemm1():
    a(f"""
    L_gemm1:
    s_mul_i32 s7, s6, 37
    s_lshr_b32 s7, s7, 8
    s_mul_i32 s8, s7, 7
    s_sub_u32 s8, s6, s8
    s_lshr_b32 s9, s5, 1
    s_lshl_b32 s9, s9, 2
    s_add_u32 s7, s7, s9
    s_and_b32 s9, s5, 1
    s_mul_i32 s9, s9, 7
    s_add_u32 s8, s8, s9
    s_mul_i32 s9, s7, {128 * 1280}
    v_lshrrev_b32 v4, 2, v1
    s_lshl_b32 s10, {WAVE}, 5
    v_add_u32 v4, s10, v4
    v_mul_u32_u24 v4, 1280, v4
    v_lshrrev_b32 v5, 4, v1
    v_and_b32 v6, 2, v5
    v_and_b32 v7, 3, v1
    v_xor_b32 v6, v6, v7
    v_lshl_add_u32 v8, v6, 4, v4
    v_add_u32 v9, 20480, v8
    s_lshl_b32 s10, {WAVE}, 3
    v_add_u32 v4, s10, v5
    v_mul_u32_u24 v4, 3456, v4
    s_and_b32 s10, {WAVE}, 1
    s_lshl_b32 s10, s10, 2
    v_or_b32 v6, s10, v5
    v_lshlrev_b32 v6, 1, v6
    v_and_b32 v12, 15, v1
    v_xor_b32 v6, v6, v12
    v_lshl_add_u32 v10, v6, 4, v4
    s_lshl_b32 s10, s8, 8
    v_add_u32 v10, s10, v10
    v_add_u32 v11, 13824, v10
    s_lshl_b32 s11, {WAVE}, 11
    s_mov_b32 s12, 0
    s_mov_b32 s13, 0
    s_waitcnt lgkmcnt(0)
    """)
    srd(48, 16, 17, "s9", 128 * 1280)
    srd(52, 32, 33, None, 640 * 3456)
    vm = VM(a)

    def dma(ks):
        slot = ks % 5
        G = []
        for k, (vo, srdn, so, lo) in enumerate((("v8", SRDA, "s12", 0), ("v9", SRDA, "s12", 1024), ("v10", SRDB, "s13", 40960), ("v11", SRDB, "s13", 40960 + 1024))):
            g = [("s", f"s_add_u32 m0, s11, {slot * 8192 + lo}"), ("v", f"buffer_load_dwordx4 {vo}, {srdn}, {so} offen lds", f"st{ks}")]
            if k == 1:
                g.append(("s", "s_add_u32 s12, s12, 64"))
            if k == 3:
                g.append(("s", f"s_add_u32 s13, s13, {32 * 3456}"))
            G.append(g)
        return G

    def emit_group(g):
        for it in g:
            if it[0] == "v":
                vm.issue(it[2], it[1])
            else:
                a(it[1])

    for ks in range(5):
        for g in dma(ks):
            emit_group(g)
    a(f"""
    s_mov_b32 s44, s42
    s_mov_b32 s45, s43
    s_lshr_b32 s14, {WAVE}, 1
    s_and_b32 s15, {WAVE}, 1
    s_lshl_b32 s10, s14, 12
    v_lshlrev_b32 v13, 6, v12
    v_add_u32 v13, s10, v13
    v_bfe_u32 v4, v1, 3, 1
    v_lshlrev_b32 v4, 1, v4
    v_xor_b32 v4, v4, v5
    v_lshl_add_u32 v13, v4, 4, v13
    v_bfe_u32 v4, v1, 2, 2
    v_lshl_add_u32 v6, v5, 3, v4
    v_lshlrev_b32 v14, 8, v6
    v_and_b32 v6, 1, v5
    v_lshl_or_b32 v6, v6, 2, v4
    s_lshl_b32 s10, s15, 2
    v_xor_b32 v6, s10, v6
    v_lshl_add_u32 v14, v6, 5, v14
    v_lshl_add_u32 v14, v7, 3, v14
    v_add_u32 v14, 40960, v14
    v_xor_b32 v15, 32, v14
    v_xor_b32 v16, 64, v14
    v_xor_b32 v17, 0x60, v14
    """)
    ACC = 64
    WF, XF = [128, 160], [144, 176]

    def reads(ks):
        s, slot = ks & 1, ks % 5
        L = []
        for i in range(4):
            L.append(f"ds_read_b128 {vr(XF[s] + 4 * i, 4)}, v13 offset:{slot * 8192 + 1024 * i}")
            L.append(f"ds_read_b64_tr_b16 {vr(WF[s] + 4 * i, 2)}, v{14 + i} offset:{slot * 8192}")
            L.append(f"ds_read_b64_tr_b16 {vr(WF[s] + 4 * i + 2, 2)}, v{14 + i} offset:{slot * 8192 + 1024}")
        return L

    vm.wait("st0")
    a("s_barrier")
    stamp(1)
    for l in reads(0):
        a(l)
    for ks in range(20):
        s = ks & 1
        if ks < 19:
            vm.wait(f"st{ks + 1}", extra="lgkmcnt(0)")
            a("s_barrier")
        else:
            a("s_waitcnt lgkmcnt(0)")
        aux = [[("s", l)] for l in reads(ks + 1)] if ks < 19 else []
        if ks + 5 < 20:
            aux += dma(ks + 5)
        if ks == 17:
            aux.append([("s", f"s_mul_i32 s10, {WAVE}, 14"), ("s", "v_min_u32 v18, 13, v1"), ("s", "v_add_u32 v18, s10, v18"),
                        ("s", "v_min_u32 v18, 53, v18"), ("s", "v_lshlrev_b32 v18, 2, v18"), ("s", f"v_add_u32 v18, {WFLAG}, v18")])
        if ks == 19:
            aux.append([("v", f"buffer_load_dword v19, v18, {WSRD}, 0 offen sc1", "wfl")])
            aux.append([("v", f"global_load_dword v20, v3, {DBG} sc1", "wfl")])
        for ft in range(4):
            for tt in range(4):
                d = vr(ACC + 16 * ft + 4 * tt, 4)
                a(f"v_mfma_f32_16x16x32_bf16 {d}, {vr(WF[s] + 4 * ft, 4)}, {vr(XF[s] + 4 * tt, 4)}, {'0' if ks == 0 else d}")
                if aux:
                    emit_group(aux.pop(0))
        assert not aux
    stamp(2)
    a(f"""
    s_lshl_b32 s7, s7, 1
    s_add_u32 s7, s7, s14
    s_lshl_b32 s8, s8, 1
    s_add_u32 s8, s8, s15
    s_mul_i32 s9, s7, {54 * 4096}
    s_lshl_b32 s10, s8, 13
    s_add_u32 s9, s9, s10
    s_add_u32 s9, s9, {HF}
    s_add_u32 s10, s9, 4096
    s_lshl_b32 s7, s7, 7
    s_lshl_b32 s12, s8, 2
    s_add_u32 s60, s7, s12
    s_mov_b32 s61, s8
    v_lshlrev_b32 v21, 4, v1
    s_barrier
    s_cmp_ge_u32 s8, 27
    s_cbranch_scc1 L_g1_nostore
    """)
    t = 128
    for m in range(2):
        for tt in range(4):
            for h in range(2):
                r = ACC + 16 * (2 * m + h) + 4 * tt
                a(f"v_cvt_pk_bf16_f32 v{t + 2 * h}, v{r}, v{r + 1}\nv_cvt_pk_bf16_f32 v{t + 2 * h + 1}, v{r + 2}, v{r + 3}")
            for k in range(4):
                a(f"v_pk_max_i16 v{t + k}, v{t + k}, 0")
            a(f"buffer_store_dwordx4 {vr(t, 4)}, v21, {WSRD}, s{9 + m} offen offset:{1024 * tt} sc1")
            t += 4
    a("s_waitcnt vmcnt(8)\ns_branch L_gemm2\nL_g1_nostore:\ns_waitcnt vmcnt(0)\ns_branch L_gemm2")
    a(f"""
    L_tru_to_gemm2:
    s_mul_i32 s10, {WAVE}, 14
    v_min_u32 v18, 13, v1
    v_add_u32 v18, s10, v18
    v_min_u32 v18, 53, v18
    v_lshlrev_b32 v18, 2, v18
    v_add_u32 v18, {WFLAG}, v18
    buffer_load_dword v19, v18, {WSRD}, 0 offen sc1
    global_load_dword v20, v3, {DBG} sc1
    s_mov_b32 s61, 99
    s_mov_b32 s60, 0
    s_barrier
    s_waitcnt vmcnt(0)
    """)


def gemm2():
    a("L_gemm2:")
    poll("v18", "v19", "v20", "v3", first_issued=True)
    a(f"""
    s_lshr_b32 s7, s5, 1
    s_lshl_b32 s7, s7, 3
    s_lshr_b32 s8, s6, 2
    s_add_u32 s7, s7, s8
    s_and_b32 s8, s5, 1
    s_lshl_b32 s8, s8, 2
    s_and_b32 s9, s6, 3
    s_add_u32 s8, s8, s9
    s_mul_i32 s9, s8, 5120
    v_lshl_add_u32 v2, v1, 4, s9
    v_add_u32 v4, 4096, v2
    s_mul_i32 s12, {WAVE}, {14 * 40960}
    s_add_u32 s12, s12, {W2F}
    s_mul_i32 s13, s7, {54 * 4096}
    s_add_u32 s13, s13, {HF}
    s_add_u32 s15, s13, {53 * 4096}
    s_mul_i32 s9, {WAVE}, {14 * 4096}
    s_add_u32 s13, s13, s9
    """)
    vm = VM(a)
    vm.q = ["hst"]
    ACC, WR, HR = 8, 88, 208
    NW, NH = 6, 3

    def wload(i, dt):
        r = WR + 20 * (i % NW) + 4 * dt
        vm.issue(f"w{i}", f"buffer_load_dwordx4 {vr(r, 4)}, {'v4' if dt == 4 else 'v2'}, {WSRD}, s12 offen offset:{1024 * (dt & 3)} sc1")
        if dt == 4:
            a(f"s_add_u32 s12, s12, 40960\ns_min_u32 s12, s12, {W2F + 53 * 40960}")

    HV = ["v0", "v5", "v6", "v7"]

    def hload(i, k):
        r = HR + 16 * (i % NH) + 4 * k
        vm.issue(f"h{i}", f"buffer_load_dwordx4 {vr(r, 4)}, {HV[k]}, {WSRD}, s13 offen sc1")
        if k == 3:
            a("s_add_u32 s13, s13, 4096\ns_min_u32 s13, s13, s15")

    for i in range(NW):
        for dt in range(5):
            wload(i, dt)
    vm.wait("hst")
    lab = a.newlabel("Lnf")
    a(f"s_cmp_ge_u32 s61, 27\ns_cbranch_scc1 {lab}")
    flag_store("s60", "v18", "v3")
    a(f"{lab}:")
    stamp(3)
    a(f"""
    s_mul_i32 s10, {WAVE}, 7
    v_min_u32 v18, 6, v1
    v_add_u32 v18, s10, v18
    v_min_u32 v18, 26, v18
    v_lshlrev_b32 v18, 2, v18
    s_lshl_b32 s10, s7, 7
    v_add_u32 v18, s10, v18
    """)
    for k in range(4):
        a(f"s_add_u32 s10, {WAVE}, {k}\ns_and_b32 s10, s10, 3\ns_lshl_b32 s10, s10, 10\nv_lshl_add_u32 {HV[k]}, v1, 4, s10")
    poll("v18", "v19")
    vm.q = []
    stamp(4)
    for i in range(NH):
        for k in range(4):
            hload(i, k)
    for i in range(14):
        if i == 12:
            a(f"s_cmp_eq_u32 {WAVE}, 3\ns_cbranch_scc1 L_g2_done")
        vm.wait(f"h{i}", f"w{i}")
        for k in range(4):
            for dt in range(5):
                d = vr(ACC + 20 * k + 4 * dt, 4)
                a(f"v_mfma_f32_16x16x32_bf16 {d}, {vr(WR + 20 * (i % NW) + 4 * dt, 4)}, {vr(HR + 16 * (i % NH) + 4 * k, 4)}, {'0' if i == 0 else d}")
                if k == 3 and i + NW < 14:
                    wload(i + NW, dt)
            if i + NH < 14:
                hload(i + NH, k)
        if i == 9:
            FR = WR + 20 * (9 % NW)
            a(f"""
            s_lshl_b32 s10, s8, 2
            s_lshr_b32 s11, s7, 3
            s_add_u32 s10, s10, s11
            s_lshl_b32 s10, s10, 7
            s_add_u32 s10, s10, {AFLAG2}
            v_lshl_add_u32 v{FR}, v1, 2, s10
            s_lshl_b32 s10, s7, 2
            s_add_u32 s10, s10, {WAVE}
            s_lshl_b32 s10, s10, 2
            s_add_u32 s10, s10, {GFLAG2}
            v_mov_b32 v{FR + 1}, s10
            v_cmp_gt_u32 vcc, 20, v1
            v_cndmask_b32 v{FR}, v{FR + 1}, v{FR}, vcc
            """)
            vm.issue("afl", f"buffer_load_dword v{FR + 1}, v{FR}, {WSRD}, 0 offen sc1")
    a("L_g2_done:\ns_waitcnt vmcnt(0)")
    stamp(5)
    FR = WR + 20 * (9 % NW)
    poll(f"v{FR}", f"v{FR + 1}", first_issued=True)
    X = HR
    a(f"""
    v_and_b32 v{X}, 15, v1
    v_lshrrev_b32 v{X + 1}, 4, v1
    v_lshlrev_b32 v{X + 2}, 14, v{X + 1}
    v_lshl_add_u32 v{X + 2}, v{X}, 4, v{X + 2}
    s_mul_i32 s10, s8, {20 * 16384}
    s_lshl_b32 s11, s7, 9
    s_add_u32 s10, s10, s11
    s_lshr_b32 s11, {WAVE}, 1
    s_lshl_b32 s11, s11, 8
    s_add_u32 s10, s10, s11
    s_and_b32 s11, {WAVE}, 1
    s_lshl_b32 s11, s11, 3
    s_add_u32 s10, s10, s11
    s_add_u32 s10, s10, {AG}
    """)
    AR = X + 8
    for dt in range(5):
        a(f"buffer_load_dwordx2 {vr(AR + 2 * dt, 2)}, v{X + 2}, {WSRD}, s10 offen sc1")
        if dt < 4:
            a("s_add_u32 s10, s10, 65536")
    a(f"""
    s_lshl_b32 s10, s7, 8
    s_lshl_b32 s11, {WAVE}, 6
    s_add_u32 s10, s10, s11
    s_add_u32 s10, s10, {G_OFF}
    v_lshlrev_b32 v{X + 3}, 2, v{X}
    buffer_load_dword v{X + 4}, v{X + 3}, {WSRD}, s10 offen sc1
    s_mul_i32 s10, {WAVE}, 15360
    v_lshl_add_u32 v{X + 5}, v1, 4, s10
    """)
    for k in range(1, 4):
        for dt in range(5):
            a(f"ds_write_b128 v{X + 5}, {vr(ACC + 20 * k + 4 * dt, 4)} offset:{5120 * (k - 1) + 1024 * dt}")
    for k in range(1, 4):
        a(f"s_sub_u32 s10, {WAVE}, {k}\ns_and_b32 s10, s10, 3\ns_mul_i32 s10, s10, 15360\nv_lshl_add_u32 v{X + 19 + k}, v1, 4, s10")
    a("s_waitcnt lgkmcnt(0)\ns_barrier")
    PR = WR
    for k in range(1, 4):
        for dt in range(5):
            a(f"ds_read_b128 {vr(PR + 20 * (k - 1) + 4 * dt, 4)}, v{X + 19 + k} offset:{5120 * (k - 1) + 1024 * dt}")
    GA = ACC + 20
    a(f"""
    s_waitcnt vmcnt(0)
    v_sub_f32 v{X + 6}, 1.0, v{X + 4}
    v_cvt_pk_bf16_f32 v{X + 6}, v{X + 6}, v{X + 6}
    v_and_b32 v{X + 6}, 0xffff0000, v{X + 6}
    """)
    for i in range(10):
        a(f"v_lshlrev_b32 v{GA + 2 * i}, 16, v{AR + i}\nv_and_b32 v{GA + 2 * i + 1}, 0xffff0000, v{AR + i}")
    for i in range(20):
        a(f"v_mul_f32 v{GA + i}, v{X + 4}, v{GA + i}")
    OP = 176
    a(f"""
    s_mul_i32 s10, {WAVE}, {16 * OP}
    s_add_u32 s10, s10, 61440
    v_mul_u32_u24 v{X + 7}, {OP}, v{X}
    v_lshl_add_u32 v{X + 7}, v{X + 1}, 3, v{X + 7}
    v_add_u32 v{X + 7}, s10, v{X + 7}
    s_lshl_b32 s11, s7, 6
    s_lshl_b32 s12, {WAVE}, 4
    s_add_u32 s11, s11, s12
    s_mul_i32 s11, s11, 1280
    s_mul_i32 s12, s8, 160
    s_add_u32 s11, s11, s12
    """)
    srd(48, 38, 39, None, 2048 * 1280)
    for n in range(3):
        q, row, c, la, ga = X + 24, X + 25, X + 26, X + 28 + n, X + 32 + n
        a(f"""
        v_add_u32 v{q}, {64 * n}, v1
        v_mul_u32_u24 v{row}, 205, v{q}
        v_lshrrev_b32 v{row}, 11, v{row}
        v_mul_u32_u24 v{c}, 10, v{row}
        v_sub_u32 v{c}, v{q}, v{c}
        v_lshlrev_b32 v{c}, 4, v{c}
        v_mul_u32_u24 v{la}, {OP}, v{row}
        v_add3_u32 v{la}, v{la}, v{c}, s10
        v_mul_u32_u24 v{ga}, 1280, v{row}
        v_add_u32 v{ga}, v{ga}, v{c}
        """)
    for k in range(3):
        a(f"s_waitcnt lgkmcnt({10 - 5 * k})")
        for i in range(10):
            a(f"v_pk_add_f32 {vr(ACC + 2 * i, 2)}, {vr(ACC + 2 * i, 2)}, {vr(PR + 20 * k + 2 * i, 2)}")
    for i in range(20):
        a(f"v_fma_f32 v{GA + i}, v{X + 6}, v{ACC + i}, v{GA + i}")
    for dt in range(5):
        a(f"v_cvt_pk_bf16_f32 v{AR + 2 * dt}, v{GA + 4 * dt}, v{GA + 4 * dt + 1}\nv_cvt_pk_bf16_f32 v{AR + 2 * dt + 1}, v{GA + 4 * dt + 2}, v{GA + 4 * dt + 3}")
        a(f"ds_write_b64 v{X + 7}, {vr(AR + 2 * dt, 2)} offset:{32 * dt}")
    for n in range(3):
        a(f"ds_read_b128 {vr(PR + 4 * n, 4)}, v{X + 28 + n}")
    for n in range(3):
        a(f"s_waitcnt lgkmcnt({2 - n})")
        if n == 2:
            a("s_mov_b32 exec_hi, 0")
        a(f"buffer_store_dwordx4 {vr(PR + 4 * n, 4)}, v{X + 32 + n}, {SRDA}, s11 offen")
    if DIAG:
        a("s_mov_b64 exec, -1\ns_waitcnt vmcnt(0)")
    stamp(6)
    finish()


gemm1()
gemm2()

if DIAG:
    a(f"""
    L_dump:
    s_lshl_b32 s10, s2, 8
    s_lshl_b32 s11, {WAVE}, 6
    s_add_u32 s10, s10, s11
    s_add_u32 s10, s10, {STAMP}
    v_mov_b32 v3, 0
    s_mov_b64 exec, 1
    """)
    for i in range(8):
        a(f"v_mov_b32 v{8 + i}, s{70 + 2 * i}")
    a(f"buffer_store_dwordx4 v[8:11], v3, {WSRD}, s10 offen\nbuffer_store_dwordx4 v[12:15], v3, {WSRD}, s10 offen offset:16\ns_endpgm")

body = a.render()
head = open(f"cdna_kernels/{NAME}.s.ref").read().split("; Override launch")[0]
text = head + f"""; Generated by the author's own generator script (dev/gen.py); single fused kernel, roles by workgroup id.
; @launch grid=(512,1,1) block=(256,1,1) lds=81920
.amdgcn_target "amdgcn-amd-amdhsa--gfx950"
.text
.globl {NAME}_kernel
.p2align 8
.type {NAME}_kernel,@function
{NAME}_kernel:
{body}.section .rodata,"a"
.p2align 6
.amdhsa_kernel {NAME}_kernel
  .amdhsa_next_free_vgpr 256
  .amdhsa_next_free_sgpr 102
  .amdhsa_accum_offset 256
  .amdhsa_group_segment_fixed_size 0
  .amdhsa_kernarg_size 112
  .amdhsa_user_sgpr_count 2
  .amdhsa_user_sgpr_kernarg_segment_ptr 1
  .amdhsa_system_sgpr_workgroup_id_x 1
.end_amdhsa_kernel
"""
open(OUT, "w").write(text)
print("wrote", OUT, "lines", text.count("\n"), "auto nops", a.nops)
```

```python
import sys, struct
from asmlib import Asm, VM

NAME = "gated_mix__ssm_conv_s4d__dense_activation_relu__prompt"
DIAG = "--diag" in sys.argv
OPT = set(x[2:] for x in sys.argv if x.startswith("--"))
OUT = [x for x in sys.argv[1:] if not x.startswith("--")]
OUT = OUT[0] if OUT else f"cdna_kernels/{NAME}.s"

HFLAG, UFLAG, GFLAG, WFLAG, AFLAG, G_OFF = 0x0, 0x1000, 0x1100, 0x1200, 0x1400, 0x2000
UT = 0x10000
W2F = UT + 64 * 40960
HF = W2F + 54 * 40960
AG = HF + 32 * 54 * 4096
STAMP = AG + 160 * 16384
WS_END = STAMP + 512 * 4 * 64
SPIN_LIMIT = 400000


def f32(x):
    return "0x%08x" % struct.unpack("<I", struct.pack("<f", x))[0]


def vr(b, n=1):
    return f"v{b}" if n == 1 else f"v[{b}:{b + n - 1}]"


a = Asm()
U, LOGA, AIM, CR, CI, LDT, DSK = "s[16:17]", "s[18:19]", "s[20:21]", "s[22:23]", "s[24:25]", "s[26:27]", "s[28:29]"
DBG = "s[40:41]"
WSRD = "s[44:47]"
SRDA, SRDB, SRDC = "s[48:51]", "s[52:55]", "s[56:59]"
WAVE, TAG = "s3", "s4"


def stamp(i):
    if DIAG:
        a(f"s_memrealtime s[{70 + 2 * i}:{71 + 2 * i}]\ns_waitcnt lgkmcnt(0)")


def finish():
    if DIAG:
        a("s_branch L_dump")
    else:
        a("s_endpgm")


def srd(dst, lo, hi, off_s, size):
    if off_s is None:
        a(f"s_mov_b32 s{dst}, s{lo}\ns_mov_b32 s{dst + 1}, s{hi}")
    else:
        a(f"s_add_u32 s{dst}, s{lo}, {off_s}\ns_addc_u32 s{dst + 1}, s{hi}, 0")
    a(f"s_mov_b32 s{dst + 2}, {size}\ns_mov_b32 s{dst + 3}, 0x20000")


def poll(voff, vf, vt=None, vz=None, first_issued=False):
    lp, chk, retry, done = (a.newlabel(x) for x in ("Lp", "Lc", "Lr", "Ld"))
    a("s_mov_b32 s66, 0")
    if first_issued:
        a(f"s_branch {chk}")
    a(f"{lp}:")
    if voff:
        a(f"buffer_load_dword {vf}, {voff}, {WSRD}, 0 offen sc1")
    if vt:
        a(f"global_load_dword {vt}, {vz}, {DBG} sc1")
    a("s_waitcnt vmcnt(0)")
    a(f"{chk}:")
    if vt:
        a(f"v_readfirstlane_b32 {TAG}, {vt}\ns_cmp_eq_u32 {TAG}, 0")
        if voff:
            a(f"s_cbranch_scc1 {retry}")
        else:
            a(f"s_cbranch_scc0 {done}")
    if voff:
        a(f"v_cmp_ne_u32 vcc, {TAG}, {vf}\ns_cmp_eq_u64 vcc, 0\ns_cbranch_scc1 {done}")
    a(f"{retry}:\ns_sleep 1\ns_add_u32 s66, s66, 1\ns_cmp_lt_u32 s66, {SPIN_LIMIT}\ns_cbranch_scc1 {lp}\n{done}:")


def flag_store(soff, vtmp, vz):
    a(f"v_mov_b32 {vtmp}, {TAG}\ns_mov_b64 exec, 1")
    a(f"buffer_store_dword {vtmp}, {vz}, {WSRD}, {soff} offen sc1")
    a("s_mov_b64 exec, -1")


CODEPF = """
s_getpc_b64 s[62:63]
L_pc0:
v_lshlrev_b32 v250, 7, v0
v_min_u32 v250, L_code_end-L_pc0-4, v250
global_load_dword v251, v250, s[62:63]
""" if "codepf" in OPT else ""
stamp(0)
a(f"""
s_cmp_ge_u32 s2, 512
s_cbranch_scc1 L_end
s_load_dwordx16 s[16:31], s[0:1], 0
{CODEPF}
s_load_dwordx8 s[32:39], s[0:1], 64
s_load_dwordx4 s[40:43], s[0:1], 96
v_lshrrev_b32 v2, 6, v0
v_and_b32 v1, 63, v0
v_mov_b32 v3, 0
v_readfirstlane_b32 {WAVE}, v2
s_and_b32 s5, s2, 7
s_lshr_b32 s6, s2, 3
s_mov_b32 s46, {WS_END}
s_mov_b32 s47, 0x20000
s_cmp_lt_u32 s2, 224
s_cbranch_scc1 L_gemm1
{"s_endpgm" if "g1only" in OPT else ""}
s_cmp_lt_u32 s2, 256
s_cbranch_scc1 L_tru
s_cmp_lt_u32 s2, 416
s_cbranch_scc1 L_conv
s_cmp_lt_u32 s2, 470
s_cbranch_scc1 L_trw
s_cmp_ge_u32 s2, 480
s_cbranch_scc1 L_tru
; ---- tag makers: a launch-unique nonce goes into d_debug[0] (first writer wins)
s_cmp_ge_u32 s2, 478
s_cbranch_scc1 L_end
s_cmp_lg_u32 {WAVE}, 0
s_cbranch_scc1 L_end
s_memrealtime s[64:65]
s_waitcnt lgkmcnt(0)
s_or_b32 s64, s64, 1
v_mov_b32 v4, s64
v_mov_b32 v5, 0
s_mov_b64 exec, 1
global_atomic_cmpswap v3, v[4:5], {DBG} sc1
s_waitcnt vmcnt(0)
L_end:
s_endpgm
""")


def transposer(mode):
    a(f"L_tr{mode}:\ns_setprio 2")
    if mode == "u":
        a("""
        s_lshl_b32 s7, s5, 3
        s_and_b32 s8, s6, 3
        s_add_u32 s7, s7, s8
        s_lshr_b32 s8, s2, 8
        s_lshl_b32 s8, s8, 2
        s_add_u32 s7, s7, s8
        """)
    else:
        a("s_sub_u32 s7, s2, 416")
    a(f"""
    s_mul_i32 s8, s7, 40960
    s_mul_i32 s9, {WAVE}, 10240
    v_lshrrev_b32 v4, 4, v1
    s_waitcnt lgkmcnt(0)
    s_mov_b32 s44, s42
    s_mov_b32 s45, s43
    """)
    srd(48, *((16, 17) if mode == "u" else (34, 35)), "s8", 40960)
    if mode == "u":
        a(f"s_lshl_b32 s10, {WAVE}, 2\nv_xor_b32 v7, s10, v1")
    for m in range(10):
        a(f"v_add_u32 v5, {4 * m}, v4\nv_mul_u32_u24 v5, 13, v5\nv_lshrrev_b32 v5, 6, v5")
        if mode == "u":
            a("v_and_b32 v5, 3, v5\nv_xor_b32 v5, v5, v7")
        else:
            a("v_lshlrev_b32 v5, 1, v5\nv_xor_b32 v5, v5, v1")
        a(f"v_lshlrev_b32 v5, 4, v5\ns_add_u32 s10, s9, {1024 * m}\ns_mov_b32 m0, s10")
        a(f"buffer_load_dwordx4 v5, {SRDA}, s10 offen lds")
    if mode == "u":
        srd(52, 36, 37, None, 1280)
        lab = a.newlabel("Lg")
        a(f"""
        s_cmp_ge_u32 {WAVE}, 2
        s_cbranch_scc1 {lab}
        v_lshlrev_b32 v5, 4, v0
        s_lshl_b32 s10, {WAVE}, 10
        s_add_u32 m0, s10, 40960
        buffer_load_dwordx4 v5, {SRDB}, 0 offen lds
        {lab}:
        """)
    a("v_bfe_u32 v5, v1, 2, 2\nv_and_b32 v6, 3, v1")
    if mode == "u":
        a(f"""
        v_lshl_add_u32 v8, v6, 3, v5
        v_mul_u32_u24 v8, 1280, v8
        v_lshl_or_b32 v9, v6, 2, v5
        v_lshrrev_b32 v10, 5, v1
        s_lshl_b32 s10, {WAVE}, 2
        v_or_b32 v10, s10, v10
        v_xor_b32 v9, v9, v10
        v_lshl_add_u32 v8, v9, 4, v8
        v_and_b32 v9, 1, v4
        v_lshl_add_u32 v8, v9, 3, v8
        """)
        second = 4 * 1280
    else:
        a(f"""
        v_lshrrev_b32 v9, 2, v1
        v_mul_u32_u24 v8, 1280, v9
        v_and_b32 v9, 7, v9
        s_lshl_b32 s10, {WAVE}, 1
        v_xor_b32 v9, s10, v9
        v_lshl_add_u32 v8, v9, 5, v8
        v_lshl_add_u32 v8, v6, 3, v8
        """)
        second = 16 * 1280
    a(f"""
    v_xor_b32 v9, 32, v8
    s_lshl_b32 s10, {WAVE}, 11
    v_lshl_add_u32 v10, v1, 4, s10
    s_add_u32 s8, s8, {UT if mode == 'u' else W2F}
    s_waitcnt vmcnt(0)
    s_barrier
    """)
    stamp(1)
    a(f"global_load_dword v11, v3, {DBG} sc1")
    for aa in range(5):
        for b in range(2):
            r = 16 + 8 * aa + 4 * b
            a(f"ds_read_b64_tr_b16 {vr(r, 2)}, v{8 + b} offset:{256 * aa}")
            a(f"ds_read_b64_tr_b16 {vr(r + 2, 2)}, v{8 + b} offset:{256 * aa + second}")
    for aa in range(5):
        a(f"s_waitcnt lgkmcnt({min(15, 16 - 4 * aa)})" if aa < 4 else "s_waitcnt lgkmcnt(0)")
        for b in range(2):
            r = 16 + 8 * aa + 4 * b
            a(f"buffer_store_dwordx4 {vr(r, 4)}, v10, {WSRD}, s8 offen offset:{1024 * b} sc1")
        a("s_add_u32 s8, s8, 8192")
    a("s_waitcnt vmcnt(0)\ns_barrier")
    poll(None, None, "v11", "v3", first_issued=True)
    lab = a.newlabel("Lf")
    a(f"s_cmp_lg_u32 {WAVE}, 3\ns_cbranch_scc1 {lab}\ns_lshl_b32 s10, s7, 2\ns_add_u32 s10, s10, {UFLAG if mode == 'u' else WFLAG}")
    flag_store("s10", "v12", "v3")
    a(f"{lab}:")
    stamp(2)
    if mode == "w":
        finish()
        return
    lab = a.newlabel("Lgd")
    a(f"""
    s_cmp_ge_u32 {WAVE}, 2
    s_cbranch_scc1 {lab}
    v_and_b32 v5, 15, v1
    s_lshl_b32 s10, {WAVE}, 4
    v_add_u32 v5, s10, v5
    v_mul_u32_u24 v8, 1280, v5
    v_and_b32 v6, 3, v5
    v_lshrrev_b32 v7, 3, v5
    v_lshl_or_b32 v6, v7, 2, v6
    v_xor_b32 v6, v6, v4
    v_lshl_add_u32 v8, v6, 4, v8
    v_xor_b32 v9, 64, v8
    v_xor_b32 v10, 0x80, v8
    v_xor_b32 v11, 0xc0, v8
    v_lshlrev_b32 v12, 4, v4
    """)
    for ks in range(20):
        a(f"ds_read_b128 {vr(16 + 8 * ks, 4)}, v{8 + (ks & 3)} offset:{256 * (ks >> 2)}")
        a(f"ds_read_b128 {vr(20 + 8 * ks, 4)}, v12 offset:{40960 + 64 * ks}")
    a("s_waitcnt lgkmcnt(0)")
    for ks in range(20):
        a(f"v_mfma_f32_16x16x32_bf16 v[180:183], {vr(16 + 8 * ks, 4)}, {vr(20 + 8 * ks, 4)}, {'0' if ks == 0 else 'v[180:183]'}")
    a(f"""
    v_cvt_pk_bf16_f32 v184, v180, v181
    v_cvt_pk_bf16_f32 v185, v182, v183
    v_lshlrev_b32 v180, 16, v184
    v_and_b32 v181, 0xffff0000, v184
    v_lshlrev_b32 v182, 16, v185
    v_and_b32 v183, 0xffff0000, v185
    """)
    for i in range(4):
        a(f"v_mul_f32 v{180 + i}, {f32(-1.4426950408889634)}, v{180 + i}")
    for i in range(4):
        a(f"v_exp_f32 v{180 + i}, v{180 + i}")
    for i in range(4):
        a(f"v_add_f32 v{180 + i}, 1.0, v{180 + i}")
    for i in range(4):
        a(f"v_rcp_f32 v{180 + i}, v{180 + i}")
    a(f"""
    v_cvt_pk_bf16_f32 v184, v180, v181
    v_cvt_pk_bf16_f32 v185, v182, v183
    v_lshlrev_b32 v180, 16, v184
    v_and_b32 v181, 0xffff0000, v184
    v_lshlrev_b32 v182, 16, v185
    v_and_b32 v183, 0xffff0000, v185
    s_lshl_b32 s10, s7, 7
    s_lshl_b32 s11, {WAVE}, 6
    s_add_u32 s10, s10, s11
    s_add_u32 s10, s10, {G_OFF}
    s_mov_b32 s12, 0x10001
    s_mov_b32 s13, 0x10001
    s_mov_b64 exec, s[12:13]
    buffer_store_dwordx4 v[180:183], v12, {WSRD}, s10 offen sc1
    s_mov_b64 exec, -1
    s_waitcnt vmcnt(0)
    s_lshl_b32 s10, s7, 3
    s_lshl_b32 s11, {WAVE}, 2
    s_add_u32 s10, s10, s11
    s_add_u32 s10, s10, {GFLAG2}
    """)
    flag_store("s10", "v12", "v3")
    a(f"{lab}:\ns_setprio 0\ns_cmp_lt_u32 s2, 256\ns_cbranch_scc1 L_tru_to_gemm2")
    finish()


GFLAG2 = 0x1800
transposer("u")
transposer("w")


def cmul(out, x, y, t):
    a(f"v_pk_mul_f32 {vr(t, 2)}, {vr(x, 2)}, {vr(y, 2)} op_sel:[0,0] op_sel_hi:[1,0]")
    return f"v_pk_fma_f32 {vr(out, 2)}, {vr(x, 2)}, {vr(y, 2)}, {vr(t, 2)} op_sel:[1,1,0] op_sel_hi:[0,1,1] neg_lo:[1,0,0]"


def bf16_round_int(l):
    if l < 256:
        return l
    e = l.bit_length() - 8
    q, r = l >> e, l & ((1 << e) - 1)
    h = 1 << (e - 1)
    if r > h or (r == h and (q & 1)):
        q += 1
    return q << e


L_U, L_KE, L_KO, L_T, L_KC = 0, 4608, 8768, 4608, 13312
TP = 544


def conv():
    L2E_HI = struct.unpack("<f", struct.pack("<f", 1.4426950408889634))[0]
    L2E_LO = 1.4426950408889634 - L2E_HI
    a(f"""
    L_conv:
    s_sub_u32 s7, s2, 256
    s_lshl_b32 s8, s7, 2
    s_add_u32 s8, s8, {WAVE}
    s_mul_i32 s9, {WAVE}, 20480
    s_lshl_b32 s10, s8, 8
    v_lshl_add_u32 v4, v1, 2, s10
    s_lshl_b32 s10, s8, 1
    v_mov_b32 v5, s10
    s_waitcnt lgkmcnt(0)
    global_load_ushort v14, v5, {LDT}
    global_load_dword v10, v4, {LOGA}
    global_load_dword v11, v4, {AIM}
    global_load_dword v12, v4, {CR}
    global_load_dword v13, v4, {CI}
    global_load_ushort v15, v5, {DSK}
    s_mov_b32 s44, s42
    s_mov_b32 s45, s43
    v_mov_b32 v6, 0
    v_mov_b32 v7, 0
    v_lshl_add_u32 v8, v1, 3, s9
    ds_write_b64 v8, v[6:7] offset:{L_U}
    v_add_u32 v16, {L_T}, v8
    v_and_b32 v4, 15, v1
    v_lshrrev_b32 v5, 4, v1
    v_mul_u32_u24 v17, {TP}, v4
    v_lshl_add_u32 v17, v5, 4, v17
    v_add_u32 v17, s9, v17
    s_mov_b32 s11, {f32(L2E_HI)}
    s_mov_b32 s12, {f32(L2E_LO)}
    s_mov_b32 s13, {f32(0.6931471805599453)}
    s_waitcnt vmcnt(4)
    """)
    stamp(7)
    a("v_lshlrev_b32 v20, 16, v14\nv_lshlrev_b32 v21, 16, v10\nv_and_b32 v22, 0xffff0000, v10")
    for i in range(3):
        a(f"v_mul_f32 v{24 + i}, s11, v{20 + i}")
    for i in range(3):
        a(f"v_fma_f32 v{28 + i}, v{20 + i}, s11, -v{24 + i}")
    for i in range(3):
        a(f"v_exp_f32 v{24 + i}, v{24 + i}")
    for i in range(3):
        a(f"v_fma_f32 v{28 + i}, v{20 + i}, s12, v{28 + i}")
    for i in range(3):
        a(f"v_mul_f32 v{28 + i}, s13, v{28 + i}")
    for i in range(3):
        a(f"v_fma_f32 v{24 + i}, v{24 + i}, v{28 + i}, v{24 + i}")
    a(f"""
    v_cvt_pk_bf16_f32 v20, v24, v24
    v_cvt_pk_bf16_f32 v21, v25, v26
    v_and_b32 v20, 0xffff0000, v20
    v_and_b32 v22, 0xffff0000, v21
    v_lshlrev_b32 v21, 16, v21
    v_mul_f32 v21, v21, v20
    v_mul_f32 v22, v22, v20
    v_mul_f32 v21, {f32(-1.4426950408889634)}, v21
    v_mul_f32 v22, {f32(-1.4426950408889634)}, v22
    s_waitcnt vmcnt(1)
    v_lshlrev_b32 v23, 16, v11
    v_and_b32 v24, 0xffff0000, v11
    v_mul_f32 v23, v23, v20
    v_mul_f32 v24, v24, v20
    v_mul_f32 v23, 0.15915494, v23
    v_mul_f32 v24, 0.15915494, v24
    """)
    B = [40, 80]
    R_, Z8, G1, GC, T1, O1 = 0, 2, 4, 6, 8, 10
    P = lambda m, k: B[m] + 12 + 2 * (k - 1)
    a(f"""
    v_add_f32 v25, v20, v20
    v_lshlrev_b32 v26, 16, v12
    v_and_b32 v27, 0xffff0000, v12
    v_lshlrev_b32 v28, 16, v13
    v_and_b32 v29, 0xffff0000, v13
    v_mul_f32 v{B[0] + R_}, v26, v25
    v_mul_f32 v{B[1] + R_}, v27, v25
    v_mul_f32 v{B[0] + R_ + 1}, -v28, v25
    v_mul_f32 v{B[1] + R_ + 1}, -v29, v25
    """)
    for e, dst, conj in ((8, Z8, True), (1, None, False), (128, G1, False)):
        for m in range(2):
            if e == 1:
                a(f"v_exp_f32 v{30 + m}, v{21 + m}\nv_fract_f32 v{32 + m}, v{23 + m}")
            else:
                a(f"v_mul_f32 v{30 + m}, {f32(float(e))}, v{21 + m}\nv_mul_f32 v{32 + m}, {f32(float(e))}, v{23 + m}")
        if e != 1:
            for m in range(2):
                a(f"v_exp_f32 v{30 + m}, v{30 + m}\nv_fract_f32 v{32 + m}, v{32 + m}")
        for m in range(2):
            a(f"v_cos_f32 v{34 + m}, v{32 + m}\nv_sin_f32 v{36 + m}, v{32 + m}")
        for m in range(2):
            d = P(m, 1) if dst is None else B[m] + dst
            a(f"v_mul_f32 v{d}, v{30 + m}, v{34 + m}\nv_mul_f32 v{d + 1}, {'-' if conj else ''}v{30 + m}, v{36 + m}")

    wr = [0]

    def put(row, regs):
        t = 120 + 2 * (wr[0] & 3)
        wr[0] += 1
        for m in range(2):
            if regs is None:
                a(f"v_mov_b32 v{t + m}, 0x3f80")
            else:
                a(f"v_cvt_pk_bf16_f32 v{t + m}, v{regs[m]}, v{regs[m] + 1}")
        a(f"ds_write_b64 v16, {vr(t, 2)} offset:{row * TP}")

    def cm2(out, x, y):
        f = [cmul(out(m), x(m), y(m), B[m] + T1) for m in range(2)]
        a(f[0])
        a(f[1])

    def rd(base):
        for ks in range(8):
            a(f"ds_read_b128 {vr(base + 4 * ks, 4)}, v17 offset:{L_T + 64 * ks}")

    off = lambda o: (lambda m: B[m] + o)
    pw = lambda k: (lambda m: P(m, k))
    RB, QA = 128, [160, 192]
    D = [224, 228, 232]
    for x in range(16):
        put(x, [B[0] + R_, B[1] + R_])
        if x < 15:
            cm2(off(R_), off(R_), off(Z8))
        if 1 <= x <= 6:
            cm2(pw(x + 1), pw(x), pw(1))
    rd(RB)
    put(0, None)
    for k in range(1, 8):
        put(k, [P(0, k), P(1, k)])
    put(8, [B[0] + G1, B[1] + G1])
    cm2(off(GC), off(G1), off(G1))
    for k in range(1, 8):
        cm2(off(O1), off(G1), pw(k))
        put(8 + k, [B[0] + O1, B[1] + O1])
    rd(QA[0])
    row = 0
    for i in range(2, 8):
        put(row, [B[0] + GC, B[1] + GC])
        row += 1
        for k in ((2, 4, 6) if i < 4 else (4,)):
            cm2(off(O1), off(GC), pw(k))
            put(row, [B[0] + O1, B[1] + O1])
            row += 1
        cm2(off(GC), off(GC), off(G1))
        if i == 2:
            a(f"""
            s_waitcnt vmcnt(0)
            v_lshlrev_b32 v15, 16, v15
            v_cmp_eq_u32 vcc, 0, v1
            v_mov_b32 v{D[0] + 1}, 0
            v_mov_b32 v{D[0] + 2}, 0
            v_mov_b32 v{D[0] + 3}, 0
            v_cndmask_b32 v{D[0]}, 0, v15, vcc
            s_waitcnt lgkmcnt(4)
            """)
            for ks in range(8):
                a(f"v_mfma_f32_16x16x32_bf16 {vr(D[0], 4)}, {vr(QA[0] + 4 * ks, 4)}, {vr(RB + 4 * ks, 4)}, {vr(D[0], 4)}")
    rd(QA[1])
    for i in range(8, 17):
        put(i - 8, [B[0] + GC, B[1] + GC])
        if i < 16:
            cm2(off(GC), off(GC), off(G1))
        if i == 11:
            a("s_waitcnt lgkmcnt(4)")
            for ks in range(8):
                a(f"v_mfma_f32_16x16x32_bf16 {vr(D[1], 4)}, {vr(QA[1] + 4 * ks, 4)}, {vr(RB + 4 * ks, 4)}, {'0' if ks == 0 else vr(D[1], 4)}")
    rd(QA[0])
    stamp(1)
    a(f"""
    v_lshlrev_b32 v18, 2, v1
    v_add_u32 v18, {UFLAG}, v18
    buffer_load_dword v19, v18, {WSRD}, 0 offen sc1
    global_load_dword v9, v3, {DBG} sc1
    """)
    a(f"""
    v_lshrrev_b32 v20, 1, v5
    v_and_b32 v21, 1, v5
    v_lshlrev_b32 v22, 9, v20
    v_lshl_add_u32 v22, v21, 4, v22
    v_lshl_add_u32 v22, v4, 5, v22
    v_add_u32 v22, s9, v22
    v_lshlrev_b32 v23, 8, v5
    v_lshlrev_b32 v24, 4, v4
    v_lshlrev_b32 v25, 3, v4
    v_cmp_gt_u32 vcc, 2, v5
    v_add_u32 v26, s9, v23
    v_mov_b32 v28, 0x80
    v_cndmask_b32 v24, v25, v24, vcc
    v_cndmask_b32 v28, v28, 8, vcc
    v_add_u32 v24, v26, v24
    v_add_u32 v25, v24, v28
    v_lshl_add_u32 v26, v4, 2, v26
    s_waitcnt lgkmcnt(0)
    """)
    for ks in range(8):
        a(f"v_mfma_f32_16x16x32_bf16 {vr(D[2], 4)}, {vr(QA[0] + 4 * ks, 4)}, {vr(RB + 4 * ks, 4)}, {'0' if ks == 0 else vr(D[2], 4)}")
    a(f"""
    ds_write_b128 v22, {vr(D[0], 4)} offset:{L_KC}
    ds_write_b64 v24, {vr(D[1], 2)} offset:{L_KC + 1024}
    ds_write_b64 v25, {vr(D[1] + 2, 2)} offset:{L_KC + 1024}
    v_sub_u32 v27, 63, v1
    v_lshl_add_u32 v28, v27, 3, s9
    v_lshl_add_u32 v29, v27, 4, s9
    """)
    for j in range(4):
        a(f"ds_write_b32 v26, v{D[2] + j} offset:{L_KC + 2048 + 64 * j}")
    E = {3: 40, 2: 44, 1: 48, 0: 52}
    for s, idx in ((3, 512), (2, 384), (1, 256)):
        a(f"ds_read_b64 {vr(E[s], 2)}, v28 offset:{L_KC + 4 * idx}\nds_read_b32 v{E[s] + 2}, v28 offset:{L_KC + 4 * idx + 8}")
    a(f"ds_read_b128 {vr(E[0], 4)}, v29 offset:{L_KC}\nds_read_b32 v{E[0] + 4}, v29 offset:{L_KC + 16}")
    a(f"""
    v_lshl_add_u32 v30, v1, 5, s9
    v_lshl_add_u32 v31, v1, 4, s9
    v_lshl_add_u32 v32, v1, 2, s9
    """)
    t = 64
    waits = {3: 6, 2: 4, 1: 2, 0: 0}
    pend = []
    for s, l0, Bn, step, areg, aoff in ((3, 1024, 16, 8, 30, 0), (2, 512, 8, 4, 31, 2048), (1, 256, 4, 2, 8, 3072), (0, 0, 4, 1, 8, 3584)):
        a(f"s_waitcnt lgkmcnt({waits[s] + len(pend)})" if False else "")
        if s == 3:
            a("s_waitcnt lgkmcnt(0)")
        val = lambda x: E[s] + (bf16_round_int(l0 + 64 + x) - (l0 + 64)) // step
        for base, sh in ((L_KE, 0), (L_KO, 1)):
            for m in range(Bn // 2):
                a(f"v_cvt_pk_bf16_f32 v{t + m}, v{val(Bn - sh - 2 * m)}, v{val(Bn - sh - 1 - 2 * m)}")
            if Bn == 16:
                a(f"ds_write_b128 v{areg}, {vr(t, 4)} offset:{base + aoff}\nds_write_b128 v{areg}, {vr(t + 4, 4)} offset:{base + aoff + 16}")
            elif Bn == 8:
                a(f"ds_write_b128 v{areg}, {vr(t, 4)} offset:{base + aoff}")
            else:
                a(f"ds_write_b64 v{areg}, {vr(t, 2)} offset:{base + aoff}")
            t += max(4, Bn // 2)
    a(f"""
    v_cvt_pk_bf16_f32 v33, v{E[0]}, v3
    s_nop 0
    v_readlane_b32 s10, v33, 63
    v_cmp_eq_u32 vcc, 0, v1
    v_mov_b32 v34, s10
    v_cndmask_b32 v34, 0, v34, vcc
    s_mov_b64 exec, 0xffff
    ds_write_b32 v32, v34 offset:{L_KE + 4096}
    ds_write_b32 v32, v3 offset:{L_KO + 4096}
    s_mov_b64 exec, -1
    """)
    stamp(2)
    a("s_waitcnt vmcnt(0)")
    poll("v18", "v19", "v9", "v3", first_issued=True)
    stamp(3)
    a(f"""
    v_lshrrev_b32 v20, 4, v0
    v_mul_u32_u24 v21, 40960, v20
    v_lshl_add_u32 v21, v4, 4, v21
    s_lshl_b32 s10, s7, 8
    s_add_u32 s10, s10, {UT}
    """)
    for n in range(4):
        a(f"buffer_load_dwordx4 {vr(40 + 4 * n, 4)}, v21, {WSRD}, s10 offen sc1")
        if n < 3:
            a(f"s_add_u32 s10, s10, {16 * 40960}")
    a(f"""
    v_and_b32 v22, 3, v1
    v_mul_u32_u24 v22, 20480, v22
    v_lshl_add_u32 v22, v20, 6, v22
    v_bfe_u32 v23, v1, 2, 2
    v_lshl_add_u32 v22, v23, 4, v22
    v_and_b32 v23, 1, v4
    v_mul_u32_u24 v23, {L_KO - 2 - L_KE}, v23
    v_lshl_add_u32 v23, v5, 4, v23
    v_lshlrev_b32 v24, 1, v4
    v_sub_u32 v23, v23, v24
    v_add_u32 v23, s9, v23
    v_add_u32 v24, {L_KE + 4064 - 512}, v23
    v_add_u32 v25, {L_KE + 4064 - 512 * 3}, v23
    v_add_u32 v26, {L_KE + 4064 - 512 * 5}, v23
    v_add_u32 v27, {L_KE + 4064 - 512 * 7}, v23
    ; B address: 480 + 32 i + 16 g
    v_lshlrev_b32 v28, 5, v4
    v_lshl_add_u32 v28, v5, 4, v28
    v_add_u32 v28, s9, v28
    v_add_u32 v28, {L_U + 480}, v28
    """)
    for n in range(4):
        a(f"s_waitcnt vmcnt({3 - n})\nds_write_b128 v22, {vr(40 + 4 * n, 4)} offset:{L_U + 512 + 1024 * n}")
    a("s_waitcnt lgkmcnt(0)\ns_barrier")
    stamp(4)
    ACC = 32
    AS, BS = [64, 128], [96, 160]

    def loads(s):
        L = []
        for m in range(8):
            L.append(f"ds_read_b128 {vr(BS[s] + 4 * m, 4)}, v28 offset:{512 * m}")
        for q in range(8):
            o = 128 if q % 2 == 0 else 0
            r = AS[s] + 4 * q
            L.append(f"ds_read2_b32 {vr(r, 2)}, v{24 + q // 2} offset0:{o} offset1:{o + 1}")
            L.append(f"ds_read2_b32 {vr(r + 2, 2)}, v{24 + q // 2} offset0:{o + 2} offset1:{o + 3}")
        for r in range(24, 29):
            L.append(f"v_subrev_u32 v{r}, 64, v{r}")
        return L

    for l in loads(0):
        a(l)
    for p in range(8):
        s = p & 1
        nxt = loads(s ^ 1) if p < 7 else []
        a("s_waitcnt lgkmcnt(0)")
        for q in range(8):
            for j in range(q, 8):
                c = "0" if (p == 0 and q == 0) else vr(ACC + 4 * j, 4)
                a(f"v_mfma_f32_16x16x32_bf16 {vr(ACC + 4 * j, 4)}, {vr(AS[s] + 4 * q, 4)}, {vr(BS[s] + 4 * (j - q), 4)}, {c}")
                if nxt:
                    a(nxt.pop(0))
        assert not nxt
    stamp(5)
    a(f"""
    s_and_b32 s10, {WAVE}, 1
    s_lshl_b32 s10, s10, 5
    s_lshr_b32 s11, {WAVE}, 1
    s_lshl_b32 s11, s11, 7
    s_add_u32 s10, s10, s11
    s_add_u32 s10, s10, s9
    v_lshlrev_b32 v20, 5, v4
    v_lshl_add_u32 v20, v5, 3, v20
    v_add_u32 v20, s10, v20
    v_bfe_u32 v21, v1, 2, 2
    v_mul_u32_u24 v22, 20480, v21
    v_and_b32 v23, 1, v21
    v_lshl_add_u32 v22, v23, 5, v22
    v_lshrrev_b32 v23, 1, v21
    v_lshl_add_u32 v22, v23, 7, v22
    v_and_b32 v23, 3, v1
    v_lshl_add_u32 v22, v23, 3, v22
    v_lshl_add_u32 v22, v5, 6, v22
    s_lshl_b32 s10, {WAVE}, 10
    v_add_u32 v22, s10, v22
    """)
    for j in range(8):
        a(f"v_cvt_pk_bf16_f32 v{64 + 2 * j}, v{ACC + 4 * j}, v{ACC + 4 * j + 1}\nv_cvt_pk_bf16_f32 v{65 + 2 * j}, v{ACC + 4 * j + 2}, v{ACC + 4 * j + 3}")
        a(f"ds_write_b64 v20, {vr(64 + 2 * j, 2)} offset:{L_KE + 512 * j}")
    a(f"""
    s_lshl_b32 s10, s7, 14
    s_lshl_b32 s11, {WAVE}, 12
    s_add_u32 s10, s10, s11
    s_add_u32 s10, s10, {AG}
    v_lshlrev_b32 v21, 4, v1
    s_waitcnt lgkmcnt(0)
    s_barrier
    """)
    for n in range(4):
        a(f"ds_read_b64_tr_b16 {vr(96 + 4 * n, 2)}, v22 offset:{L_KE + 256 * n}\nds_read_b64_tr_b16 {vr(98 + 4 * n, 2)}, v22 offset:{L_KE + 256 * n + 32}")
    for n in range(4):
        a(f"s_waitcnt lgkmcnt({6 - 2 * n})\nbuffer_store_dwordx4 {vr(96 + 4 * n, 4)}, v21, {WSRD}, s10 offen offset:{1024 * n} sc1")
    a(f"""
    s_mul_i32 s10, s7, 205
    s_lshr_b32 s10, s10, 12
    s_mul_i32 s11, s10, 20
    s_sub_u32 s11, s7, s11
    s_lshl_b32 s10, s10, 2
    s_add_u32 s10, s10, {WAVE}
    s_lshl_b32 s10, s10, 7
    s_lshl_b32 s11, s11, 2
    s_add_u32 s10, s10, s11
    s_add_u32 s10, s10, {AFLAG2}
    s_waitcnt vmcnt(0)
    """)
    flag_store("s10", "v12", "v3")
    stamp(6)
    finish()


AFLAG2 = 0x4000
conv()


def gemm1():
    a(f"""
    L_gemm1:
    s_mul_i32 s7, s6, 37
    s_lshr_b32 s7, s7, 8
    s_mul_i32 s8, s7, 7
    s_sub_u32 s8, s6, s8
    s_lshr_b32 s9, s5, 1
    s_lshl_b32 s9, s9, 2
    s_add_u32 s7, s7, s9
    s_and_b32 s9, s5, 1
    s_mul_i32 s9, s9, 7
    s_add_u32 s8, s8, s9
    s_mul_i32 s9, s7, {128 * 1280}
    v_lshrrev_b32 v4, 2, v1
    s_lshl_b32 s10, {WAVE}, 5
    v_add_u32 v4, s10, v4
    v_mul_u32_u24 v4, 1280, v4
    v_lshrrev_b32 v5, 4, v1
    v_and_b32 v6, 2, v5
    v_and_b32 v7, 3, v1
    v_xor_b32 v6, v6, v7
    v_lshl_add_u32 v8, v6, 4, v4
    v_add_u32 v9, 20480, v8
    s_lshl_b32 s10, {WAVE}, 3
    v_add_u32 v4, s10, v5
    v_mul_u32_u24 v4, 3456, v4
    s_and_b32 s10, {WAVE}, 1
    s_lshl_b32 s10, s10, 2
    v_or_b32 v6, s10, v5
    v_lshlrev_b32 v6, 1, v6
    v_and_b32 v12, 15, v1
    v_xor_b32 v6, v6, v12
    v_lshl_add_u32 v10, v6, 4, v4
    s_lshl_b32 s10, s8, 8
    v_add_u32 v10, s10, v10
    v_add_u32 v11, 13824, v10
    s_lshl_b32 s11, {WAVE}, 11
    s_mov_b32 s12, 0
    s_mov_b32 s13, 0
    """)
    if "rot" in OPT:
        a("""
        s_mul_i32 s12, s7, 5
        s_mul_i32 s13, s8, 3
        s_add_u32 s12, s12, s13
        s_mul_i32 s13, s12, 205
        s_lshr_b32 s13, s13, 12
        s_mul_i32 s13, s13, 20
        s_sub_u32 s12, s12, s13
        s_mul_i32 s13, s12, 110592
        s_lshl_b32 s12, s12, 6
        """)
    a("s_waitcnt lgkmcnt(0)")
    if "touch" in OPT:
        a(f"""
        s_lshl_b32 s62, s6, 2
        s_add_u32 s62, s62, {WAVE}
        ; w1: line id = W*64+lane + n*7168 -> row = id/14, c = id%14 (8960 lines)
        v_lshl_add_u32 v240, s62, 6, v1
        s_mov_b32 s63, 9363
        v_mul_u32_u24 v241, s63, v240
        v_lshrrev_b32 v241, 17, v241
        v_mul_u32_u24 v242, 14, v241
        v_sub_u32 v242, v240, v242
        v_mul_u32_u24 v241, 3456, v241
        v_lshl_add_u32 v241, v242, 7, v241
        s_and_b32 s63, s5, 1
        s_mul_i32 s63, s63, 1792
        v_add_u32 v241, s63, v241
        ; x: line id -> c = id / 512, row = id % 512 (5120 lines)
        v_and_b32 v243, 511, v240
        v_lshrrev_b32 v244, 9, v240
        v_mul_u32_u24 v243, 1280, v243
        v_lshl_add_u32 v243, v244, 7, v243
        v_cmp_gt_u32 vcc, 10, v244
        s_lshr_b32 s63, s5, 1
        s_mul_i32 s63, s63, {512 * 1280}
        v_add_u32 v243, s63, v243
        v_cndmask_b32 v243, -1, v243, vcc
        """)
        srd(56, 16, 17, None, 2048 * 1280)
    srd(48, 16, 17, "s9", 128 * 1280)
    srd(52, 32, 33, None, 640 * 3456)
    vm = VM(a)

    def dma(ks):
        slot = ks % 5
        G = []
        for k, (vo, srdn, so, lo) in enumerate((("v8", SRDA, "s12", 0), ("v9", SRDA, "s12", 1024), ("v10", SRDB, "s13", 40960), ("v11", SRDB, "s13", 40960 + 1024))):
            g = [("s", f"s_add_u32 m0, s11, {slot * 8192 + lo}"), ("v", f"buffer_load_dwordx4 {vo}, {srdn}, {so} offen lds", f"st{ks}")]
            if k == 1:
                g.append(("s", "s_add_u32 s12, s12, 64"))
                if "rot" in OPT:
                    g.append(("s", "s_cmp_eq_u32 s12, 1280\ns_cselect_b32 s12, 0, s12"))
            if k == 3:
                g.append(("s", f"s_add_u32 s13, s13, {32 * 3456}"))
                if "rot" in OPT:
                    g.append(("s", f"s_cmp_eq_u32 s13, {640 * 3456}\ns_cselect_b32 s13, 0, s13"))
            G.append(g)
        return G

    def emit_group(g):
        for it in g:
            if it[0] == "v":
                vm.issue(it[2], it[1])
            else:
                a(it[1])

    stamp(7)
    for ks in range(5):
        for g in dma(ks):
            emit_group(g)
        if ks == 0 and "touch" in OPT:
            vm.issue("t", f"buffer_load_dword v245, v243, {SRDC}, 0 offen")
            vm.issue("t", f"buffer_load_dword v246, v241, {SRDB}, 0 offen")
            a(f"v_add_u32 v241, {512 * 3456}, v241")
            vm.issue("t", f"buffer_load_dword v247, v241, {SRDB}, 0 offen")
    stamp(8)
    a(f"""
    s_mov_b32 s44, s42
    s_mov_b32 s45, s43
    s_lshr_b32 s14, {WAVE}, 1
    s_and_b32 s15, {WAVE}, 1
    s_lshl_b32 s10, s14, 12
    v_lshlrev_b32 v13, 6, v12
    v_add_u32 v13, s10, v13
    v_bfe_u32 v4, v1, 3, 1
    v_lshlrev_b32 v4, 1, v4
    v_xor_b32 v4, v4, v5
    v_lshl_add_u32 v13, v4, 4, v13
    v_bfe_u32 v4, v1, 2, 2
    v_lshl_add_u32 v6, v5, 3, v4
    v_lshlrev_b32 v14, 8, v6
    v_and_b32 v6, 1, v5
    v_lshl_or_b32 v6, v6, 2, v4
    s_lshl_b32 s10, s15, 2
    v_xor_b32 v6, s10, v6
    v_lshl_add_u32 v14, v6, 5, v14
    v_lshl_add_u32 v14, v7, 3, v14
    v_add_u32 v14, 40960, v14
    v_xor_b32 v15, 32, v14
    v_xor_b32 v16, 64, v14
    v_xor_b32 v17, 0x60, v14
    """)
    ACC = 64
    WF, XF = [128, 160], [144, 176]

    def reads(ks):
        s, slot = ks & 1, ks % 5
        L = []
        for i in range(4):
            L.append(f"ds_read_b128 {vr(XF[s] + 4 * i, 4)}, v13 offset:{slot * 8192 + 1024 * i}")
            L.append(f"ds_read_b64_tr_b16 {vr(WF[s] + 4 * i, 2)}, v{14 + i} offset:{slot * 8192}")
            L.append(f"ds_read_b64_tr_b16 {vr(WF[s] + 4 * i + 2, 2)}, v{14 + i} offset:{slot * 8192 + 1024}")
        return L

    vm.wait("st0")
    a("s_barrier")
    stamp(1)
    for l in reads(0):
        a(l)
    for ks in range(20):
        s = ks & 1
        if ks < 19:
            vm.wait(f"st{ks + 1}", extra="lgkmcnt(0)")
            a("s_barrier")
        else:
            a("s_waitcnt lgkmcnt(0)")
        if ks in (5, 10, 15):
            stamp(8 + ks // 5)
        aux = [[("s", l)] for l in reads(ks + 1)] if ks < 19 else []
        if ks + 5 < 20:
            aux += dma(ks + 5)
        if ks == 17:
            aux.append([("s", f"s_mul_i32 s10, {WAVE}, 14"), ("s", "v_min_u32 v18, 13, v1"), ("s", "v_add_u32 v18, s10, v18"),
                        ("s", "v_min_u32 v18, 53, v18"), ("s", "v_lshlrev_b32 v18, 2, v18"), ("s", f"v_add_u32 v18, {WFLAG}, v18")])
        if ks == 19:
            aux.append([("v", f"buffer_load_dword v19, v18, {WSRD}, 0 offen sc1", "wfl")])
            aux.append([("v", f"global_load_dword v20, v3, {DBG} sc1", "wfl")])
        for ft in range(4):
            for tt in range(4):
                d = vr(ACC + 16 * ft + 4 * tt, 4)
                a(f"v_mfma_f32_16x16x32_bf16 {d}, {vr(WF[s] + 4 * ft, 4)}, {vr(XF[s] + 4 * tt, 4)}, {'0' if ks == 0 else d}")
                if aux:
                    emit_group(aux.pop(0))
        assert not aux
    stamp(2)
    a(f"""
    s_lshl_b32 s7, s7, 1
    s_add_u32 s7, s7, s14
    s_lshl_b32 s8, s8, 1
    s_add_u32 s8, s8, s15
    s_mul_i32 s9, s7, {54 * 4096}
    s_lshl_b32 s10, s8, 13
    s_add_u32 s9, s9, s10
    s_add_u32 s9, s9, {HF}
    s_add_u32 s10, s9, 4096
    s_lshl_b32 s7, s7, 7
    s_lshl_b32 s12, s8, 2
    s_add_u32 s60, s7, s12
    s_mov_b32 s61, s8
    v_lshlrev_b32 v21, 4, v1
    s_barrier
    s_cmp_ge_u32 s8, 27
    s_cbranch_scc1 L_g1_nostore
    """)
    t = 128
    for m in range(2):
        for tt in range(4):
            for h in range(2):
                r = ACC + 16 * (2 * m + h) + 4 * tt
                a(f"v_cvt_pk_bf16_f32 v{t + 2 * h}, v{r}, v{r + 1}\nv_cvt_pk_bf16_f32 v{t + 2 * h + 1}, v{r + 2}, v{r + 3}")
            for k in range(4):
                a(f"v_pk_max_i16 v{t + k}, v{t + k}, 0")
            a(f"buffer_store_dwordx4 {vr(t, 4)}, v21, {WSRD}, s{9 + m} offen offset:{1024 * tt} sc1")
            t += 4
    if "g1only" in OPT:
        a("L_g1_nostore:\ns_waitcnt vmcnt(0)")
        stamp(3)
        finish()
    else:
        a("s_waitcnt vmcnt(8)\ns_branch L_gemm2\nL_g1_nostore:\ns_waitcnt vmcnt(0)\ns_branch L_gemm2")
    a(f"""
    L_tru_to_gemm2:
    s_mul_i32 s10, {WAVE}, 14
    v_min_u32 v18, 13, v1
    v_add_u32 v18, s10, v18
    v_min_u32 v18, 53, v18
    v_lshlrev_b32 v18, 2, v18
    v_add_u32 v18, {WFLAG}, v18
    buffer_load_dword v19, v18, {WSRD}, 0 offen sc1
    global_load_dword v20, v3, {DBG} sc1
    s_mov_b32 s61, 99
    s_mov_b32 s60, 0
    s_barrier
    s_waitcnt vmcnt(0)
    """)


def gemm2():
    a("L_gemm2:")
    poll("v18", "v19", "v20", "v3", first_issued=True)
    a(f"""
    s_lshr_b32 s7, s5, 1
    s_lshl_b32 s7, s7, 3
    s_lshr_b32 s8, s6, 2
    s_add_u32 s7, s7, s8
    s_and_b32 s8, s5, 1
    s_lshl_b32 s8, s8, 2
    s_and_b32 s9, s6, 3
    s_add_u32 s8, s8, s9
    s_mul_i32 s9, s8, 5120
    v_lshl_add_u32 v2, v1, 4, s9
    v_add_u32 v4, 4096, v2
    s_mul_i32 s12, {WAVE}, {14 * 40960}
    s_add_u32 s12, s12, {W2F}
    s_mul_i32 s13, s7, {54 * 4096}
    s_add_u32 s13, s13, {HF}
    s_add_u32 s15, s13, {53 * 4096}
    s_mul_i32 s9, {WAVE}, {14 * 4096}
    s_add_u32 s13, s13, s9
    """)
    vm = VM(a)
    vm.q = ["hst"]
    ACC, WR, HR = 8, 88, 208
    NW, NH = 6, 3

    def wload(i, dt):
        r = WR + 20 * (i % NW) + 4 * dt
        vm.issue(f"w{i}", f"buffer_load_dwordx4 {vr(r, 4)}, {'v4' if dt == 4 else 'v2'}, {WSRD}, s12 offen offset:{1024 * (dt & 3)} sc1")
        if dt == 4:
            a(f"s_add_u32 s12, s12, 40960\ns_min_u32 s12, s12, {W2F + 53 * 40960}")

    HV = ["v0", "v5", "v6", "v7"]

    def hload(i, k):
        r = HR + 16 * (i % NH) + 4 * k
        vm.issue(f"h{i}", f"buffer_load_dwordx4 {vr(r, 4)}, {HV[k]}, {WSRD}, s13 offen sc1")
        if k == 3:
            a("s_add_u32 s13, s13, 4096\ns_min_u32 s13, s13, s15")

    for i in range(NW):
        for dt in range(5):
            wload(i, dt)
    vm.wait("hst")
    lab = a.newlabel("Lnf")
    a(f"s_cmp_ge_u32 s61, 27\ns_cbranch_scc1 {lab}")
    flag_store("s60", "v18", "v3")
    a(f"{lab}:")
    stamp(3)
    a(f"""
    s_mul_i32 s10, {WAVE}, 7
    v_min_u32 v18, 6, v1
    v_add_u32 v18, s10, v18
    v_min_u32 v18, 26, v18
    v_lshlrev_b32 v18, 2, v18
    s_lshl_b32 s10, s7, 7
    v_add_u32 v18, s10, v18
    """)
    for k in range(4):
        a(f"s_add_u32 s10, {WAVE}, {k}\ns_and_b32 s10, s10, 3\ns_lshl_b32 s10, s10, 10\nv_lshl_add_u32 {HV[k]}, v1, 4, s10")
    poll("v18", "v19")
    vm.q = []
    stamp(4)
    for i in range(NH):
        for k in range(4):
            hload(i, k)
    for i in range(14):
        if i == 12:
            a(f"s_cmp_eq_u32 {WAVE}, 3\ns_cbranch_scc1 L_g2_done")
        vm.wait(f"h{i}", f"w{i}")
        for k in range(4):
            for dt in range(5):
                d = vr(ACC + 20 * k + 4 * dt, 4)
                a(f"v_mfma_f32_16x16x32_bf16 {d}, {vr(WR + 20 * (i % NW) + 4 * dt, 4)}, {vr(HR + 16 * (i % NH) + 4 * k, 4)}, {'0' if i == 0 else d}")
                if k == 3 and i + NW < 14:
                    wload(i + NW, dt)
            if i + NH < 14:
                hload(i + NH, k)
        if i == 9:
            FR = WR + 20 * (9 % NW)
            a(f"""
            s_lshl_b32 s10, s8, 2
            s_lshr_b32 s11, s7, 3
            s_add_u32 s10, s10, s11
            s_lshl_b32 s10, s10, 7
            s_add_u32 s10, s10, {AFLAG2}
            v_lshl_add_u32 v{FR}, v1, 2, s10
            s_lshl_b32 s10, s7, 2
            s_add_u32 s10, s10, {WAVE}
            s_lshl_b32 s10, s10, 2
            s_add_u32 s10, s10, {GFLAG2}
            v_mov_b32 v{FR + 1}, s10
            v_cmp_gt_u32 vcc, 20, v1
            v_cndmask_b32 v{FR}, v{FR + 1}, v{FR}, vcc
            """)
            vm.issue("afl", f"buffer_load_dword v{FR + 1}, v{FR}, {WSRD}, 0 offen sc1")
    a("L_g2_done:\ns_waitcnt vmcnt(0)")
    stamp(5)
    FR = WR + 20 * (9 % NW)
    poll(f"v{FR}", f"v{FR + 1}", first_issued=True)
    X = HR
    a(f"""
    v_and_b32 v{X}, 15, v1
    v_lshrrev_b32 v{X + 1}, 4, v1
    v_lshlrev_b32 v{X + 2}, 14, v{X + 1}
    v_lshl_add_u32 v{X + 2}, v{X}, 4, v{X + 2}
    s_mul_i32 s10, s8, {20 * 16384}
    s_lshl_b32 s11, s7, 9
    s_add_u32 s10, s10, s11
    s_lshr_b32 s11, {WAVE}, 1
    s_lshl_b32 s11, s11, 8
    s_add_u32 s10, s10, s11
    s_and_b32 s11, {WAVE}, 1
    s_lshl_b32 s11, s11, 3
    s_add_u32 s10, s10, s11
    s_add_u32 s10, s10, {AG}
    """)
    AR = X + 8
    for dt in range(5):
        a(f"buffer_load_dwordx2 {vr(AR + 2 * dt, 2)}, v{X + 2}, {WSRD}, s10 offen sc1")
        if dt < 4:
            a("s_add_u32 s10, s10, 65536")
    a(f"""
    s_lshl_b32 s10, s7, 8
    s_lshl_b32 s11, {WAVE}, 6
    s_add_u32 s10, s10, s11
    s_add_u32 s10, s10, {G_OFF}
    v_lshlrev_b32 v{X + 3}, 2, v{X}
    buffer_load_dword v{X + 4}, v{X + 3}, {WSRD}, s10 offen sc1
    s_mul_i32 s10, {WAVE}, 15360
    v_lshl_add_u32 v{X + 5}, v1, 4, s10
    """)
    for k in range(1, 4):
        for dt in range(5):
            a(f"ds_write_b128 v{X + 5}, {vr(ACC + 20 * k + 4 * dt, 4)} offset:{5120 * (k - 1) + 1024 * dt}")
    for k in range(1, 4):
        a(f"s_sub_u32 s10, {WAVE}, {k}\ns_and_b32 s10, s10, 3\ns_mul_i32 s10, s10, 15360\nv_lshl_add_u32 v{X + 19 + k}, v1, 4, s10")
    a("s_waitcnt lgkmcnt(0)\ns_barrier")
    PR = WR
    for k in range(1, 4):
        for dt in range(5):
            a(f"ds_read_b128 {vr(PR + 20 * (k - 1) + 4 * dt, 4)}, v{X + 19 + k} offset:{5120 * (k - 1) + 1024 * dt}")
    GA = ACC + 20
    a(f"""
    s_waitcnt vmcnt(0)
    v_sub_f32 v{X + 6}, 1.0, v{X + 4}
    v_cvt_pk_bf16_f32 v{X + 6}, v{X + 6}, v{X + 6}
    v_and_b32 v{X + 6}, 0xffff0000, v{X + 6}
    """)
    for i in range(10):
        a(f"v_lshlrev_b32 v{GA + 2 * i}, 16, v{AR + i}\nv_and_b32 v{GA + 2 * i + 1}, 0xffff0000, v{AR + i}")
    for i in range(20):
        a(f"v_mul_f32 v{GA + i}, v{X + 4}, v{GA + i}")
    OP = 176
    a(f"""
    s_mul_i32 s10, {WAVE}, {16 * OP}
    s_add_u32 s10, s10, 61440
    v_mul_u32_u24 v{X + 7}, {OP}, v{X}
    v_lshl_add_u32 v{X + 7}, v{X + 1}, 3, v{X + 7}
    v_add_u32 v{X + 7}, s10, v{X + 7}
    s_lshl_b32 s11, s7, 6
    s_lshl_b32 s12, {WAVE}, 4
    s_add_u32 s11, s11, s12
    s_mul_i32 s11, s11, 1280
    s_mul_i32 s12, s8, 160
    s_add_u32 s11, s11, s12
    """)
    srd(48, 38, 39, None, 2048 * 1280)
    for n in range(3):
        q, row, c, la, ga = X + 24, X + 25, X + 26, X + 28 + n, X + 32 + n
        a(f"""
        v_add_u32 v{q}, {64 * n}, v1
        v_mul_u32_u24 v{row}, 205, v{q}
        v_lshrrev_b32 v{row}, 11, v{row}
        v_mul_u32_u24 v{c}, 10, v{row}
        v_sub_u32 v{c}, v{q}, v{c}
        v_lshlrev_b32 v{c}, 4, v{c}
        v_mul_u32_u24 v{la}, {OP}, v{row}
        v_add3_u32 v{la}, v{la}, v{c}, s10
        v_mul_u32_u24 v{ga}, 1280, v{row}
        v_add_u32 v{ga}, v{ga}, v{c}
        """)
    for k in range(3):
        a(f"s_waitcnt lgkmcnt({10 - 5 * k})")
        for i in range(10):
            a(f"v_pk_add_f32 {vr(ACC + 2 * i, 2)}, {vr(ACC + 2 * i, 2)}, {vr(PR + 20 * k + 2 * i, 2)}")
    for i in range(20):
        a(f"v_fma_f32 v{GA + i}, v{X + 6}, v{ACC + i}, v{GA + i}")
    for dt in range(5):
        a(f"v_cvt_pk_bf16_f32 v{AR + 2 * dt}, v{GA + 4 * dt}, v{GA + 4 * dt + 1}\nv_cvt_pk_bf16_f32 v{AR + 2 * dt + 1}, v{GA + 4 * dt + 2}, v{GA + 4 * dt + 3}")
        a(f"ds_write_b64 v{X + 7}, {vr(AR + 2 * dt, 2)} offset:{32 * dt}")
    for n in range(3):
        a(f"ds_read_b128 {vr(PR + 4 * n, 4)}, v{X + 28 + n}")
    for n in range(3):
        a(f"s_waitcnt lgkmcnt({2 - n})")
        if n == 2:
            a("s_mov_b32 exec_hi, 0")
        a(f"buffer_store_dwordx4 {vr(PR + 4 * n, 4)}, v{X + 32 + n}, {SRDA}, s11 offen")
    if DIAG:
        a("s_mov_b64 exec, -1\ns_waitcnt vmcnt(0)")
    stamp(6)
    finish()


gemm1()
gemm2()

if DIAG:
    a(f"""
    L_dump:
    s_lshl_b32 s10, s2, 8
    s_lshl_b32 s11, {WAVE}, 6
    s_add_u32 s10, s10, s11
    s_add_u32 s10, s10, {STAMP}
    v_mov_b32 v3, 0
    s_mov_b64 exec, 1
    """)
    for i in range(16):
        a(f"v_mov_b32 v{8 + i}, s{70 + 2 * i}")
    for i in range(4):
        a(f"buffer_store_dwordx4 v[{8 + 4 * i}:{11 + 4 * i}], v3, {WSRD}, s10 offen offset:{16 * i}")
    a("s_endpgm")

a("L_code_end:")
body = a.render()
head = open(f"cdna_kernels/{NAME}.s.ref").read().split("; Override launch")[0]
text = head + f"""; Generated by the author's own generator script (dev/gen.py); single fused kernel, roles by workgroup id.
; @launch grid=(512,1,1) block=(256,1,1) lds=81920
.amdgcn_target "amdgcn-amd-amdhsa--gfx950"
.text
.globl {NAME}_kernel
.p2align 8
.type {NAME}_kernel,@function
{NAME}_kernel:
{body}.section .rodata,"a"
.p2align 6
.amdhsa_kernel {NAME}_kernel
  .amdhsa_next_free_vgpr 256
  .amdhsa_next_free_sgpr 102
  .amdhsa_accum_offset 256
  .amdhsa_group_segment_fixed_size 0
  .amdhsa_kernarg_size 112
  .amdhsa_user_sgpr_count 2
  .amdhsa_user_sgpr_kernarg_segment_ptr 1
  .amdhsa_system_sgpr_workgroup_id_x 1
.end_amdhsa_kernel
"""
open(OUT, "w").write(text)
print("wrote", OUT, "lines", text.count("\n"), "auto nops", a.nops)
```

```python
import sys, struct
from asmlib import Asm, VM

NAME = "gated_mix__ssm_conv_s4d__dense_activation_relu__prompt"
DIAG = "--diag" in sys.argv
OPT = set(x[2:] for x in sys.argv if x.startswith("--"))
OUT = [x for x in sys.argv[1:] if not x.startswith("--")]
OUT = OUT[0] if OUT else f"cdna_kernels/{NAME}.s"

HFLAG, UFLAG, G_OFF, AFLAG, WFLAG, GFLAG = 0x0, 0x1000, 0x2000, 0x4000, 0x5000, 0x5800
UT = 0x10000
W2F = UT + 64 * 40960
HF = W2F + 54 * 40960
AG = HF + 32 * 54 * 4096
STAMP = AG + 160 * 16384
WS_END = STAMP + 512 * 4 * 64
SPIN_LIMIT = 400000
OOB = 0x40000000

XB, WB, CB = 0, 49152, 98304
NWS = 6
L_U, L_KE, L_KO, L_T, L_KC = 0, 4608, 8768, 4608, 13312
TP = 544


def f32(x):
    return "0x%08x" % struct.unpack("<I", struct.pack("<f", x))[0]


def vr(b, n=1, f="v"):
    return f"{f}{b}" if n == 1 else f"{f}[{b}:{b + n - 1}]"


a = Asm()
LOGA, AIM, CR, CI, LDT, DSK = "s[18:19]", "s[20:21]", "s[22:23]", "s[24:25]", "s[26:27]", "s[28:29]"
DBG, WSRD = "s[40:41]", "s[44:47]"
SRDA, SRDB, SRDC = "s[48:51]", "s[52:55]", "s[56:59]"
WAVE, TAG, XCD, J = "s3", "s4", "s5", "s6"
RB, CT = "s7", "s8"
W2K, WT, WF_ = "s11", "s14", "s15"
XS, WSS = 16, 26
HFO, CHUNK, W4K, D0, UTO, UFO = "s60", "s61", "s62", "s63", "s64", "s65"
CW, UPTR, CLB, PFO = "s67", "s[68:69]", "s70", "s71"
TB, CS = "s72", "s73"
ROTC, ROTT = (0, 0) if "norot2" in OPT else (7, 4)
WCL = "s61"
WSO, HSO, HCL = "s12", "s13", "s9"
LANE, ZERO = "v1", "v3"
VXS, VWS, VXR, VWR = [236, 237, 238, 239], [240, 241, 242, 243], [244, 245], [246, 247, 248, 249]
L16, VUT, VTAG = "v250", "v251", "v252"
L15, G4 = "v254", "v255"


def stamp(i):
    if DIAG:
        a(f"s_memrealtime s[{74 + 2 * i}:{75 + 2 * i}]\ns_waitcnt lgkmcnt(0)")


def srd(dst, lo, hi, off_s, size):
    if off_s is None:
        a(f"s_mov_b32 s{dst}, s{lo}\ns_mov_b32 s{dst + 1}, s{hi}")
    else:
        a(f"s_add_u32 s{dst}, s{lo}, {off_s}\ns_addc_u32 s{dst + 1}, s{hi}, 0")
    a(f"s_mov_b32 s{dst + 2}, {size}\ns_mov_b32 s{dst + 3}, 0x20000")


def poll(voff, vf, first_issued=False, nap=4):
    lp, chk, done = (a.newlabel(x) for x in ("Lp", "Lc", "Ld"))
    if first_issued:
        a(f"v_cmp_ne_u32 vcc, {TAG}, {vf}\ns_cmp_eq_u64 vcc, 0\ns_cbranch_scc1 {done}")
    a(f"""
    s_mov_b32 s66, 0
    {lp}:
    buffer_load_dword {vf}, {voff}, {WSRD}, 0 offen sc1
    s_waitcnt vmcnt(0)
    v_cmp_ne_u32 vcc, {TAG}, {vf}
    s_cmp_eq_u64 vcc, 0
    s_cbranch_scc1 {done}
    s_sleep {nap}
    s_add_u32 s66, s66, 1
    s_cmp_lt_u32 s66, {SPIN_LIMIT}
    s_cbranch_scc1 {lp}
    {done}:
    """)


def get_tag():
    lp, done = a.newlabel("Lt"), a.newlabel("Ld")
    a(f"""
    v_readfirstlane_b32 {TAG}, {VTAG}
    s_cmp_lg_u32 {TAG}, 0
    s_cbranch_scc1 {done}
    s_mov_b32 s66, 0
    {lp}:
    global_load_dword {VTAG}, {ZERO}, {DBG} sc1
    s_waitcnt vmcnt(0)
    v_readfirstlane_b32 {TAG}, {VTAG}
    s_cmp_lg_u32 {TAG}, 0
    s_cbranch_scc1 {done}
    s_sleep 2
    s_add_u32 s66, s66, 1
    s_cmp_lt_u32 s66, {SPIN_LIMIT}
    s_cbranch_scc1 {lp}
    {done}:
    """)


def flag_store(vm, soff, voff):
    a("s_mov_b64 exec, 1")
    vm.issue("fl", f"buffer_store_dword {VTAG}, {voff}, {WSRD}, {soff} offen sc1")
    a("s_mov_b64 exec, -1")


def dmax(D, ms=range(4)):
    return [(f"s_add_u32 m0, {W4K}, {XB + (D % 3) * 16384 + 1024 * m}",
             f"buffer_load_dwordx4 v{VXS[m]}, {SRDA}, s{XS + D} offen lds", f"x{D}") for m in ms]


def dmaw(ks):
    return [(f"s_add_u32 m0, {W2K}, {WB + (ks % NWS) * 8192 + 1024 * m}",
             f"buffer_load_dwordx4 v{VWS[2 * (ks & 1) + m]}, {SRDB}, s{WSS + (ks >> 1)} offen lds", f"w{ks}") for m in range(2)]


def emit_dma(vm, gs):
    for g in gs:
        a(g[0])
        vm.issue(g[2], g[1])


def soff(D):
    a(f"s_add_u32 s{XS + D}, s{XS + D - 1}, 128\ns_add_u32 s{WSS + D}, s{WSS + D - 1}, {64 * 3456}")
    a(f"s_cmp_eq_u32 s{XS + D}, 1280\ns_cselect_b32 s{XS + D}, 0, s{XS + D}\ns_cselect_b32 s{WSS + D}, 0, s{WSS + D}")


def g1_setup_a():
    a(f"""
    s_mul_i32 {RB}, {J}, 37
    s_lshr_b32 {RB}, {RB}, 8
    s_mul_i32 {CT}, {RB}, 7
    s_sub_u32 {CT}, {J}, {CT}
    s_lshr_b32 s9, {XCD}, 1
    s_lshl_b32 s9, s9, 2
    s_add_u32 {RB}, {RB}, s9
    s_and_b32 s9, {XCD}, 1
    s_mul_i32 s9, s9, 7
    s_add_u32 {CT}, {CT}, s9
    v_lshrrev_b32 v4, 3, {LANE}
    s_lshl_b32 s10, {WAVE}, 5
    v_add_u32 v4, s10, v4
    v_mul_u32_u24 v4, 1280, v4
    v_and_b32 v6, 7, {LANE}
    v_xor_b32 v6, v6, {G4}
    v_lshl_add_u32 v{VXS[0]}, v6, 4, v4
    v_xor_b32 v{VXS[1]}, 64, v{VXS[0]}
    v_add_u32 v{VXS[1]}, 10240, v{VXS[1]}
    v_add_u32 v{VXS[2]}, 20480, v{VXS[0]}
    v_add_u32 v{VXS[3]}, 20480, v{VXS[1]}
    s_lshl_b32 s10, {WAVE}, 3
    v_add_u32 v4, s10, {G4}
    v_mul_u32_u24 v4, 3456, v4
    s_and_b32 {WF_}, {WAVE}, 1
    s_lshl_b32 s10, {WF_}, 2
    v_or_b32 v6, s10, {G4}
    v_lshlrev_b32 v6, 1, v6
    v_xor_b32 v6, v6, {L15}
    v_lshl_add_u32 v{VWS[0]}, v6, 4, v4
    s_lshl_b32 s10, {CT}, 8
    v_add_u32 v{VWS[0]}, s10, v{VWS[0]}
    v_add_u32 v{VWS[1]}, 13824, v{VWS[0]}
    v_add_u32 v{VWS[2]}, {32 * 3456}, v{VWS[0]}
    v_add_u32 v{VWS[3]}, {32 * 3456}, v{VWS[1]}
    s_lshl_b32 {W2K}, {WAVE}, 11
    s_lshl_b32 {W4K}, {WAVE}, 12
    s_mul_i32 s12, {RB}, 3
    s_add_u32 s12, s12, {CT}
    s_mul_i32 s13, s12, 205
    s_lshr_b32 s13, s13, 11
    s_mul_i32 s13, s13, 10
    s_sub_u32 {D0}, s12, s13
    s_mul_i32 s9, {RB}, {128 * 1280}
    """)


def g1_setup_b():
    srd(48, 16, 17, "s9", 128 * 1280)
    srd(52, 32, 33, None, 640 * 3456)
    a(f"""
    s_cmp_lt_u32 {J}, 28
    s_cselect_b32 s50, s50, 0
    s_cselect_b32 s54, s54, 0
    s_cselect_b32 {CT}, {CT}, 99
    s_mov_b32 s68, s16
    s_mov_b32 s69, s17
    s_mov_b32 s44, s42
    s_mov_b32 s45, s43
    """)


def g1_setup_c():
    a(f"""
    s_lshr_b32 {WT}, {WAVE}, 1
    s_lshl_b32 s10, {WT}, 13
    v_lshlrev_b32 v{VXR[0]}, 7, {L15}
    v_add_u32 v{VXR[0]}, s10, v{VXR[0]}
    v_bfe_u32 v4, {LANE}, 1, 3
    v_xor_b32 v4, v4, {G4}
    v_lshl_add_u32 v{VXR[0]}, v4, 4, v{VXR[0]}
    v_xor_b32 v{VXR[1]}, 64, v{VXR[0]}
    v_bfe_u32 v4, {LANE}, 2, 2
    v_lshl_add_u32 v6, {G4}, 3, v4
    v_lshlrev_b32 v{VWR[0]}, 8, v6
    v_and_b32 v6, 1, {G4}
    v_lshl_or_b32 v6, v6, 2, v4
    s_lshl_b32 s10, {WF_}, 2
    v_xor_b32 v6, s10, v6
    v_lshl_add_u32 v{VWR[0]}, v6, 5, v{VWR[0]}
    v_and_b32 v7, 3, {LANE}
    v_lshl_add_u32 v{VWR[0]}, v7, 3, v{VWR[0]}
    v_add_u32 v{VWR[0]}, {WB}, v{VWR[0]}
    v_xor_b32 v{VWR[1]}, 32, v{VWR[0]}
    v_xor_b32 v{VWR[2]}, 64, v{VWR[0]}
    v_xor_b32 v{VWR[3]}, 0x60, v{VWR[0]}
    v_lshl_add_u32 v6, v7, 3, v4
    v_lshlrev_b32 v253, 7, v6
    v_add_u32 v253, {W4K}, v253
    v_bfe_u32 v6, v6, 1, 3
    v_lshrrev_b32 v7, 5, {LANE}
    v_xor_b32 v6, v6, v7
    v_lshl_add_u32 v253, v6, 4, v253
    v_and_b32 v6, 1, {G4}
    v_lshl_add_u32 v253, v6, 3, v253
    v_lshlrev_b32 {L16}, 4, {LANE}
    s_lshl_b32 s10, {RB}, 2
    s_add_u32 s10, s10, {WAVE}
    s_mul_i32 {UTO}, s10, 40960
    s_lshl_b32 {UFO}, {D0}, 12
    s_add_u32 {UTO}, {UTO}, {UFO}
    s_add_u32 {UTO}, {UTO}, {UT}
    s_lshl_b32 {UFO}, {D0}, 8
    s_lshl_b32 s10, s10, 2
    s_add_u32 {UFO}, {UFO}, s10
    s_add_u32 {UFO}, {UFO}, {UFLAG}
    s_cmp_lt_u32 {CT}, 10
    s_cselect_b32 s10, 0, {OOB}
    v_add_u32 {VUT}, s10, {L16}
    """)


def ut_step(vm, t):
    vm.wait("x0")
    vm.issue("tag", f"global_load_dword {VTAG}, {ZERO}, {DBG} sc1")
    a(f"v_mov_b32 v{t + 16}, v253\nv_xor_b32 v{t + 17}, 32, v253\nv_xor_b32 v{t + 18}, 64, v253\nv_xor_b32 v{t + 19}, 0x60, v253")
    for dt in range(4):
        a(f"ds_read_b64_tr_b16 {vr(t + 4 * dt, 2)}, v{t + 16 + dt}\nds_read_b64_tr_b16 {vr(t + 2 + 4 * dt, 2)}, v{t + 16 + (dt ^ 1)} offset:512")
    for dt in range(4):
        a(f"s_waitcnt lgkmcnt({6 - 2 * dt})")
        vm.issue("ut", f"buffer_store_dwordx4 {vr(t + 4 * dt, 4)}, {VUT}, {WSRD}, {UTO} offen offset:{1024 * dt} sc1")


def ut_flag(vm):
    vm.wait("ut")
    get_tag()
    flag_store(vm, UFO, VUT)


stamp(0)
a(f"""
s_cmp_ge_u32 s2, 256
s_cbranch_scc1 L_end
s_load_dwordx16 s[16:31], s[0:1], 0
s_load_dwordx8 s[32:39], s[0:1], 64
s_load_dwordx4 s[40:43], s[0:1], 96
v_lshrrev_b32 v2, 6, v0
v_and_b32 {LANE}, 63, v0
v_mov_b32 {ZERO}, 0
v_readfirstlane_b32 {WAVE}, v2
s_and_b32 {XCD}, s2, 7
s_lshr_b32 {J}, s2, 3
s_mov_b32 s46, {WS_END}
s_mov_b32 s47, 0x20000
v_and_b32 {L15}, 15, v0
v_bfe_u32 {G4}, v0, 4, 2
""")
g1_setup_a()
a(f"""
s_sub_u32 s10, {J}, 16
s_cmp_lt_u32 s10, 12
s_cbranch_scc1 L_typeB
""")


def bf16_round_int(l):
    if l < 256:
        return l
    e = l.bit_length() - 8
    q, r = l >> e, l & ((1 << e) - 1)
    h = 1 << (e - 1)
    if r > h or (r == h and (q & 1)):
        q += 1
    return q << e


def kgen(vm):
    L2E_HI = struct.unpack("<f", struct.pack("<f", 1.4426950408889634))[0]
    L2E_LO = 1.4426950408889634 - L2E_HI
    a(f"""
    s_sub_u32 s10, s2, 96
    s_cmp_lt_u32 {J}, 16
    s_cselect_b32 {CW}, s2, s10
    s_lshl_b32 s12, {CW}, 2
    s_add_u32 s12, s12, {WAVE}
    s_lshl_b32 {CLB}, {WAVE}, 14
    s_add_u32 {CLB}, {CLB}, {CB}
    s_lshl_b32 s10, s12, 8
    v_lshl_add_u32 v4, {LANE}, 2, s10
    s_lshl_b32 s10, s12, 1
    v_mov_b32 v5, s10
    s_waitcnt lgkmcnt(0)
    """)
    vm.issue("p0", f"global_load_ushort v14, v5, {LDT}")
    vm.issue("p0", f"global_load_dword v10, v4, {LOGA}")
    vm.issue("p1", f"global_load_dword v11, v4, {AIM}")
    vm.issue("p1", f"global_load_dword v12, v4, {CR}")
    vm.issue("p1", f"global_load_dword v13, v4, {CI}")
    vm.issue("p1", f"global_load_ushort v15, v5, {DSK}")
    g1_setup_b()
    a(f"s_lshl_b32 s{XS}, {D0}, 7\ns_mul_i32 s{WSS}, {D0}, {64 * 3456}")
    stamp(7)
    emit_dma(vm, dmax(0) + dmaw(0) + dmaw(1))
    soff(1)
    emit_dma(vm, dmax(1))
    for D in range(2, 10):
        soff(D)
    g1_setup_c()
    a(f"""
    v_mov_b32 v6, 0
    v_mov_b32 v7, 0
    v_lshl_add_u32 v8, {LANE}, 3, {CLB}
    ds_write_b64 v8, v[6:7] offset:{L_U}
    v_add_u32 v16, {L_T}, v8
    v_mul_u32_u24 v17, {TP}, {L15}
    v_lshl_add_u32 v17, {G4}, 4, v17
    v_add_u32 v17, {CLB}, v17
    s_mov_b32 s9, {f32(L2E_HI)}
    s_mov_b32 s12, {f32(L2E_LO)}
    s_mov_b32 s13, {f32(0.6931471805599453)}
    """)
    vm.wait("p0")
    stamp(8)
    a("v_lshlrev_b32 v20, 16, v14\nv_lshlrev_b32 v21, 16, v10\nv_and_b32 v22, 0xffff0000, v10")
    for i in range(3):
        a(f"v_mul_f32 v{24 + i}, s9, v{20 + i}")
    for i in range(3):
        a(f"v_fma_f32 v{28 + i}, v{20 + i}, s9, -v{24 + i}")
    for i in range(3):
        a(f"v_exp_f32 v{24 + i}, v{24 + i}")
    for i in range(3):
        a(f"v_fma_f32 v{28 + i}, v{20 + i}, s12, v{28 + i}")
    for i in range(3):
        a(f"v_mul_f32 v{28 + i}, s13, v{28 + i}")
    for i in range(3):
        a(f"v_fma_f32 v{24 + i}, v{24 + i}, v{28 + i}, v{24 + i}")
    a(f"""
    v_cvt_pk_bf16_f32 v20, v24, v24
    v_cvt_pk_bf16_f32 v21, v25, v26
    v_and_b32 v20, 0xffff0000, v20
    v_and_b32 v22, 0xffff0000, v21
    v_lshlrev_b32 v21, 16, v21
    v_mul_f32 v21, v21, v20
    v_mul_f32 v22, v22, v20
    v_mul_f32 v21, {f32(-1.4426950408889634)}, v21
    v_mul_f32 v22, {f32(-1.4426950408889634)}, v22
    """)
    vm.wait("p1")
    a(f"""
    v_lshlrev_b32 v23, 16, v11
    v_and_b32 v24, 0xffff0000, v11
    v_mul_f32 v23, v23, v20
    v_mul_f32 v24, v24, v20
    v_mul_f32 v23, 0.15915494, v23
    v_mul_f32 v24, 0.15915494, v24
    """)
    B = [40, 68]
    R_, Z8, G1, GC, T1, O1 = 0, 2, 4, 6, 8, 10
    P = lambda m, k: B[m] + 12 + 2 * (k - 1)
    a(f"""
    v_add_f32 v25, v20, v20
    v_lshlrev_b32 v26, 16, v12
    v_and_b32 v27, 0xffff0000, v12
    v_lshlrev_b32 v28, 16, v13
    v_and_b32 v29, 0xffff0000, v13
    v_mul_f32 v{B[0] + R_}, v26, v25
    v_mul_f32 v{B[1] + R_}, v27, v25
    v_mul_f32 v{B[0] + R_ + 1}, -v28, v25
    v_mul_f32 v{B[1] + R_ + 1}, -v29, v25
    """)
    for e, dst, conj in ((8, Z8, True), (1, None, False), (128, G1, False)):
        for m in range(2):
            if e == 1:
                a(f"v_exp_f32 v{30 + m}, v{21 + m}\nv_fract_f32 v{32 + m}, v{23 + m}")
            else:
                a(f"v_mul_f32 v{30 + m}, {f32(float(e))}, v{21 + m}\nv_mul_f32 v{32 + m}, {f32(float(e))}, v{23 + m}")
        if e != 1:
            for m in range(2):
                a(f"v_exp_f32 v{30 + m}, v{30 + m}\nv_fract_f32 v{32 + m}, v{32 + m}")
        for m in range(2):
            a(f"v_cos_f32 v{34 + m}, v{32 + m}\nv_sin_f32 v{36 + m}, v{32 + m}")
        for m in range(2):
            d = P(m, 1) if dst is None else B[m] + dst
            a(f"v_mul_f32 v{d}, v{30 + m}, v{34 + m}\nv_mul_f32 v{d + 1}, {'-' if conj else ''}v{30 + m}, v{36 + m}")
    wr = [0]

    def put(row, regs):
        t = 120 + 2 * (wr[0] & 3)
        wr[0] += 1
        for m in range(2):
            if regs is None:
                a(f"v_mov_b32 v{t + m}, 0x3f80")
            else:
                a(f"v_cvt_pk_bf16_f32 v{t + m}, v{regs[m]}, v{regs[m] + 1}")
        a(f"ds_write_b64 v16, {vr(t, 2)} offset:{row * TP}")

    def cm2(out, x, y):
        for m in range(2):
            a(f"v_pk_mul_f32 {vr(B[m] + T1, 2)}, {vr(x(m), 2)}, {vr(y(m), 2)} op_sel:[0,0] op_sel_hi:[1,0]")
        for m in range(2):
            a(f"v_pk_fma_f32 {vr(out(m), 2)}, {vr(x(m), 2)}, {vr(y(m), 2)}, {vr(B[m] + T1, 2)} op_sel:[1,1,0] op_sel_hi:[0,1,1] neg_lo:[1,0,0]")

    def rd(base):
        for ks in range(8):
            a(f"ds_read_b128 {vr(base + 4 * ks, 4)}, v17 offset:{L_T + 64 * ks}")

    off = lambda o: (lambda m: B[m] + o)
    pw = lambda k: (lambda m: P(m, k))
    RBF, QA = 128, [160, 192]
    D = [224, 228, 232]
    for x in range(16):
        put(x, [B[0] + R_, B[1] + R_])
        if x < 15:
            cm2(off(R_), off(R_), off(Z8))
        if 1 <= x <= 6:
            cm2(pw(x + 1), pw(x), pw(1))
    rd(RBF)
    stamp(9)
    ut_step(vm, 96)
    emit_dma(vm, dmaw(2) + dmaw(3))
    put(0, None)
    for k in range(1, 8):
        put(k, [P(0, k), P(1, k)])
    put(8, [B[0] + G1, B[1] + G1])
    cm2(off(GC), off(G1), off(G1))
    for k in range(1, 8):
        cm2(off(O1), off(G1), pw(k))
        put(8 + k, [B[0] + O1, B[1] + O1])
    rd(QA[0])
    emit_dma(vm, dmax(2))
    row = 0
    for i in range(2, 8):
        put(row, [B[0] + GC, B[1] + GC])
        row += 1
        for k in ((2, 4, 6) if i < 4 else (4,)):
            cm2(off(O1), off(GC), pw(k))
            put(row, [B[0] + O1, B[1] + O1])
            row += 1
        cm2(off(GC), off(GC), off(G1))
        if i == 2:
            a(f"""
            v_lshlrev_b32 v15, 16, v15
            v_cmp_eq_u32 vcc, 0, {LANE}
            v_mov_b32 v{D[0] + 1}, 0
            v_mov_b32 v{D[0] + 2}, 0
            v_mov_b32 v{D[0] + 3}, 0
            v_cndmask_b32 v{D[0]}, 0, v15, vcc
            s_waitcnt lgkmcnt(4)
            """)
            for ks in range(8):
                a(f"v_mfma_f32_16x16x32_bf16 {vr(D[0], 4)}, {vr(QA[0] + 4 * ks, 4)}, {vr(RBF + 4 * ks, 4)}, {vr(D[0], 4)}")
    rd(QA[1])
    emit_dma(vm, dmaw(4) + dmaw(5))
    for i in range(8, 17):
        put(i - 8, [B[0] + GC, B[1] + GC])
        if i < 16:
            cm2(off(GC), off(GC), off(G1))
        if i == 11:
            a("s_waitcnt lgkmcnt(4)")
            for ks in range(8):
                a(f"v_mfma_f32_16x16x32_bf16 {vr(D[1], 4)}, {vr(QA[1] + 4 * ks, 4)}, {vr(RBF + 4 * ks, 4)}, {'0' if ks == 0 else vr(D[1], 4)}")
    rd(QA[0])
    ut_flag(vm)
    a(f"""
    v_lshrrev_b32 v20, 1, {G4}
    v_and_b32 v21, 1, {G4}
    v_lshlrev_b32 v22, 9, v20
    v_lshl_add_u32 v22, v21, 4, v22
    v_lshl_add_u32 v22, {L15}, 5, v22
    v_add_u32 v22, {CLB}, v22
    v_lshlrev_b32 v23, 8, {G4}
    v_lshlrev_b32 v24, 4, {L15}
    v_lshlrev_b32 v25, 3, {L15}
    v_cmp_gt_u32 vcc, 2, {G4}
    v_add_u32 v26, {CLB}, v23
    v_mov_b32 v28, 0x80
    v_cndmask_b32 v24, v25, v24, vcc
    v_cndmask_b32 v28, v28, 8, vcc
    v_add_u32 v24, v26, v24
    v_add_u32 v25, v24, v28
    v_lshl_add_u32 v26, {L15}, 2, v26
    s_waitcnt lgkmcnt(0)
    """)
    for ks in range(8):
        a(f"v_mfma_f32_16x16x32_bf16 {vr(D[2], 4)}, {vr(QA[0] + 4 * ks, 4)}, {vr(RBF + 4 * ks, 4)}, {'0' if ks == 0 else vr(D[2], 4)}")
    a(f"""
    ds_write_b128 v22, {vr(D[0], 4)} offset:{L_KC}
    ds_write_b64 v24, {vr(D[1], 2)} offset:{L_KC + 1024}
    ds_write_b64 v25, {vr(D[1] + 2, 2)} offset:{L_KC + 1024}
    v_sub_u32 v27, 63, {LANE}
    v_lshl_add_u32 v28, v27, 3, {CLB}
    v_lshl_add_u32 v29, v27, 4, {CLB}
    v_lshl_add_u32 v30, {LANE}, 5, {CLB}
    v_lshl_add_u32 v31, {LANE}, 4, {CLB}
    v_lshl_add_u32 v32, {LANE}, 2, {CLB}
    """)
    for j in range(4):
        a(f"ds_write_b32 v26, v{D[2] + j} offset:{L_KC + 2048 + 64 * j}")
    E = {3: 40, 2: 44, 1: 48, 0: 52}
    for s, idx in ((3, 512), (2, 384), (1, 256)):
        a(f"ds_read_b64 {vr(E[s], 2)}, v28 offset:{L_KC + 4 * idx}\nds_read_b32 v{E[s] + 2}, v28 offset:{L_KC + 4 * idx + 8}")
    a(f"ds_read_b128 {vr(E[0], 4)}, v29 offset:{L_KC}\nds_read_b32 v{E[0] + 4}, v29 offset:{L_KC + 16}")
    a("s_waitcnt lgkmcnt(0)")
    t = 64
    for s, l0, Bn, step, areg, aoff in ((3, 1024, 16, 8, 30, 0), (2, 512, 8, 4, 31, 2048), (1, 256, 4, 2, 8, 3072), (0, 0, 4, 1, 8, 3584)):
        val = lambda x: E[s] + (bf16_round_int(l0 + 64 + x) - (l0 + 64)) // step
        for base, sh in ((L_KE, 0), (L_KO, 1)):
            for m in range(Bn // 2):
                a(f"v_cvt_pk_bf16_f32 v{t + m}, v{val(Bn - sh - 2 * m)}, v{val(Bn - sh - 1 - 2 * m)}")
            if Bn == 16:
                a(f"ds_write_b128 v{areg}, {vr(t, 4)} offset:{base + aoff}\nds_write_b128 v{areg}, {vr(t + 4, 4)} offset:{base + aoff + 16}")
            elif Bn == 8:
                a(f"ds_write_b128 v{areg}, {vr(t, 4)} offset:{base + aoff}")
            else:
                a(f"ds_write_b64 v{areg}, {vr(t, 2)} offset:{base + aoff}")
            t += max(4, Bn // 2)
    a(f"""
    v_cvt_pk_bf16_f32 v33, v{E[0]}, {ZERO}
    v_readlane_b32 s10, v33, 63
    v_cmp_eq_u32 vcc, 0, {LANE}
    v_mov_b32 v34, s10
    v_cndmask_b32 v34, 0, v34, vcc
    s_mov_b64 exec, 0xffff
    ds_write_b32 v32, v34 offset:{L_KE + 4096}
    ds_write_b32 v32, {ZERO} offset:{L_KO + 4096}
    s_mov_b64 exec, -1
    """)


vmA = VM(a)
kgen(vmA)
a(f"s_cmp_ge_u32 {J}, 28\ns_cbranch_scc1 L_typeC")


def late_addr():
    return f"""
    s_lshr_b32 {TB}, {XCD}, 1
    s_lshl_b32 {TB}, {TB}, 3
    s_lshr_b32 s10, {J}, 2
    s_add_u32 {TB}, {TB}, s10
    s_and_b32 {CS}, {XCD}, 1
    s_lshl_b32 {CS}, {CS}, 2
    s_and_b32 s10, {J}, 3
    s_add_u32 {CS}, {CS}, s10
    s_mul_i32 s10, {CS}, 5120
    v_add_u32 v2, s10, {L16}
    v_add_u32 v4, 4096, v2
    s_and_b32 s10, {J}, 3
    s_mul_i32 s10, s10, {ROTC}
    s_lshr_b32 {HSO}, {J}, 2
    s_mul_i32 {HSO}, {HSO}, {ROTT}
    s_add_u32 s10, s10, {HSO}
    s_lshr_b32 s10, s10, 1
    s_mul_i32 {HSO}, s10, 147
    s_lshr_b32 {HSO}, {HSO}, 11
    s_mul_i32 {HSO}, {HSO}, 14
    s_sub_u32 s10, s10, {HSO}
    s_mul_i32 {HCL}, {WAVE}, 14
    s_add_u32 s10, s10, {HCL}
    s_add_u32 {HCL}, {HCL}, 14
    s_mul_i32 {WSO}, s10, 40960
    s_lshl_b32 {HSO}, s10, 12
    s_mul_i32 {WCL}, {HCL}, 40960
    s_lshl_b32 {HCL}, {HCL}, 12
    s_add_u32 s56, s42, {W2F} @s_addc_u32 s57, s43, 0
    s_mov_b32 s58, {54 * 40960}
    s_mov_b32 s59, 0x20000
    s_mul_i32 s10, {WAVE}, 56
    v_min_u32 v18, 55, {LANE}
    v_add_u32 v18, s10, v18
    v_min_u32 v18, 215, v18
    v_lshlrev_b32 v18, 2, v18
    v_add_u32 v18, {WFLAG}, v18
    s_lshr_b32 s10, {CW}, 4
    s_lshl_b32 s10, s10, 8
    s_add_u32 s10, s10, {UFLAG}
    v_lshl_add_u32 v20, {LANE}, 2, s10
    v_lshrrev_b32 v23, 4, v0
    v_mul_u32_u24 v22, 40960, v23
    v_lshl_add_u32 v22, {L15}, 4, v22
    s_sub_u32 s10, {J}, 16
    s_cmp_lt_u32 s10, 12 @s_cselect_b32 s10, {OOB}, 0
    v_add_u32 v22, s10, v22
    s_lshl_b32 {UTO}, {CW}, 8
    s_add_u32 {UTO}, {UTO}, {UT}
    """.strip().replace("\n", "|").replace("@", "\n").split("|")


WSLOT = [vr(4 * i, 4, "a") for i in range(64)] + [vr(224 + 4 * i, 4) for i in range(6)]


def wload_ops():
    L = []
    for i in range(14):
        for dt in range(5):
            post = f"s_add_u32 {WSO}, {WSO}, 40960\ns_cmp_eq_u32 {WSO}, {WCL}\ns_cselect_b32 s66, {14 * 40960}, 0\ns_sub_u32 {WSO}, {WSO}, s66" if dt == 4 else None
            L.append((f"buffer_load_dwordx4 {WSLOT[5 * i + dt]}, {'v4' if dt == 4 else 'v2'}, {SRDC}, {WSO} offen offset:{1024 * (dt & 3)} sc1", f"W{i}", post))
    return L


def emit_op(vm, op):
    vm.issue(op[1], op[0])
    if op[2]:
        a(op[2])


def uload_ops():
    return [(f"buffer_load_dwordx4 {vr(32 + 4 * n, 4)}, v22, {WSRD}, {UTO} offen sc1", f"u{n}",
             f"s_add_u32 {UTO}, {UTO}, {16 * 40960}" if n < 3 else None) for n in range(4)]


NEARLY = 14


def gemm1(vm):
    a("L_g1_loop:")
    ACC = 64
    WF, XF = [128, 160], [144, 176]

    def reads(ks):
        s = ks & 1
        L = []
        for i in range(4):
            L.append(f"ds_read_b128 {vr(XF[s] + 4 * i, 4)}, v{VXR[s]} offset:{XB + ((ks >> 1) % 3) * 16384 + 2048 * i}")
            L.append(f"ds_read_b64_tr_b16 {vr(WF[s] + 4 * i, 2)}, v{VWR[i]} offset:{(ks % NWS) * 8192}")
            L.append(f"ds_read_b64_tr_b16 {vr(WF[s] + 4 * i + 2, 2)}, v{VWR[i]} offset:{(ks % NWS) * 8192 + 1024}")
        return L

    vm.wait("x0", "w0")
    a("s_barrier")
    stamp(1)
    for l in reads(0):
        a(l)
    misc = late_addr()
    ops = uload_ops() + wload_ops()[:NEARLY]
    for ks in range(20):
        s = ks & 1
        if ks < 19:
            vm.wait(f"x{(ks + 1) >> 1}", f"w{ks + 1}", *(["look"] if ks == 16 else []), extra="lgkmcnt(0)")
            a("s_barrier")
        else:
            a("s_waitcnt lgkmcnt(0)")
        if ks in (5, 10, 15):
            stamp(9 + ks // 5)
        if ks == 16:
            poll("v18", "v19", first_issued=True)
            lab = a.newlabel("Lb")
            a(f"s_cmp_ge_u32 {J}, 16\ns_cbranch_scc1 {lab}")
            poll("v20", "v21", first_issued=True)
            a(f"{lab}:")
        rd_ = reads(ks + 1) if ks < 19 else []
        dm = []
        if ks + NWS < 20:
            dm += dmaw(ks + NWS)
        if ks >= 1:
            D = (ks - 1) // 2 + 3
            if D < 10:
                dm += dmax(D, (0, 1) if ks & 1 else (2, 3))
        n = 0
        for ft in range(4):
            for tt in range(4):
                d = vr(ACC + 16 * ft + 4 * tt, 4)
                g = dm.pop(0) if (dm and n % 4 == 1) else None
                if g:
                    a(g[0])
                a(f"v_mfma_f32_16x16x32_bf16 {d}, {vr(WF[s] + 4 * ft, 4)}, {vr(XF[s] + 4 * tt, 4)}, {'0' if ks == 0 else d}")
                if g:
                    vm.issue(g[2], g[1])
                elif ks >= 16 and ops and n % 3 == 1:
                    emit_op(vm, ops.pop(0))
                elif rd_:
                    a(rd_.pop(0))
                    if rd_ and n % 4 == 2:
                        a(rd_.pop(0))
                elif misc and ks >= 2:
                    for _ in range(2):
                        if misc:
                            a(misc.pop(0))
                if ks == 14 and n == 15:
                    assert not misc
                    vm.issue("look", f"buffer_load_dword v19, v18, {WSRD}, 0 offen sc1")
                    vm.issue("look", f"buffer_load_dword v21, v20, {WSRD}, 0 offen sc1")
                n += 1
        assert not dm and not rd_
    assert not ops
    stamp(2)
    a(f"""
    s_lshl_b32 {RB}, {RB}, 1
    s_add_u32 {RB}, {RB}, {WT}
    s_lshl_b32 {CT}, {CT}, 1
    s_add_u32 {CT}, {CT}, {WF_}
    s_mul_i32 s16, {RB}, {54 * 4096}
    s_lshl_b32 s10, {CT}, 13
    s_add_u32 s16, s16, s10
    s_add_u32 s16, s16, {HF}
    s_add_u32 s17, s16, 4096
    s_lshl_b32 {HFO}, {RB}, 7
    s_lshl_b32 s10, {CT}, 2
    s_add_u32 {HFO}, {HFO}, s10
    s_cmp_lt_u32 {CT}, 27
    s_cselect_b32 s10, 0, {OOB}
    v_add_u32 {VUT}, s10, {L16}
    """)
    t = 192
    for m in range(2):
        for tt in range(4):
            for h in range(2):
                r = ACC + 16 * (2 * m + h) + 4 * tt
                a(f"v_cvt_pk_bf16_f32 v{t + 2 * h}, v{r}, v{r + 1}\nv_cvt_pk_bf16_f32 v{t + 2 * h + 1}, v{r + 2}, v{r + 3}")
            for k in range(4):
                a(f"v_pk_max_i16 v{t + k}, v{t + k}, 0")
            vm.issue("hst", f"buffer_store_dwordx4 {vr(t, 4)}, {VUT}, {WSRD}, s{16 + m} offen offset:{1024 * tt} sc1")
            t += 4
    a(f"s_cmp_ge_u32 {J}, 16\ns_cbranch_scc1 L_gapB")


gemm1(vmA)
q_after_g1 = list(vmA.q)

HV = ["v0", "v5", "v6", "v7"]
HSLOT = [192, 208, 88, 104, 120, 136]
NH = 6


def hflag_addr():
    L = f"""
    s_mul_i32 s10, {WAVE}, 7
    v_min_u32 v18, 6, {LANE}
    v_add_u32 v18, s10, v18
    v_min_u32 v18, 26, v18
    v_lshlrev_b32 v18, 2, v18
    s_lshl_b32 s10, {TB}, 7
    v_add_u32 v18, s10, v18
    """.strip().split("\n")
    for k in range(4):
        L += [f"s_add_u32 s10, {WAVE}, {k}", "s_and_b32 s10, s10, 3", "s_lshl_b32 s10, s10, 10", f"v_add_u32 {HV[k]}, s10, {L16}"]
    return L


def hload(vm, i, k):
    vm.issue(f"h{i}", f"buffer_load_dwordx4 {vr(HSLOT[i % NH] + 4 * k, 4)}, {HV[k]}, {SRDB}, {HSO} offen {'' if 'hplain' in OPT else 'sc1'}")
    if k == 3:
        a(f"s_add_u32 {HSO}, {HSO}, 4096\ns_cmp_eq_u32 {HSO}, {HCL}\ns_cselect_b32 s66, {14 * 4096}, 0\ns_sub_u32 {HSO}, {HSO}, s66")


def conv(vm):
    a(f"""
    L_gapA:
    v_and_b32 v24, 3, {LANE}
    v_lshlrev_b32 v24, 14, v24
    v_lshl_add_u32 v24, v23, 6, v24
    v_bfe_u32 v25, {LANE}, 2, 2
    v_lshl_add_u32 v24, v25, 4, v24
    v_add_u32 v24, {CB}, v24
    """)
    for n in range(4):
        vm.wait(f"u{n}")
        a(f"ds_write_b128 v24, {vr(32 + 4 * n, 4)} offset:{L_U + 512 + 1024 * n}")
    a(f"""
    v_and_b32 v23, 1, {L15}
    v_mul_u32_u24 v23, {L_KO - 2 - L_KE}, v23
    v_lshl_add_u32 v23, {G4}, 4, v23
    v_lshlrev_b32 v29, 1, {L15}
    v_sub_u32 v23, v23, v29
    v_add_u32 v23, {CLB}, v23
    v_add_u32 v25, {L_KE + 4064 - 512 * 3}, v23
    v_add_u32 v26, {L_KE + 4064 - 512 * 5}, v23
    v_add_u32 v27, {L_KE + 4064 - 512 * 7}, v23
    v_lshlrev_b32 v28, 5, {L15}
    v_lshl_add_u32 v28, {G4}, 4, v28
    v_add_u32 v28, {CLB}, v28
    v_add_u32 v28, {L_U + 480}, v28
    s_waitcnt lgkmcnt(0)
    v_add_u32 v24, {L_KE + 4064 - 512}, v23
    s_barrier
    """)
    stamp(3)
    ACC = 32
    AS, BS = [64, 128], [96, 160]

    def loads(s):
        L = []
        for m in range(8):
            L.append(f"ds_read_b128 {vr(BS[s] + 4 * m, 4)}, v28 offset:{512 * m}")
        for q in range(8):
            o = 128 if q % 2 == 0 else 0
            r = AS[s] + 4 * q
            L.append(f"ds_read2_b32 {vr(r, 2)}, v{24 + q // 2} offset0:{o} offset1:{o + 1}")
            L.append(f"ds_read2_b32 {vr(r + 2, 2)}, v{24 + q // 2} offset0:{o + 2} offset1:{o + 3}")
        for r in range(24, 29):
            L.append(f"v_subrev_u32 v{r}, 64, v{r}")
        return L

    for l in loads(0):
        a(l)
    ops = wload_ops()[NEARLY:]
    misc = hflag_addr()
    for p in range(8):
        s = p & 1
        nxt = loads(s ^ 1) if p < 7 else []
        a("s_waitcnt lgkmcnt(0)")
        if p == 2:
            vm.wait("hst")
            flag_store(vm, HFO, VUT)
        n = 0
        for q in range(8):
            for j in range(q, 8):
                c = "0" if (p == 0 and q == 0) else vr(ACC + 4 * j, 4)
                a(f"v_mfma_f32_16x16x32_bf16 {vr(ACC + 4 * j, 4)}, {vr(AS[s] + 4 * q, 4)}, {vr(BS[s] + 4 * (j - q), 4)}, {c}")
                if nxt:
                    a(nxt.pop(0))
                elif misc:
                    a(misc.pop(0))
                if ops and n % 4 == 3:
                    emit_op(vm, ops.pop(0))
                if p == 7 and n == 8:
                    assert not ops and not misc
                    vm.issue("look", f"buffer_load_dword v19, v18, {WSRD}, 0 offen sc1")
                n += 1
        assert not nxt
    stamp(4)
    a(f"""
    s_lshl_b32 s10, {WF_}, 5
    s_lshl_b32 s16, {WT}, 7
    s_add_u32 s10, s10, s16
    s_add_u32 s10, s10, {CLB}
    v_lshlrev_b32 v20, 5, {L15}
    v_lshl_add_u32 v20, {G4}, 3, v20
    v_add_u32 v20, s10, v20
    v_bfe_u32 v21, {LANE}, 2, 2
    v_lshlrev_b32 v22, 14, v21
    v_and_b32 v23, 1, v21
    v_lshl_add_u32 v22, v23, 5, v22
    v_lshrrev_b32 v23, 1, v21
    v_lshl_add_u32 v22, v23, 7, v22
    v_and_b32 v23, 3, {LANE}
    v_lshl_add_u32 v22, v23, 3, v22
    v_lshl_add_u32 v22, {G4}, 6, v22
    s_lshl_b32 s10, {WAVE}, 10
    s_add_u32 s10, s10, {CB}
    v_add_u32 v22, s10, v22
    """)
    for j in range(8):
        a(f"v_cvt_pk_bf16_f32 v{64 + 2 * j}, v{ACC + 4 * j}, v{ACC + 4 * j + 1}\nv_cvt_pk_bf16_f32 v{65 + 2 * j}, v{ACC + 4 * j + 2}, v{ACC + 4 * j + 3}")
        a(f"ds_write_b64 v20, {vr(64 + 2 * j, 2)} offset:{L_KE + 512 * j}")
    a(f"""
    s_lshl_b32 s16, {CW}, 14
    s_add_u32 s16, s16, {W4K}
    s_add_u32 s16, s16, {AG}
    s_mul_i32 s10, {CW}, 205
    s_lshr_b32 s10, s10, 12
    s_mul_i32 s17, s10, 20
    s_sub_u32 s17, {CW}, s17
    s_lshl_b32 s10, s10, 2
    s_add_u32 s10, s10, {WAVE}
    s_lshl_b32 s10, s10, 7
    s_lshl_b32 s17, s17, 2
    s_add_u32 s10, s10, s17
    s_add_u32 {PFO}, s10, {AFLAG}
    s_waitcnt lgkmcnt(0)
    s_barrier
    """)
    for n in range(4):
        a(f"ds_read_b64_tr_b16 {vr(160 + 4 * n, 2)}, v22 offset:{L_KE + 256 * n}\nds_read_b64_tr_b16 {vr(162 + 4 * n, 2)}, v22 offset:{L_KE + 256 * n + 32}")
    for n in range(4):
        a(f"s_waitcnt lgkmcnt({6 - 2 * n})")
        vm.issue("ast", f"buffer_store_dwordx4 {vr(160 + 4 * n, 4)}, {L16}, {WSRD}, s16 offen offset:{1024 * n} sc1")
    vm.wait("look")


conv(vmA)


def gemm2(vm):
    a(f"L_gemm2:\ns_mul_i32 s10, {TB}, {54 * 4096}\ns_add_u32 s10, s10, {HF}")
    srd(52, 42, 43, "s10", 54 * 4096)
    poll("v18", "v19", first_issued=True)
    stamp(5)
    ACC = 8
    for i in range(NH):
        for k in range(4):
            hload(vm, i, k)
    X = 152
    AR = X + 8
    for i in range(14):
        vm.wait(f"h{i}", *(["look"] if i == 10 else []))
        if i == 0:
            flag_store(vm, PFO, ZERO)
        if "g2st" in OPT and i in (0, 5, 10):
            stamp(9 + i // 5)
        if i == 10:
            poll(f"v{X + 5}", f"v{X + 6}", first_issued=True)
            if "g2st" in OPT:
                stamp(12)
        misc = []
        if i == 7:
            misc = f"""
            s_lshl_b32 s10, {CS}, 2
            s_lshr_b32 s16, {TB}, 3
            s_add_u32 s10, s10, s16
            s_lshl_b32 s10, s10, 7
            s_add_u32 s10, s10, {AFLAG}
            v_lshl_add_u32 v{X + 5}, {LANE}, 2, s10
            s_lshl_b32 s10, {TB}, 2
            s_add_u32 s10, s10, {WAVE}
            s_lshl_b32 s10, s10, 3
            s_add_u32 s10, s10, {GFLAG}
            v_and_b32 v{X + 6}, 1, {LANE}
            v_lshl_add_u32 v{X + 6}, v{X + 6}, 2, s10
            v_cmp_gt_u32 vcc, 20, {LANE}
            v_cndmask_b32 v{X + 5}, v{X + 6}, v{X + 5}, vcc
            """.strip().split("\n")
        if i == 8:
            vm.issue("look", f"buffer_load_dword v{X + 6}, v{X + 5}, {WSRD}, 0 offen sc1")
            misc = f"""
            v_lshlrev_b32 v{X + 2}, 14, {G4}
            v_lshl_add_u32 v{X + 2}, {L15}, 4, v{X + 2}
            s_mul_i32 s16, {CS}, {20 * 16384}
            s_lshl_b32 s10, {TB}, 9
            s_add_u32 s16, s16, s10
            s_lshl_b32 s10, {WT}, 8
            s_add_u32 s16, s16, s10
            s_lshl_b32 s10, {WF_}, 3
            s_add_u32 s16, s16, s10
            s_add_u32 s16, s16, {AG}
            s_lshl_b32 s17, {TB}, 8
            s_lshl_b32 s10, {WAVE}, 6
            s_add_u32 s17, s17, s10
            s_add_u32 s17, s17, {G_OFF}
            v_lshlrev_b32 v{X + 3}, 2, {L15}
            s_mul_i32 s18, {WAVE}, 20480
            v_add_u32 v{X + 1}, s18, {L16}
            """.strip().split("\n")
        OP = 176
        if i == 9:
            for k in range(1, 4):
                misc += [f"s_sub_u32 s10, {WAVE}, {k}", "s_and_b32 s10, s10, 3", "s_mul_i32 s10, s10, 20480", f"v_add_u32 v{X + 19 + k}, s10, {L16}"]
            misc += f"""
            s_add_u32 s18, s18, 15360
            v_mul_u32_u24 v{X + 7}, {OP}, {L15}
            v_lshl_add_u32 v{X + 7}, {G4}, 3, v{X + 7}
            v_add_u32 v{X + 7}, s18, v{X + 7}
            """.strip().split("\n")
        if i == 10:
            misc = f"""
            s_lshl_b32 s19, {TB}, 6
            s_lshl_b32 s10, {WAVE}, 4
            s_add_u32 s19, s19, s10
            s_mul_i32 s19, s19, 1280
            s_mul_i32 s10, {CS}, 160
            s_add_u32 s19, s19, s10
            s_mov_b32 s48, s38
            s_mov_b32 s49, s39
            s_mov_b32 s50, {2048 * 1280}
            s_mov_b32 s51, 0x20000
            """.strip().split("\n")
            for dt in range(5):
                vm.issue("ag", f"buffer_load_dwordx2 {vr(AR + 2 * dt, 2)}, v{X + 2}, {WSRD}, s16 offen sc1")
                if dt < 4:
                    a("s_add_u32 s16, s16, 65536")
            vm.issue("ag", f"buffer_load_dword v{X + 4}, v{X + 3}, {WSRD}, s17 offen sc1")
        if i == 11:
            for n in range(3):
                q, row, c, la, ga = X + 24, X + 25, X + 26, X + 28 + n, X + 32 + n
                misc += f"""
                v_add_u32 v{q}, {64 * n}, {LANE}
                v_mul_u32_u24 v{row}, 205, v{q}
                v_lshrrev_b32 v{row}, 11, v{row}
                v_mul_u32_u24 v{c}, 10, v{row}
                v_sub_u32 v{c}, v{q}, v{c}
                v_lshlrev_b32 v{c}, 4, v{c}
                v_mul_u32_u24 v{la}, {OP}, v{row}
                v_add3_u32 v{la}, v{la}, v{c}, s18
                v_mul_u32_u24 v{ga}, 1280, v{row}
                v_add_u32 v{ga}, v{ga}, v{c}
                """.strip().split("\n")
        for k in range(4):
            for dt in range(5):
                d = vr(ACC + 20 * k + 4 * dt, 4)
                a(f"v_mfma_f32_16x16x32_bf16 {d}, {WSLOT[5 * i + dt]}, {vr(HSLOT[i % NH] + 4 * k, 4)}, {'0' if i == 0 else d}")
                for _ in range(2 if i == 11 else 1):
                    if misc:
                        a(misc.pop(0))
            if i + NH < 14:
                hload(vm, i + NH, k)
        assert not misc
    a("L_g2_done:\ns_nop 7")
    stamp(6)
    for k in range(1, 4):
        for dt in range(5):
            a(f"ds_write_b128 v{X + 1}, {vr(ACC + 20 * k + 4 * dt, 4)} offset:{5120 * (k - 1) + 1024 * dt}")
    GA = 192
    a(f"""
    s_waitcnt vmcnt(0)
    v_sub_f32 v{X + 6}, 1.0, v{X + 4}
    v_cvt_pk_bf16_f32 v{X + 6}, v{X + 6}, v{X + 6}
    v_and_b32 v{X + 6}, 0xffff0000, v{X + 6}
    """)
    for i in range(10):
        a(f"v_lshlrev_b32 v{GA + 2 * i}, 16, v{AR + i}\nv_and_b32 v{GA + 2 * i + 1}, 0xffff0000, v{AR + i}")
    for i in range(20):
        a(f"v_mul_f32 v{GA + i}, v{X + 4}, v{GA + i}")
    a("s_waitcnt lgkmcnt(0)\ns_barrier")
    PR = 88
    for k in range(1, 4):
        for dt in range(5):
            a(f"ds_read_b128 {vr(PR + 20 * (k - 1) + 4 * dt, 4)}, v{X + 19 + k} offset:{5120 * (k - 1) + 1024 * dt}")
    for k in range(3):
        a(f"s_waitcnt lgkmcnt({10 - 5 * k})")
        for i in range(10):
            a(f"v_pk_add_f32 {vr(ACC + 2 * i, 2)}, {vr(ACC + 2 * i, 2)}, {vr(PR + 20 * k + 2 * i, 2)}")
    for i in range(20):
        a(f"v_fma_f32 v{GA + i}, v{X + 6}, v{ACC + i}, v{GA + i}")
    for dt in range(5):
        a(f"v_cvt_pk_bf16_f32 v{AR + 2 * dt}, v{GA + 4 * dt}, v{GA + 4 * dt + 1}\nv_cvt_pk_bf16_f32 v{AR + 2 * dt + 1}, v{GA + 4 * dt + 2}, v{GA + 4 * dt + 3}")
        a(f"ds_write_b64 v{X + 7}, {vr(AR + 2 * dt, 2)} offset:{32 * dt}")
    for n in range(3):
        a(f"ds_read_b128 {vr(PR + 4 * n, 4)}, v{X + 28 + n}")
    for n in range(3):
        a(f"s_waitcnt lgkmcnt({2 - n})")
        if n == 2:
            a("s_mov_b32 exec_hi, 0")
        a(f"buffer_store_dwordx4 {vr(PR + 4 * n, 4)}, v{X + 32 + n}, {SRDA}, s19 offen")
    if DIAG:
        a("s_mov_b64 exec, -1\ns_waitcnt vmcnt(0)")
        stamp(13)
        a(f"""
        s_lshl_b32 s10, s2, 8
        s_lshl_b32 s11, {WAVE}, 6
        s_add_u32 s10, s10, s11
        s_add_u32 s10, s10, {STAMP}
        s_mov_b64 exec, 1
        """)
        for i in range(14):
            a(f"v_mov_b32 v{8 + i}, s{74 + 2 * i}")
        for i in range(4):
            a(f"buffer_store_dwordx4 v[{8 + 4 * i}:{11 + 4 * i}], {ZERO}, {WSRD}, s10 offen offset:{16 * i}")
    a("L_end:\ns_endpgm")


gemm2(vmA)


def typeC():
    vm = VM(a)
    a("L_typeC:")
    for l in late_addr():
        a(l)
    stamp(1)
    poll("v20", "v21", nap=8)
    for op in uload_ops():
        emit_op(vm, op)
    poll("v18", "v19", nap=8)
    for op in wload_ops()[:NEARLY]:
        emit_op(vm, op)
    a(f"s_mov_b32 {HFO}, 0")
    stamp(2)
    a("s_branch L_gapA")


typeC()


def typeB():
    vm = VM(a)
    a(f"""
    L_typeB:
    s_lshl_b32 {CW}, s10, 3
    s_add_u32 {CW}, {CW}, {XCD}
    s_mul_i32 s12, {CW}, 40960
    s_mul_i32 s13, {WAVE}, 10240
    s_cmp_lt_u32 {CW}, 88
    s_cbranch_scc1 L_b_notag
    s_cmp_lg_u32 {WAVE}, 0
    s_cbranch_scc1 L_b_notag
    s_memrealtime s[64:65]
    s_waitcnt lgkmcnt(0)
    s_or_b32 s64, s64, 1
    v_mov_b32 v8, s64
    v_mov_b32 v9, 0
    s_mov_b64 exec, 1
    global_atomic_cmpswap {ZERO}, v[8:9], {DBG} sc1
    s_mov_b64 exec, -1
    L_b_notag:
    s_waitcnt lgkmcnt(0)
    """)
    g1_setup_b()
    srd(56, 34, 35, None, 1728 * 1280)
    a(f"s_lshl_b32 s{XS}, {D0}, 7\ns_mul_i32 s{WSS}, {D0}, {64 * 3456}")
    stamp(7)
    emit_dma(vm, dmax(0) + dmaw(0) + dmaw(1))
    a("s_add_u32 s10, s12, s13\nv_mov_b32 v7, s10")
    for m in range(10):
        a(f"""
        v_add_u32 v5, {4 * m}, {G4}
        v_mul_u32_u24 v5, 13, v5
        v_lshrrev_b32 v5, 6, v5
        v_lshlrev_b32 v5, 1, v5
        v_xor_b32 v5, v5, {LANE}
        v_lshl_add_u32 v5, v5, 4, v7
        s_add_u32 m0, s13, {CB}
        """)
        if m < 4:
            vm.issue("dw", f"buffer_load_dwordx4 v5, {SRDC}, 0 offen offset:{1024 * m} lds")
        else:
            a(f"s_add_u32 m0, s13, {CB + 1024 * m}\nv_add_u32 v5, {1024 * m}, v5")
            vm.issue("dw", f"buffer_load_dwordx4 v5, {SRDC}, 0 offen lds")
    for D in range(1, 10):
        soff(D)
    g1_setup_c()
    ut_step(vm, 96)
    emit_dma(vm, dmax(1) + dmaw(2) + dmaw(3))
    a(f"""
    v_lshrrev_b32 v9, 2, {LANE}
    v_mul_u32_u24 v8, 1280, v9
    v_and_b32 v9, 7, v9
    s_lshl_b32 s10, {WAVE}, 1
    v_xor_b32 v9, s10, v9
    v_lshl_add_u32 v8, v9, 5, v8
    v_and_b32 v6, 3, {LANE}
    v_lshl_add_u32 v8, v6, 3, v8
    v_add_u32 v8, {CB}, v8
    v_xor_b32 v9, 32, v8
    s_cmp_lt_u32 {CW}, 54
    s_cselect_b32 s10, 0, {OOB}
    v_mov_b32 v11, s10
    s_add_u32 s10, s10, {W2K}
    v_add_u32 v10, s10, {L16}
    s_add_u32 s12, s12, {W2F}
    """)
    vm.wait("dw")
    a("s_barrier")
    stamp(8)
    for aa in range(5):
        for b in range(2):
            r = 16 + 8 * aa + 4 * b
            a(f"ds_read_b64_tr_b16 {vr(r, 2)}, v{8 + b} offset:{256 * aa}")
            a(f"ds_read_b64_tr_b16 {vr(r + 2, 2)}, v{8 + b} offset:{256 * aa + 16 * 1280}")
    for aa in range(5):
        a(f"s_waitcnt lgkmcnt({min(15, 16 - 4 * aa)})")
        for b in range(2):
            r = 16 + 8 * aa + 4 * b
            vm.issue("sw", f"buffer_store_dwordx4 {vr(r, 4)}, v10, {WSRD}, s12 offen offset:{1024 * b} sc1")
        a("s_add_u32 s12, s12, 8192")
    ut_flag(vm)
    emit_dma(vm, dmax(2) + dmaw(4) + dmaw(5))
    a(f"s_lshl_b32 s10, {CW}, 4\ns_lshl_b32 s12, {WAVE}, 2\ns_add_u32 s10, s10, s12\ns_add_u32 s10, s10, {WFLAG}")
    vm.wait("sw")
    flag_store(vm, "s10", "v11")
    stamp(9)
    assert vm.q[-9:] == ["x2"] * 4 + ["w4"] * 2 + ["w5"] * 2 + ["fl"], vm.q
    a("s_branch L_g1_loop")

    vm.q = list(q_after_g1)
    a("L_gapB:")
    ops = wload_ops()[NEARLY:]
    a(f"""
    s_sub_u32 s16, {J}, 16
    s_and_b32 s17, s16, 7
    s_lshl_b32 s10, {XCD}, 3
    s_add_u32 s17, s17, s10
    s_lshl_b32 s10, s17, 5
    s_lshl_b32 s18, {WAVE}, 3
    s_add_u32 s10, s10, s18
    v_add_u32 v24, s10, {G4}
    v_lshlrev_b32 v25, 4, {L15}
    v_mul_u32_u24 v26, 1280, v24
    v_add_u32 v26, v26, v25
    v_add_u32 v27, 5120, v26
    """)
    for k in range(5):
        vm.issue("gx", f"global_load_dwordx4 {vr(64 + 4 * k, 4)}, v26, {UPTR} offset:{256 * k}")
        vm.issue("gx", f"global_load_dwordx4 {vr(84 + 4 * k, 4)}, v27, {UPTR} offset:{256 * k}")
        vm.issue("gx", f"global_load_dwordx4 {vr(104 + 4 * k, 4)}, v25, s[36:37] offset:{256 * k}")
    vm.wait("hst")
    flag_store(vm, HFO, VUT)
    stamp(3)
    for _ in range(16):
        emit_op(vm, ops.pop(0))
    a("v_mov_b32 v28, 0\nv_mov_b32 v29, 0")
    vm.wait("gx")
    for k in range(20):
        a(f"v_dot2_f32_bf16 v28, v{64 + k}, v{104 + k}, v28\nv_dot2_f32_bf16 v29, v{84 + k}, v{104 + k}, v29")
    a("s_nop 2")
    for sh in (8, 4, 2, 1):
        a(f"v_add_f32_dpp v28, v28, v28 row_ror:{sh} row_mask:0xf bank_mask:0xf")
        a(f"v_add_f32_dpp v29, v29, v29 row_ror:{sh} row_mask:0xf bank_mask:0xf")
    a(f"""
    v_and_b32 v30, 1, {LANE}
    v_cmp_eq_u32 vcc, 1, v30
    v_lshl_add_u32 v24, v30, 2, v24
    v_lshlrev_b32 v24, 2, v24
    v_cndmask_b32 v30, v28, v29, vcc
    v_cvt_pk_bf16_f32 v30, v30, v30
    v_and_b32 v30, 0xffff0000, v30
    v_mul_f32 v30, {f32(-1.4426950408889634)}, v30
    v_exp_f32 v30, v30
    v_add_f32 v30, 1.0, v30
    v_rcp_f32 v30, v30
    v_cvt_pk_bf16_f32 v30, v30, v30
    v_and_b32 v30, 0xffff0000, v30
    s_mov_b32 s10, {G_OFF}
    s_mov_b32 s64, 0x30003
    s_mov_b32 s65, 0x30003
    s_mov_b64 exec, s[64:65]
    """)
    vm.issue("gs", f"buffer_store_dword v30, v24, {WSRD}, s10 offen sc1")
    a(f"""
    s_mov_b64 exec, -1
    s_lshl_b32 {PFO}, s17, 4
    s_lshl_b32 s10, {WAVE}, 2
    s_add_u32 {PFO}, {PFO}, s10
    s_add_u32 {PFO}, {PFO}, {GFLAG}
    """)
    for op in ops:
        emit_op(vm, op)
    for l in hflag_addr():
        a(l)
    a(f"buffer_load_dword v19, v18, {WSRD}, 0 offen sc1\ns_barrier\ns_waitcnt vmcnt(0)")
    stamp(4)
    a("s_branch L_gemm2")


typeB()

body = a.render()
head = open(f"cdna_kernels/{NAME}.s.ref").read().split("; Override launch")[0]
text = head + f"""; Generated by the author's own generator script; single fused kernel, one workgroup per CU.
; @launch grid=(256,1,1) block=(256,1,1) lds=163840
.amdgcn_target "amdgcn-amd-amdhsa--gfx950"
.text
.globl {NAME}_kernel
.p2align 8
.type {NAME}_kernel,@function
{NAME}_kernel:
{body}.section .rodata,"a"
.p2align 6
.amdhsa_kernel {NAME}_kernel
  .amdhsa_next_free_vgpr 512
  .amdhsa_next_free_sgpr 102
  .amdhsa_accum_offset 256
  .amdhsa_group_segment_fixed_size 0
  .amdhsa_kernarg_size 112
  .amdhsa_user_sgpr_count 2
  .amdhsa_user_sgpr_kernarg_segment_ptr 1
  .amdhsa_system_sgpr_workgroup_id_x 1
.end_amdhsa_kernel
"""
open(OUT, "w").write(text)
print("wrote", OUT, "lines", text.count("\n"), "auto nops", a.nops)
```

```python
import sys, struct
from asmlib import Asm, VM

NAME = "gated_mix__ssm_conv_s4d__dense_activation_relu__prompt"
DIAG = "--diag" in sys.argv
OPT = set(x[2:] for x in sys.argv if x.startswith("--"))
OUT = [x for x in sys.argv[1:] if not x.startswith("--")]
OUT = OUT[0] if OUT else f"cdna_kernels/{NAME}.s"

HFLAG, UFLAG, G_OFF, WFLAG, GFLAG, AFLAG = 0x0, 0x1000, 0x2000, 0x5000, 0x5800, 0x6000
UT = 0x10000
W2F = UT + 64 * 40960
HF = W2F + 54 * 40960
AG = HF + 32 * 54 * 4096
STAMP = AG + 160 * 16384
WS_END = STAMP + 512 * 4 * 64
SPIN_LIMIT = 400000
OOB = 0x40000000

XB, WB, CB = 0, 49152, 98304
NWS = 6
L_U, L_KE, L_KO, CHP = 0, 4608, 9280, 13952
L_KC = CB + 2 * CHP
L_W2 = L_KC + 4 * 3072
L_AT = 81920
TP = 288


def f32(x):
    return "0x%08x" % struct.unpack("<I", struct.pack("<f", x))[0]


def vr(b, n=1, f="v"):
    return f"{f}{b}" if n == 1 else f"{f}[{b}:{b + n - 1}]"


a = Asm()
LOGA, AIM, CR, CI, LDT, DSK = "s[18:19]", "s[20:21]", "s[22:23]", "s[24:25]", "s[26:27]", "s[28:29]"
DBG, WSRD = "s[40:41]", "s[44:47]"
SRDA, SRDB, SRDC = "s[48:51]", "s[52:55]", "s[56:59]"
WAVE, TAG, XCD, J = "s3", "s4", "s5", "s6"
RB, CT = "s7", "s8"
W2K, WT, WF_ = "s11", "s14", "s15"
XS, WSS = 16, 26
HFO, W4K, D0, UTO, UFO = "s60", "s62", "s63", "s64", "s65"
CP, CPB, CHB, PFO, PF2 = "s67", "s70", "s61", "s71", "s68"
ULO = "s69"
TB, CS = "s72", "s73"
WSO, HSO = "s36", "s37"
LANE, ZERO = "v1", "v3"
VXS, VWS, VXR, VWR = [236, 237, 238, 239], [240, 241, 242, 243], [244, 245], [246, 247, 248, 249]
L16, VUT, VTAG = "v250", "v251", "v252"
L15, G4 = "v254", "v255"


def stamp(i):
    if DIAG:
        a(f"s_memrealtime s[{74 + 2 * i}:{75 + 2 * i}]\ns_waitcnt lgkmcnt(0)")


def srd(dst, lo, hi, off_s, size):
    if off_s is None:
        a(f"s_mov_b32 s{dst}, s{lo}\ns_mov_b32 s{dst + 1}, s{hi}")
    else:
        a(f"s_add_u32 s{dst}, s{lo}, {off_s}\ns_addc_u32 s{dst + 1}, s{hi}, 0")
    a(f"s_mov_b32 s{dst + 2}, {size}\ns_mov_b32 s{dst + 3}, 0x20000")


def poll(voff, vf, first_issued=False, nap=4):
    lp, chk, done = (a.newlabel(x) for x in ("Lp", "Lc", "Ld"))
    if first_issued:
        a(f"v_cmp_ne_u32 vcc, {TAG}, {vf}\ns_cmp_eq_u64 vcc, 0\ns_cbranch_scc1 {done}")
    a(f"""
    s_mov_b32 s66, 0
    {lp}:
    buffer_load_dword {vf}, {voff}, {WSRD}, 0 offen sc1
    s_waitcnt vmcnt(0)
    v_cmp_ne_u32 vcc, {TAG}, {vf}
    s_cmp_eq_u64 vcc, 0
    s_cbranch_scc1 {done}
    s_sleep {nap}
    s_add_u32 s66, s66, 1
    s_cmp_lt_u32 s66, {SPIN_LIMIT}
    s_cbranch_scc1 {lp}
    {done}:
    """)


def get_tag():
    lp, done = a.newlabel("Lt"), a.newlabel("Ld")
    a(f"""
    v_readfirstlane_b32 {TAG}, {VTAG}
    s_cmp_lg_u32 {TAG}, 0
    s_cbranch_scc1 {done}
    s_mov_b32 s66, 0
    {lp}:
    global_load_dword {VTAG}, {ZERO}, {DBG} sc1
    s_waitcnt vmcnt(0)
    v_readfirstlane_b32 {TAG}, {VTAG}
    s_cmp_lg_u32 {TAG}, 0
    s_cbranch_scc1 {done}
    s_sleep 2
    s_add_u32 s66, s66, 1
    s_cmp_lt_u32 s66, {SPIN_LIMIT}
    s_cbranch_scc1 {lp}
    {done}:
    """)


def flag_store(vm, soff, voff):
    a("s_mov_b64 exec, 1")
    vm.issue("fl", f"buffer_store_dword {VTAG}, {voff}, {WSRD}, {soff} offen sc1")
    a("s_mov_b64 exec, -1")


def dmax(D, ms=range(4)):
    return [(f"s_add_u32 m0, {W4K}, {XB + (D % 3) * 16384 + 1024 * m}",
             f"buffer_load_dwordx4 v{VXS[m]}, {SRDA}, s{XS + D} offen lds", f"x{D}") for m in ms]


def dmaw(ks):
    return [(f"s_add_u32 m0, {W2K}, {WB + (ks % NWS) * 8192 + 1024 * m}",
             f"buffer_load_dwordx4 v{VWS[2 * (ks & 1) + m]}, {SRDB}, s{WSS + (ks >> 1)} offen lds", f"w{ks}") for m in range(2)]


def emit_dma(vm, gs):
    for g in gs:
        a(g[0])
        vm.issue(g[2], g[1])


def soff(D):
    return [f"s_add_u32 s{XS + D}, s{XS + D - 1}, 128\ns_add_u32 s{WSS + D}, s{WSS + D - 1}, {64 * 3456}",
            f"s_cmp_eq_u32 s{XS + D}, 1280\ns_cselect_b32 s{XS + D}, 0, s{XS + D}\ns_cselect_b32 s{WSS + D}, 0, s{WSS + D}"]


def g1_setup_a():
    a(f"""
    s_mul_i32 {RB}, {J}, 37
    s_lshr_b32 {RB}, {RB}, 8
    s_mul_i32 {CT}, {RB}, 7
    s_sub_u32 {CT}, {J}, {CT}
    s_lshr_b32 s9, {XCD}, 1
    s_lshl_b32 s9, s9, 2
    s_add_u32 {RB}, {RB}, s9
    s_and_b32 s9, {XCD}, 1
    s_mul_i32 s9, s9, 7
    s_add_u32 {CT}, {CT}, s9
    v_lshrrev_b32 v4, 3, {LANE}
    s_lshl_b32 s10, {WAVE}, 5
    v_add_u32 v4, s10, v4
    v_mul_u32_u24 v4, 1280, v4
    v_and_b32 v6, 7, {LANE}
    v_xor_b32 v6, v6, {G4}
    v_lshl_add_u32 v{VXS[0]}, v6, 4, v4
    v_xor_b32 v{VXS[1]}, 64, v{VXS[0]}
    v_add_u32 v{VXS[1]}, 10240, v{VXS[1]}
    v_add_u32 v{VXS[2]}, 20480, v{VXS[0]}
    v_add_u32 v{VXS[3]}, 20480, v{VXS[1]}
    s_lshl_b32 s10, {WAVE}, 3
    v_add_u32 v4, s10, {G4}
    v_mul_u32_u24 v4, 3456, v4
    s_lshl_b32 s10, {WF_}, 2
    v_or_b32 v6, s10, {G4}
    v_lshlrev_b32 v6, 1, v6
    v_xor_b32 v6, v6, {L15}
    v_lshl_add_u32 v{VWS[0]}, v6, 4, v4
    s_lshl_b32 s10, {CT}, 8
    v_add_u32 v{VWS[0]}, s10, v{VWS[0]}
    v_add_u32 v{VWS[1]}, 13824, v{VWS[0]}
    v_add_u32 v{VWS[2]}, {32 * 3456}, v{VWS[0]}
    v_add_u32 v{VWS[3]}, {32 * 3456}, v{VWS[1]}
    s_lshl_b32 {W2K}, {WAVE}, 11
    s_lshl_b32 {W4K}, {WAVE}, 12
    s_mul_i32 s12, {RB}, 3
    s_add_u32 s12, s12, {CT}
    s_mul_i32 s13, s12, 205
    s_lshr_b32 s13, s13, 11
    s_mul_i32 s13, s13, 10
    s_sub_u32 {D0}, s12, s13
    s_mul_i32 s9, {RB}, {128 * 1280}
    """)


def g1_setup_b():
    srd(48, 16, 17, "s9", 128 * 1280)
    srd(52, 32, 33, None, 640 * 3456)


def g1_setup_c():
    a(f"""
    s_lshl_b32 s10, {WT}, 13
    v_lshlrev_b32 v{VXR[0]}, 7, {L15}
    v_add_u32 v{VXR[0]}, s10, v{VXR[0]}
    v_bfe_u32 v4, {LANE}, 1, 3
    v_xor_b32 v4, v4, {G4}
    v_lshl_add_u32 v{VXR[0]}, v4, 4, v{VXR[0]}
    v_xor_b32 v{VXR[1]}, 64, v{VXR[0]}
    v_bfe_u32 v4, {LANE}, 2, 2
    v_lshl_add_u32 v6, {G4}, 3, v4
    v_lshlrev_b32 v{VWR[0]}, 8, v6
    v_and_b32 v6, 1, {G4}
    v_lshl_or_b32 v6, v6, 2, v4
    s_lshl_b32 s10, {WF_}, 2
    v_xor_b32 v6, s10, v6
    v_lshl_add_u32 v{VWR[0]}, v6, 5, v{VWR[0]}
    v_and_b32 v7, 3, {LANE}
    v_lshl_add_u32 v{VWR[0]}, v7, 3, v{VWR[0]}
    v_add_u32 v{VWR[0]}, {WB}, v{VWR[0]}
    v_xor_b32 v{VWR[1]}, 32, v{VWR[0]}
    v_xor_b32 v{VWR[2]}, 64, v{VWR[0]}
    v_xor_b32 v{VWR[3]}, 0x60, v{VWR[0]}
    v_lshl_add_u32 v6, v7, 3, v4
    v_lshlrev_b32 v253, 7, v6
    v_add_u32 v253, {W4K}, v253
    v_bfe_u32 v6, v6, 1, 3
    v_lshrrev_b32 v7, 5, {LANE}
    v_xor_b32 v6, v6, v7
    v_lshl_add_u32 v253, v6, 4, v253
    v_and_b32 v6, 1, {G4}
    v_lshl_add_u32 v253, v6, 3, v253
    s_lshl_b32 s10, {RB}, 2
    s_add_u32 s10, s10, {WAVE}
    s_mul_i32 {UTO}, s10, 40960
    s_lshl_b32 {UFO}, {D0}, 12
    s_add_u32 {UTO}, {UTO}, {UFO}
    s_add_u32 {UTO}, {UTO}, {UT}
    s_lshl_b32 {UFO}, {D0}, 8
    s_lshl_b32 s10, s10, 2
    s_add_u32 {UFO}, {UFO}, s10
    s_add_u32 {UFO}, {UFO}, {UFLAG}
    s_cmp_lt_u32 {CT}, 10
    s_cselect_b32 s10, 0, {OOB}
    v_lshlrev_b32 {VUT}, 8, {G4}
    v_lshl_add_u32 {VUT}, v4, 5, {VUT}
    v_bfe_u32 v6, {LANE}, 1, 1
    v_lshl_add_u32 {VUT}, v6, 7, {VUT}
    v_and_b32 v6, 1, {LANE}
    v_lshl_add_u32 {VUT}, v6, 4, {VUT}
    v_add_u32 {VUT}, s10, {VUT}
    """)


def ut_step(vm, t):
    vm.wait("x0")
    vm.issue("tag", f"global_load_dword {VTAG}, {ZERO}, {DBG} sc1")
    a(f"v_mov_b32 v{t + 16}, v253\nv_xor_b32 v{t + 17}, 32, v253\nv_xor_b32 v{t + 18}, 64, v253\nv_xor_b32 v{t + 19}, 0x60, v253")
    for dt in range(4):
        a(f"ds_read_b64_tr_b16 {vr(t + 4 * dt, 2)}, v{t + 16 + dt}\nds_read_b64_tr_b16 {vr(t + 2 + 4 * dt, 2)}, v{t + 16 + (dt ^ 1)} offset:512")
    for dt in range(4):
        a(f"s_waitcnt lgkmcnt({6 - 2 * dt})")
        vm.issue("ut", f"buffer_store_dwordx4 {vr(t + 4 * dt, 4)}, {VUT}, {WSRD}, {UTO} offen offset:{1024 * dt} sc1")


def ut_flag(vm):
    vm.wait("ut")
    get_tag()
    flag_store(vm, UFO, VUT)


VWFL, VUFL, VHFL, VUG, VUL, LOOK1, LOOK2, VPS, VPF = "v8", "v9", "v10", "v11", "v12", "v13", "v14", "v15", "v16"
HV = ["v0", "v5", "v6", "v7"]
JUNK = "v233"
KCB, HFM = "s9", "s[30:31]"

a("L_code0:")
stamp(0)
a(f"""
s_cmp_ge_u32 s2, 256
s_cbranch_scc1 L_end
s_load_dwordx16 s[16:31], s[0:1], 0
s_load_dwordx8 s[32:39], s[0:1], 64
s_load_dwordx4 s[40:43], s[0:1], 96
v_lshrrev_b32 v2, 6, v0
v_and_b32 {LANE}, 63, v0
v_mov_b32 {ZERO}, 0
v_readfirstlane_b32 {WAVE}, v2
s_and_b32 {XCD}, s2, 7
s_lshr_b32 {J}, s2, 3
s_mov_b32 s46, {WS_END}
s_mov_b32 s47, 0x20000
v_and_b32 {L15}, 15, v0
v_bfe_u32 {G4}, v0, 4, 2
v_lshlrev_b32 {L16}, 4, {LANE}
s_lshr_b32 {WT}, {WAVE}, 1
s_and_b32 {WF_}, {WAVE}, 1
s_cmp_ge_u32 {J}, 28
s_cbranch_scc1 L_typeC
""")


def bf16_round_int(l):
    if l < 256:
        return l
    e = l.bit_length() - 8
    q, r = l >> e, l & ((1 << e) - 1)
    h = 1 << (e - 1)
    if r > h or (r == h and (q & 1)):
        q += 1
    return q << e


def param_addr():
    a(f"""
    s_lshl_b32 s10, {CP}, 9
    v_lshl_add_u32 v68, v0, 1, s10
    s_lshl_b32 s10, {CP}, 2
    s_lshl_b32 s12, {WT}, 1
    s_add_u32 s10, s10, s12
    v_mov_b32 v69, s10
    """)


def param_loads(vm):
    for k, (ad, ptr) in enumerate((("v68", LOGA), ("v68", AIM), ("v68", CR), ("v68", CI), ("v69", LDT), ("v69", DSK))):
        vm.issue("par", f"global_load_ushort v{208 + k}, {ad}, {ptr}")


GX, GW = 152, 172


def gate_loads(vm):
    a(f"""
    s_lshl_b32 s10, {XCD}, 4
    s_add_u32 s10, s10, {J}
    s_sub_u32 s13, s10, 16
    s_lshl_b32 s10, s13, 4
    v_lshrrev_b32 v65, 4, v0
    v_add_u32 v65, s10, v65
    v_lshlrev_b32 v66, 4, {L15}
    v_mul_u32_u24 v67, 1280, v65
    v_add_u32 v67, v67, v66
    v_lshlrev_b32 {VPS}, 2, v65
    v_mov_b32 {VPF}, 0
    s_lshl_b32 {PF2}, s13, 4
    s_lshl_b32 s10, {WAVE}, 2
    s_add_u32 {PF2}, {PF2}, s10
    s_add_u32 {PF2}, {PF2}, {GFLAG}
    """)
    for k in range(5):
        vm.issue("pre", f"global_load_dwordx4 {vr(GX + 4 * k, 4)}, v67, s[30:31] offset:{256 * k}")
        vm.issue("pre", f"global_load_dwordx4 {vr(GW + 4 * k, 4)}, v66, s[36:37] offset:{256 * k}")


def gate_finish(vm):
    a("v_mov_b32 v64, 0")
    for k in range(20):
        a(f"v_dot2_f32_bf16 v64, v{GX + k}, v{GW + k}, v64")
    a("s_nop 2")
    for sh in (8, 4, 2, 1):
        a(f"v_add_f32_dpp v64, v64, v64 row_ror:{sh} row_mask:0xf bank_mask:0xf")
    a(f"""
    v_cvt_pk_bf16_f32 v64, v64, v64
    v_and_b32 v64, 0xffff0000, v64
    v_mul_f32 v64, {f32(-1.4426950408889634)}, v64
    v_exp_f32 v64, v64
    v_add_f32 v64, 1.0, v64
    v_rcp_f32 v64, v64
    v_cvt_pk_bf16_f32 v64, v64, v64
    v_and_b32 v64, 0xffff0000, v64
    s_mov_b32 s10, {G_OFF}
    s_mov_b32 s12, 0x10001
    s_mov_b32 s13, 0x10001
    s_mov_b64 exec, s[12:13]
    """)
    vm.issue("pst", f"buffer_store_dword v64, {VPS}, {WSRD}, s10 offen sc1")
    a("s_mov_b64 exec, -1")


def late_addr():
    L = f"""
    s_lshr_b32 {TB}, {XCD}, 1
    s_lshl_b32 {TB}, {TB}, 3
    s_lshr_b32 s10, {J}, 2
    s_add_u32 {TB}, {TB}, s10
    s_and_b32 {CS}, {XCD}, 1
    s_lshl_b32 {CS}, {CS}, 2
    s_and_b32 s10, {J}, 3
    s_add_u32 {CS}, {CS}, s10
    s_mul_i32 s10, {CS}, 5120
    v_add_u32 v2, s10, {L16}
    v_add_u32 v4, 4096, v2
    s_mul_i32 {WSO}, {WAVE}, {14 * 40960}
    s_mul_i32 {HSO}, {WAVE}, {14 * 4096}
    s_add_u32 s56, s42, {W2F} @s_addc_u32 s57, s43, 0
    s_mov_b32 s58, {54 * 40960}
    s_mov_b32 s59, 0x20000
    s_mul_i32 s10, {WAVE}, 14
    v_lshrrev_b32 {VWFL}, 2, {LANE}
    v_min_u32 {VWFL}, 13, {VWFL}
    v_add_u32 {VWFL}, s10, {VWFL}
    v_min_u32 {VWFL}, 53, {VWFL}
    v_lshlrev_b32 {VWFL}, 5, {VWFL}
    v_and_b32 v6, 3, {LANE}
    v_lshl_add_u32 {VWFL}, v6, 2, {VWFL}
    s_and_b32 s10, {XCD}, 1
    s_lshl_b32 s10, s10, 4
    s_add_u32 s10, s10, {WFLAG}
    v_add_u32 {VWFL}, s10, {VWFL}
    s_mul_i32 s10, {WAVE}, 7
    v_min_u32 {VHFL}, 6, {LANE}
    v_add_u32 {VHFL}, s10, {VHFL}
    v_min_u32 {VHFL}, 26, {VHFL}
    v_lshlrev_b32 {VHFL}, 2, {VHFL}
    s_lshl_b32 s10, {TB}, 7
    v_add_u32 {VHFL}, s10, {VHFL}
    v_lshrrev_b32 v6, 3, v0
    v_mul_u32_u24 {VUG}, 40960, v6
    v_and_b32 v7, 7, {LANE}
    v_lshl_add_u32 {VUG}, v7, 4, {VUG}
    v_and_b32 v5, 1, {LANE}
    v_mul_u32_u24 {VUL}, {CHP}, v5
    v_lshl_add_u32 {VUL}, v6, 6, {VUL}
    v_lshrrev_b32 v7, 1, v7
    v_lshl_add_u32 {VUL}, v7, 4, {VUL}
    """.strip().replace("\n", "|").replace("@", "\n").split("|")
    for k in range(4):
        L += [f"s_add_u32 s10, {WAVE}, {k}", "s_and_b32 s10, s10, 3", "s_lshl_b32 s10, s10, 10", f"v_add_u32 {HV[k]}, s10, {L16}"]
    return L


def pair_addr():
    a(f"""
    s_lshr_b32 s10, {CP}, 5
    s_lshl_b32 s10, s10, 8
    s_add_u32 s10, s10, {UFLAG}
    v_lshl_add_u32 {VUFL}, {LANE}, 2, s10
    s_lshl_b32 {ULO}, {CP}, 7
    s_add_u32 {ULO}, {ULO}, {UT}
    s_mul_i32 {CHB}, {WT}, {CHP}
    s_add_u32 {CHB}, {CHB}, {CPB}
    """)


TW, TR = 58, 62
PAR = 208


def kgen_addr():
    return f"""
    s_mul_i32 s10, {WF_}, {L_KO - L_KE}
    s_add_u32 s10, s10, {CHB}
    s_add_u32 s10, s10, {L_KE}
    v_lshl_add_u32 v{TW}, {LANE}, 2, s10
    v_add_u32 v{TW + 1}, {4 * TP}, v{TW}
    v_add_u32 v{TW + 2}, {8 * TP}, v{TW}
    v_add_u32 v{TW + 3}, {12 * TP}, v{TW}
    v_mul_u32_u24 v{TR}, {TP}, {L15}
    v_lshl_add_u32 v{TR}, {G4}, 4, v{TR}
    v_add_u32 v{TR}, s10, v{TR}
    s_lshl_b32 s10, {WF_}, 8
    s_add_u32 s10, s10, {CHB}
    v_lshl_add_u32 v70, {LANE}, 2, s10
    ds_write_b32 v70, {ZERO} offset:{L_U}
    s_mul_i32 s10, {WAVE}, 3072
    s_add_u32 s10, s10, {KCB}
    v_lshrrev_b32 v70, 1, {G4}
    v_and_b32 v71, 1, {G4}
    v_lshlrev_b32 v228, 9, v70
    v_lshl_add_u32 v228, v71, 4, v228
    v_lshl_add_u32 v228, {L15}, 5, v228
    v_add_u32 v228, s10, v228
    v_lshlrev_b32 v73, 8, {G4}
    v_lshlrev_b32 v229, 4, {L15}
    v_lshlrev_b32 v230, 3, {L15}
    v_cmp_gt_u32 vcc, 2, {G4}
    v_add_u32 v231, s10, v73
    v_mov_b32 v78, 0x80
    v_cndmask_b32 v229, v230, v229, vcc
    v_cndmask_b32 v78, v78, 8, vcc
    v_add_u32 v229, v231, v229
    v_add_u32 v230, v229, v78
    v_lshl_add_u32 v231, {L15}, 2, v231
    v_or_b32 v70, {WF_}, {LANE}
    v_cmp_eq_u32 vcc, 0, v70
    v_mov_b32 v217, 0
    v_mov_b32 v218, 0
    v_mov_b32 v219, 0
    v_cndmask_b32 v232, 0, 1.0, vcc
    """.strip().split("\n")


def kgen_sections():
    L2E_HI = struct.unpack("<f", struct.pack("<f", 1.4426950408889634))[0]
    L2E_LO = 1.4426950408889634 - L2E_HI
    S = [[]]

    def e(t):
        S[-1].extend(x.strip() for x in t.strip().split("\n"))

    R_, Z8, G1, GC, T1, O1 = 32, 34, 36, 38, 40, 42
    P = lambda k: 44 + 2 * (k - 1)
    RBF, QA, D = 192, [120, 136], [216, 220, 224]
    e(f"s_mov_b32 s12, {f32(L2E_HI)}\ns_mov_b32 s13, {f32(L2E_LO)}")
    e(f"v_lshlrev_b32 v70, 16, v{PAR + 4}\nv_lshlrev_b32 v71, 16, v{PAR}")
    for t in ("v_mul_f32 v{a}, s12, v{x}", "v_fma_f32 v{b}, v{x}, s12, -v{a}", "v_exp_f32 v{a}, v{a}", "v_fma_f32 v{b}, v{x}, s13, v{b}",
              "v_mul_f32 v{b}, " + f32(0.6931471805599453) + ", v{b}", "v_fma_f32 v{a}, v{a}, v{b}, v{a}"):
        for i in range(2):
            e(t.format(a=72 + i, b=74 + i, x=70 + i))
    e(f"""
    v_cvt_pk_bf16_f32 v71, v72, v73
    v_lshlrev_b32 v70, 16, v71
    v_and_b32 v71, 0xffff0000, v71
    v_mul_f32 v71, v71, v70
    v_mul_f32 v71, {f32(-1.4426950408889634)}, v71
    v_lshlrev_b32 v72, 16, v{PAR + 1}
    v_mul_f32 v72, v72, v70
    v_mul_f32 v72, 0.15915494, v72
    v_add_f32 v73, v70, v70
    v_lshlrev_b32 v74, 16, v{PAR + 2}
    v_lshlrev_b32 v75, 16, v{PAR + 3}
    v_mul_f32 v{R_}, v74, v73
    v_mul_f32 v{R_ + 1}, -v75, v73
    v_mul_f32 v76, {f32(8.0)}, v71
    v_mul_f32 v77, {f32(128.0)}, v71
    v_mul_f32 v79, {f32(8.0)}, v72
    v_mul_f32 v80, {f32(128.0)}, v72
    v_exp_f32 v76, v76
    v_exp_f32 v77, v77
    v_exp_f32 v78, v71
    v_fract_f32 v79, v79
    v_fract_f32 v80, v80
    v_fract_f32 v81, v72
    v_cos_f32 v82, v79
    v_sin_f32 v83, v79
    v_cos_f32 v84, v80
    v_sin_f32 v85, v80
    v_cos_f32 v86, v81
    v_sin_f32 v87, v81
    v_lshlrev_b32 v74, 16, v{PAR + 5}
    v_mul_f32 v{Z8}, v76, v82
    v_mul_f32 v{Z8 + 1}, -v76, v83
    v_mul_f32 v{G1}, v77, v84
    v_mul_f32 v{G1 + 1}, v77, v85
    v_mul_f32 v{P(1)}, v78, v86
    v_mul_f32 v{P(1) + 1}, v78, v87
    v_mul_f32 v{D[0]}, v232, v74
    """)
    st = {"n": 0}

    def put(row, reg, last=False):
        t = 88 + (st["n"] & 3)
        st["n"] += 1
        e(f"v_mov_b32 v{t}, 0x3f80" if reg is None else f"v_cvt_pk_bf16_f32 v{t}, v{reg}, v{reg + 1}")
        if row & 1:
            e(f"ds_write2_b32 v{TW + row // 4}, v{t - 1}, v{t} offset0:{((row - 1) % 4) * TP // 4} offset1:{(row % 4) * TP // 4}")
        elif last:
            e(f"ds_write_b32 v{TW + row // 4}, v{t} offset:{(row % 4) * TP}")
            st["n"] += 1

    def cm(out, x, y):
        e(f"v_pk_mul_f32 {vr(T1, 2)}, {vr(x, 2)}, {vr(y, 2)} op_sel:[0,0] op_sel_hi:[1,0]")
        e(f"v_pk_fma_f32 {vr(out, 2)}, {vr(x, 2)}, {vr(y, 2)}, {vr(T1, 2)} op_sel:[1,1,0] op_sel_hi:[0,1,1] neg_lo:[1,0,0]")

    def rd(base):
        for ks in range(4):
            e(f"ds_read_b128 {vr(base + 4 * ks, 4)}, v{TR} offset:{64 * ks}")

    def mm(d, q, zero):
        for ks in range(4):
            e(f"v_mfma_f32_16x16x32_bf16 {vr(d, 4)}, {vr(q + 4 * ks, 4)}, {vr(RBF + 4 * ks, 4)}, {'0' if (zero and ks == 0) else vr(d, 4)}")

    S.append([])
    for x in range(16):
        put(x, R_)
        if x < 15:
            cm(R_, R_, Z8)
    rd(RBF)
    S.append([])
    put(0, None)
    for k in range(1, 8):
        put(k, P(k))
        if k < 7:
            cm(P(k + 1), P(k), P(1))
    put(8, G1)
    cm(GC, G1, G1)
    for k in range(1, 8):
        cm(O1, G1, P(k))
        put(8 + k, O1)
    S.append([])
    rd(QA[0])
    row = 0
    for i in range(2, 8):
        put(row, GC)
        row += 1
        for k in ((2, 4, 6) if i < 4 else (4,)):
            cm(O1, GC, P(k))
            put(row, O1)
            row += 1
        cm(GC, GC, G1)
        if i == 3:
            e("s_waitcnt lgkmcnt(4)")
            mm(D[0], QA[0], False)
    S.append([])
    rd(QA[1])
    for i in range(8, 17):
        put(i - 8, GC, last=(i == 16))
        if i < 16:
            cm(GC, GC, G1)
    rd(QA[0])
    e(f"ds_write_b128 v228, {vr(D[0], 4)}\ns_waitcnt lgkmcnt(10)")
    mm(D[1], QA[1], True)
    e("s_waitcnt lgkmcnt(0)")
    mm(D[2], QA[0], True)
    e(f"ds_write_b64 v229, {vr(D[1], 2)} offset:1024\nds_write_b64 v230, {vr(D[1] + 2, 2)} offset:1024")
    for j in range(4):
        e(f"ds_write_b32 v231, v{D[2] + j} offset:{2048 + 64 * j}")
    return S


def emit_mixed(vm, lines, ops, every):
    for n, l in enumerate(lines):
        a(l)
        if ops and n % every == every - 1:
            emit_op(vm, ops.pop(0))


def expansion():
    E = {3: 36, 2: 40, 1: 44, 0: 48}
    F = {3: 192, 2: 196, 1: 200, 0: 204}
    A = f"""
    s_mul_i32 s10, {WT}, 6144
    s_add_u32 s10, s10, {KCB}
    v_sub_u32 v32, 63, {LANE}
    v_lshl_add_u32 v33, v32, 3, s10
    v_mov_b32 v53, s10
    s_lshl_b32 s12, {WF_}, 2
    s_sub_u32 s10, s10, s12
    v_lshl_add_u32 v34, v32, 4, s10
    v_add_u32 v35, 3072, v34
    """.strip().split("\n")
    for h, R in enumerate((E, F)):
        for s, idx in ((3, 512), (2, 384), (1, 256)):
            A += [f"ds_read_b64 {vr(R[s], 2)}, v33 offset:{3072 * h + 4 * idx}", f"ds_read_b32 v{R[s] + 2}, v33 offset:{3072 * h + 4 * idx + 8}"]
        A += [f"ds_read2_b32 {vr(R[0], 2)}, v{34 + h} offset0:1 offset1:2", f"ds_read2_b32 {vr(R[0] + 2, 2)}, v{34 + h} offset0:3 offset1:4"]
    A += ["ds_read2st64_b32 v[208:209], v53 offset0:0 offset1:12"]
    B = f"""
    s_mul_i32 s10, {WF_}, {L_KO - L_KE}
    s_add_u32 s10, s10, {CHB}
    s_add_u32 s10, s10, {L_KE}
    v_lshl_add_u32 v32, {LANE}, 5, s10
    v_lshl_add_u32 v33, {LANE}, 4, s10
    v_lshl_add_u32 v34, {LANE}, 3, s10
    v_lshl_add_u32 v35, {LANE}, 2, s10
    s_sub_u32 s12, 0, {WF_}
    s_mov_b32 s13, s12
    """.strip().split("\n")
    for s in (3, 2, 1, 0):
        B.append(f"v_pk_add_f32 {vr(E[s], 2)}, {vr(E[s], 2)}, {vr(F[s], 2)}")
        B.append(f"v_add_f32 v{E[s] + 2}, v{E[s] + 2}, v{F[s] + 2}" if s else f"v_pk_add_f32 {vr(E[0] + 2, 2)}, {vr(E[0] + 2, 2)}, {vr(F[0] + 2, 2)}")
    B += ["v_add_f32 v208, v208, v209", "v_mul_f32 v208, v232, v208"]
    t = 192
    for s, l0, Bn, step in ((3, 1024, 16, 8), (2, 512, 8, 4), (1, 256, 4, 2)):
        val = lambda x: E[s] + (bf16_round_int(l0 + 64 + x) - (l0 + 64)) // step
        for m in range(Bn // 2):
            src = []
            for k in range(2):
                e, o = val(Bn - k - 2 * m), val(Bn - 1 - k - 2 * m)
                if e != o:
                    B.append(f"v_cndmask_b32 v52, v{e}, v{o}, s[12:13]")
                    e = 52
                src.append(e)
            B.append(f"v_cvt_pk_bf16_f32 v{t + m}, v{src[0]}, v{src[1]}")
        t += Bn // 2
    B += [f"v_cvt_pk_bf16_f32 v{t}, v{E[0] + 3}, v{E[0] + 2}", f"v_cvt_pk_bf16_f32 v{t + 1}, v{E[0] + 1}, v{E[0]}",
          f"v_cvt_pk_bf16_f32 v208, v208, {ZERO}",
          "ds_write_b128 v32, v[192:195]", "ds_write_b128 v32, v[196:199] offset:16", "ds_write_b128 v33, v[200:203] offset:2048",
          "ds_write_b64 v34, v[204:205] offset:3072", "ds_write_b64 v34, v[206:207] offset:3584", "ds_write_b32 v35, v208 offset:4096"]
    return A, B


WSLOT = [vr(4 * i, 4, "a") for i in range(64)] + [vr(224 + 4 * i, 4) for i in range(6)]


def wload_ops():
    L = []
    for i in range(14):
        for dt in range(5):
            post = f"s_add_u32 {WSO}, {WSO}, 40960" if dt == 4 else None
            L.append((f"buffer_load_dwordx4 {WSLOT[5 * i + dt]}, {'v4' if dt == 4 else 'v2'}, {SRDC}, {WSO} offen offset:{1024 * (dt & 3)} sc1", f"W{i}", post))
    return L


def emit_op(vm, op):
    vm.issue(op[1], op[0])
    if op[2]:
        a(op[2])


def uload_ops():
    return [(f"buffer_load_dwordx4 {vr(24 + 4 * n, 4)}, {VUG}, {WSRD}, {ULO} offen sc1", "u",
             f"s_add_u32 {ULO}, {ULO}, {32 * 40960}" if n == 0 else None) for n in range(2)]


NEARLY, NGAP = 26, 44
LOOKAT, CHECKAT = 11, 13

vmA = VM(a)
a(f"s_mov_b32 {CP}, s2\ns_mov_b32 {CPB}, {CB}")
param_addr()
g1_setup_a()
a("s_waitcnt lgkmcnt(0)")
param_loads(vmA)
g1_setup_b()
a(f"""
s_mov_b32 s44, s42
s_mov_b32 s45, s43
s_mov_b32 s30, s16
s_mov_b32 s31, s17
s_lshl_b32 s{XS}, {D0}, 7
s_mul_i32 s{WSS}, {D0}, {64 * 3456}
""")
stamp(7)
emit_dma(vmA, dmax(0) + dmaw(0))
a("s_cmp_ge_u32 s2, 128\ns_cbranch_scc1 L_a_gate")
a(f"""
s_cmp_lt_u32 s2, 120
s_cbranch_scc1 L_a_notag
s_cmp_lg_u32 {WAVE}, 0
s_cbranch_scc1 L_a_notag
s_memrealtime s[12:13]
s_waitcnt lgkmcnt(0)
s_or_b32 s12, s12, 1
v_mov_b32 v40, s12
v_mov_b32 v41, 0
s_mov_b64 exec, 1
global_atomic_cmpswap {ZERO}, v[40:41], {DBG} sc1
s_mov_b64 exec, -1
L_a_notag:
""")
srd(56, 34, 35, None, 1728 * 1280)
q0 = list(vmA.q)
a(f"""
s_lshr_b32 s9, s2, 1
s_mul_i32 s9, s9, 40960
s_and_b32 s12, s2, 1
s_mul_i32 s13, s12, 640
s_add_u32 s13, s13, s9
s_mul_i32 s10, {WAVE}, 10240
s_add_u32 s13, s13, s10
s_mul_i32 s66, {WAVE}, 5120
v_lshrrev_b32 v7, 3, {LANE}
""")
for m in range(5):
    a(f"""
    v_add_u32 v42, {8 * m}, v7
    v_mul_u32_u24 v42, 13, v42
    v_lshrrev_b32 v42, 6, v42
    v_and_b32 v43, 6, v42
    v_xor_b32 v43, v43, {LANE}
    v_mul_u32_u24 v42, 640, v42
    v_lshl_add_u32 v42, v43, 4, v42
    s_add_u32 m0, s66, {L_W2 + 1024 * m}
    s_add_u32 s10, s13, {1024 * m}
    """)
    vmA.issue("pre", f"buffer_load_dwordx4 v42, {SRDC}, s10 offen lds")
for m in range(5):
    vmA.issue("pre", f"buffer_load_dword {JUNK}, {ZERO}, {SRDC}, s58 offen")
a(f"""
s_mul_i32 s12, s12, 20480
s_add_u32 s12, s12, s9
s_add_u32 s12, s12, {W2F}
s_lshl_b32 s10, {WAVE}, 10
s_add_u32 s12, s12, s10
s_cmp_lt_u32 s2, 108
s_cselect_b32 s10, 0, {OOB}
v_mov_b32 {VPF}, s10
s_add_u32 s12, s12, s10
v_add_u32 {VPS}, s12, {L16}
s_lshl_b32 {PF2}, s2, 4
s_lshl_b32 s10, {WAVE}, 2
s_add_u32 {PF2}, {PF2}, s10
s_add_u32 {PF2}, {PF2}, {WFLAG}
v_lshrrev_b32 v40, 2, {LANE}
v_mul_u32_u24 v234, 640, v40
v_bfe_u32 v40, {LANE}, 3, 2
v_xor_b32 v40, {WAVE}, v40
v_lshl_add_u32 v234, v40, 5, v234
v_and_b32 v40, 3, {LANE}
v_lshl_add_u32 v234, v40, 3, v234
v_add_u32 v234, {L_W2}, v234
s_branch L_a_join
L_a_gate:
""")
q1 = list(vmA.q)
vmA.q = list(q0)
gate_loads(vmA)
a("L_a_join:")
assert vmA.q == q1
for D in range(1, 4):
    for l in soff(D):
        a(l)
g1_setup_c()
a(f"s_mov_b32 {KCB}, {L_KC}")
pair_addr()
for l in kgen_addr():
    a(l)
KS = kgen_sections()
KSPLIT = int([x for x in OPT if x.startswith("ks")][0][2:]) if any(x.startswith("ks") for x in OPT) else 2
emit_dma(vmA, dmaw(1))
pend = dmax(1) + dmaw(2) + dmaw(3)
if KSPLIT:
    vmA.wait("par")
stamp(8)
for sec in KS[:KSPLIT]:
    for l in sec:
        a(l)
    emit_dma(vmA, pend[:4])
    pend = pend[4:]
ut_step(vmA, 100)
emit_dma(vmA, pend)
stamp(9)


def prep_block(vm):
    a("s_cmp_ge_u32 s2, 128\ns_cbranch_scc1 L_a_gate2")
    for aa in range(5):
        a(f"ds_read_b64_tr_b16 {vr(68 + 4 * aa, 2)}, v234 offset:{128 * aa}\nds_read_b64_tr_b16 {vr(70 + 4 * aa, 2)}, v234 offset:{128 * aa + 10240}")
    q0 = list(vm.q)
    for aa in range(5):
        a(f"s_waitcnt lgkmcnt({8 - 2 * aa})\ns_mov_b32 s10, {4096 * aa}")
        vm.issue("pst", f"buffer_store_dwordx4 {vr(68 + 4 * aa, 4)}, {VPS}, {WSRD}, s10 offen sc1")
    a("s_branch L_a_join2\nL_a_gate2:")
    q1 = list(vm.q)
    vm.q = list(q0)
    gate_finish(vm)
    for m in range(4):
        vm.issue("pst", f"buffer_load_dword {JUNK}, {ZERO}, {WSRD}, s46 offen")
    assert vm.q == q1
    a("L_a_join2:")


def gemm1(vm):
    a("L_g1_loop:")
    ACC = 64
    WF, XF = [128, 160], [144, 176]

    def reads(ks):
        s = ks & 1
        L = []
        for i in range(4):
            L.append(f"ds_read_b128 {vr(XF[s] + 4 * i, 4)}, v{VXR[s]} offset:{XB + ((ks >> 1) % 3) * 16384 + 2048 * i}")
            L.append(f"ds_read_b64_tr_b16 {vr(WF[s] + 4 * i, 2)}, v{VWR[i]} offset:{(ks % NWS) * 8192}")
            L.append(f"ds_read_b64_tr_b16 {vr(WF[s] + 4 * i + 2, 2)}, v{VWR[i]} offset:{(ks % NWS) * 8192 + 1024}")
        return L

    vm.wait("x0", "w0", "pre", extra="lgkmcnt(0)")
    a("s_barrier")
    stamp(1)
    prep_block(vm)
    for l in reads(0):
        a(l)
    emit_dma(vm, dmax(2) + dmaw(4) + dmaw(5))
    misc = [l for D in range(4, 10) for l in soff(D)] + late_addr()
    ops = uload_ops() + wload_ops()[:NEARLY]
    for ks in range(20):
        s = ks & 1
        if ks < 19:
            vm.wait(f"x{(ks + 1) >> 1}", f"w{ks + 1}", *(["look"] if ks == CHECKAT else []), *(["pst"] if ks == 3 else []), *(["ut"] if ks == 1 else []), extra="lgkmcnt(0)")
            a("s_barrier")
        else:
            a("s_waitcnt lgkmcnt(0)")
        if ks in (5, 10, 15) and "g2st" not in OPT:
            stamp(9 + ks // 5)
        if ks == 1:
            get_tag()
            flag_store(vm, UFO, VUT)
        if ks == 3:
            flag_store(vm, PF2, VPF)
        if ks == CHECKAT:
            poll(VWFL, LOOK1, first_issued=True)
            poll(VUFL, LOOK2, first_issued=True)
        rd_ = reads(ks + 1) if ks < 19 else []
        dm = []
        if ks + NWS < 20:
            dm += dmaw(ks + NWS)
        if ks >= 1:
            D = (ks - 1) // 2 + 3
            if D < 10:
                dm += dmax(D, (0, 1) if ks & 1 else (2, 3))
        n = 0
        for ft in range(4):
            for tt in range(4):
                d = vr(ACC + 16 * ft + 4 * tt, 4)
                slot = n % 4 == 1 if ks < 15 else n % 3 == 1
                g = dm.pop(0) if (dm and slot) else None
                if g:
                    a(g[0])
                a(f"v_mfma_f32_16x16x32_bf16 {d}, {vr(WF[s] + 4 * ft, 4)}, {vr(XF[s] + 4 * tt, 4)}, {'0' if ks == 0 else d}")
                if g:
                    vm.issue(g[2], g[1])
                elif ks >= CHECKAT and ops and (slot or ks == 19):
                    emit_op(vm, ops.pop(0))
                elif rd_:
                    a(rd_.pop(0))
                    if rd_ and n % 4 == 2:
                        a(rd_.pop(0))
                elif misc:
                    for _ in range(2):
                        if misc:
                            a(misc.pop(0))
                if ks == LOOKAT and n == 15:
                    assert not misc
                    vm.issue("look", f"buffer_load_dword {LOOK1}, {VWFL}, {WSRD}, 0 offen sc1")
                    vm.issue("look", f"buffer_load_dword {LOOK2}, {VUFL}, {WSRD}, 0 offen sc1")
                n += 1
        assert not dm and not rd_
    assert not ops
    stamp(2)
    a(f"""
    s_lshl_b32 {RB}, {RB}, 1
    s_add_u32 {RB}, {RB}, {WT}
    s_lshl_b32 {CT}, {CT}, 1
    s_add_u32 {CT}, {CT}, {WF_}
    s_mul_i32 s16, {RB}, {54 * 4096}
    s_lshl_b32 s10, {CT}, 13
    s_add_u32 s16, s16, s10
    s_add_u32 s16, s16, {HF}
    s_add_u32 s17, s16, 4096
    s_lshl_b32 {HFO}, {RB}, 7
    s_lshl_b32 s10, {CT}, 2
    s_add_u32 {HFO}, {HFO}, s10
    s_cmp_lt_u32 {CT}, 27
    s_cselect_b32 s10, 0, {OOB}
    v_add_u32 {VUT}, s10, {L16}
    """)
    t = 160
    for m in range(2):
        for tt in range(4):
            for h in range(2):
                r = ACC + 16 * (2 * m + h) + 4 * tt
                a(f"v_cvt_pk_bf16_f32 v{t + 2 * h}, v{r}, v{r + 1}\nv_cvt_pk_bf16_f32 v{t + 2 * h + 1}, v{r + 2}, v{r + 3}")
            for k in range(4):
                a(f"v_pk_max_i16 v{t + k}, v{t + k}, 0")
            vm.issue("hst", f"buffer_store_dwordx4 {vr(t, 4)}, {VUT}, {WSRD}, s{16 + m} offen offset:{1024 * tt} sc1")
            t += 4


gemm1(vmA)
gops = wload_ops()[NEARLY:NEARLY + NGAP]
exA, exB = expansion()
rest = [l for sec in KS[KSPLIT:] for l in sec]
hflag_done = False
if rest:
    cut = min(len(rest), 110)
    emit_mixed(vmA, rest[:cut], gops, 14)
    vmA.wait("hst")
    flag_store(vmA, HFO, VUT)
    hflag_done = True
    emit_mixed(vmA, rest[cut:], gops, 14)
    a("s_waitcnt lgkmcnt(0)\ns_barrier")
emit_mixed(vmA, exA + ["s_waitcnt lgkmcnt(0)"] + exB, gops, 14)

HSLOT = [192, 208, 88, 104, 120, 136]
NH = 6


def hload(vm, i, k):
    vm.issue(f"h{i}", f"buffer_load_dwordx4 {vr(HSLOT[i % NH] + 4 * k, 4)}, {HV[k]}, {SRDB}, {HSO} offen sc1")
    if k == 3:
        a(f"s_add_u32 {HSO}, {HSO}, 4096")


def conv(vm, ops, main):
    if main:
        a(f"v_add_u32 v17, {CPB}, {VUL}")
        vm.wait("u")
        for n in range(2):
            a(f"ds_write_b128 v17, {vr(24 + 4 * n, 4)} offset:{L_U + 512 + 2048 * n}")
    a(f"""
    s_lshl_b32 s10, {WF_}, 6
    s_sub_u32 s10, {CHB}, s10
    v_and_b32 v19, 1, {L15}
    v_mul_u32_u24 v19, {L_KO - 2 - L_KE}, v19
    v_lshl_add_u32 v19, {G4}, 4, v19
    v_lshlrev_b32 v18, 1, {L15}
    v_sub_u32 v19, v19, v18
    v_add_u32 v19, s10, v19
    v_add_u32 v20, {L_KE + 4064 - 512}, v19
    v_add_u32 v21, {L_KE + 4064 - 512 * 3}, v19
    v_add_u32 v22, {L_KE + 4064 - 512 * 5}, v19
    v_add_u32 v23, {L_KE + 4064 - 512 * 7}, v19
    v_lshlrev_b32 v19, 5, {L15}
    v_lshl_add_u32 v19, {G4}, 4, v19
    v_add_u32 v19, s10, v19
    v_add_u32 v19, {L_U + 480}, v19
    s_waitcnt lgkmcnt(0)
    s_barrier
    """)
    if main:
        stamp(3)
    ACC = 32
    AS, BS = [64, 128], [96, 160]

    def loads(s):
        L = []
        for m in range(8):
            L.append(f"ds_read_b128 {vr(BS[s] + 4 * m, 4)}, v19 offset:{512 * m}")
        for q in range(8):
            o = 128 if q % 2 == 0 else 0
            r = AS[s] + 4 * q
            L.append(f"ds_read2_b32 {vr(r, 2)}, v{20 + q // 2} offset0:{o} offset1:{o + 1}")
            L.append(f"ds_read2_b32 {vr(r + 2, 2)}, v{20 + q // 2} offset0:{o + 2} offset1:{o + 3}")
        for r in range(19, 24):
            L.append(f"v_subrev_u32 v{r}, 128, v{r}")
        return L

    for l in loads(0):
        a(l)
    misc = f"""
    s_lshl_b32 s10, {WAVE}, 12
    s_add_u32 s10, s10, {L_W2}
    v_add_u32 v17, s10, {L16}
    s_xor_b32 s10, {WAVE}, 1
    s_lshl_b32 s10, s10, 12
    s_add_u32 s10, s10, {L_W2}
    v_add_u32 v18, s10, {L16}
    v_lshlrev_b32 v28, 5, {L15}
    v_lshrrev_b32 v29, 1, {G4}
    v_lshl_add_u32 v28, v29, 4, v28
    v_and_b32 v29, 1, {G4}
    v_lshl_add_u32 v28, v29, 9, v28
    s_lshl_b32 s16, {CP}, 13
    s_add_u32 s16, s16, {W2K}
    s_add_u32 s16, s16, {AG}
    s_mul_i32 {PFO}, {WF_}, 2560
    s_lshl_b32 s10, {CP}, 3
    s_add_u32 {PFO}, {PFO}, s10
    s_lshl_b32 s10, {WT}, 2
    s_add_u32 {PFO}, {PFO}, s10
    s_add_u32 {PFO}, {PFO}, {AFLAG}
    """.strip().split("\n")
    every = max(3, min(8, 120 // max(1, len(ops))))
    for p in range(4):
        s = p & 1
        nxt = loads(s ^ 1) if p < 3 else []
        a("s_waitcnt lgkmcnt(0)")
        if p == 1 and (not main or not hflag_done):
            vm.wait("hst")
            flag_store(vm, HFO, VUT)
        n = 0
        for q in range(8):
            for j in range(q, 8):
                c = "0" if (p == 0 and q == 0) else vr(ACC + 4 * j, 4)
                a(f"v_mfma_f32_16x16x32_bf16 {vr(ACC + 4 * j, 4)}, {vr(AS[s] + 4 * q, 4)}, {vr(BS[s] + 4 * (j - q), 4)}, {c}")
                if nxt:
                    a(nxt.pop(0))
                elif misc:
                    a(misc.pop(0))
                if ops and n % every == every - 1:
                    emit_op(vm, ops.pop(0))
                if p == 3 and n == 30 and main:
                    vm.issue("look", f"buffer_load_dword {LOOK1}, {VHFL}, {WSRD}, 0 offen sc1")
                n += 1
        assert not nxt
    assert not misc and not ops
    if main:
        stamp(4)
    l1, l2 = a.newlabel("Lx"), a.newlabel("Lx")
    a(f"s_cmp_eq_u32 {WF_}, 1\ns_cbranch_scc1 {l1}\ns_nop 5")
    for j in range(4):
        a(f"ds_write_b128 v17, {vr(ACC + 16 + 4 * j, 4)} offset:{1024 * j}")
    a(f"s_branch {l2}\n{l1}:\ns_nop 5")
    for j in range(4):
        a(f"ds_write_b128 v17, {vr(ACC + 4 * j, 4)} offset:{1024 * j}")
    a("s_waitcnt lgkmcnt(0)")
    for j in range(8):
        a(f"v_pk_add_f32 {vr(ACC + 2 * j, 2)}, {vr(ACC + 16 + 2 * j, 2)}, 0")
    a(f"{l2}:\ns_waitcnt lgkmcnt(0)\ns_barrier")
    for j in range(4):
        a(f"ds_read_b128 {vr(64 + 4 * j, 4)}, v18 offset:{1024 * j}")
    for j in range(4):
        a(f"s_waitcnt lgkmcnt({3 - j})")
        a(f"v_pk_add_f32 {vr(ACC + 4 * j, 2)}, {vr(ACC + 4 * j, 2)}, {vr(64 + 4 * j, 2)}\nv_pk_add_f32 {vr(ACC + 4 * j + 2, 2)}, {vr(ACC + 4 * j + 2, 2)}, {vr(66 + 4 * j, 2)}")
        a(f"v_cvt_pk_bf16_f32 v{160 + 2 * j}, v{ACC + 4 * j}, v{ACC + 4 * j + 1}\nv_cvt_pk_bf16_f32 v{161 + 2 * j}, v{ACC + 4 * j + 2}, v{ACC + 4 * j + 3}")
    for jp in range(2):
        a(f"v_permlane16_swap_b32 v{160 + 4 * jp}, v{162 + 4 * jp}\nv_permlane16_swap_b32 v{161 + 4 * jp}, v{163 + 4 * jp}")
    for jp in range(2):
        vm.issue("ast", f"buffer_store_dwordx4 {vr(160 + 4 * jp, 4)}, v28, {WSRD}, s16 offen offset:{1024 * jp} sc1")


conv(vmA, gops, True)
a("L_gemm2:")


def gemm2(vm):
    a(f"s_mul_i32 s10, {TB}, {54 * 4096}\ns_add_u32 s10, s10, {HF}")
    srd(52, 42, 43, "s10", 54 * 4096)
    vm.wait("look")
    poll(VHFL, LOOK1, first_issued=True)
    stamp(5)
    ACC = 8
    wrest = wload_ops()[NEARLY + NGAP:]
    for i in range(3):
        for k in range(4):
            hload(vm, i, k)
        if i == 1:
            vm.wait("ast")
            flag_store(vm, PFO, ZERO)
    hq = [(i, k) for i in range(3, 14) for k in range(4)]
    X = 152
    AR = X + 8
    OP = 176
    for i in range(14):
        vm.wait(f"h{i}", f"W{i}", *(["look"] if i == 10 else []))
        if "g2st" in OPT and i in (0, 5, 10):
            stamp(9 + i // 5)
        if i == 10:
            lab = a.newlabel("La")
            a(f"v_cmp_ne_u32 vcc, {TAG}, v{X + 6}\nv_cmp_ne_u32 s[12:13], {TAG}, v{X + 7}\ns_or_b64 vcc, vcc, s[12:13]\ns_cbranch_scc0 {lab}")
            poll(f"v{X + 5}", f"v{X + 6}")
            a(f"v_add_u32 v{X + 5}, 4, v{X + 5}")
            poll(f"v{X + 5}", f"v{X + 6}")
            a(f"{lab}:")
            if "g2st" in OPT:
                stamp(12)
        misc = []
        if i == 7:
            misc = f"""
            s_lshr_b32 s10, {TB}, 4
            s_mul_i32 s10, s10, 2560
            s_mul_i32 s16, {CS}, 320
            s_add_u32 s10, s10, s16
            s_add_u32 s10, s10, {AFLAG}
            v_lshl_add_u32 v{X + 5}, {LANE}, 3, s10
            s_lshl_b32 s10, {TB}, 2
            s_add_u32 s10, s10, {WAVE}
            s_lshl_b32 s10, s10, 4
            s_add_u32 s10, s10, {GFLAG}
            v_and_b32 v{X + 6}, 1, {LANE}
            v_lshl_add_u32 v{X + 6}, v{X + 6}, 3, s10
            v_cmp_gt_u32 vcc, 40, {LANE}
            v_cndmask_b32 v{X + 5}, v{X + 6}, v{X + 5}, vcc
            """.strip().split("\n")
        if i == 8:
            vm.issue("look", f"buffer_load_dwordx2 {vr(X + 6, 2)}, v{X + 5}, {WSRD}, 0 offen sc1")
            misc = f"""
            v_lshrrev_b32 v{X + 2}, 3, {LANE}
            v_and_b32 v{X + 3}, 6, v{X + 2}
            v_and_b32 v{X}, 7, {LANE}
            v_xor_b32 v{X + 3}, v{X + 3}, v{X}
            v_lshlrev_b32 v{X + 2}, 12, v{X + 2}
            v_lshl_add_u32 v{X + 2}, v{X + 3}, 4, v{X + 2}
            s_mul_i32 s16, {CS}, {80 * 4096}
            s_lshl_b32 s10, {TB}, 7
            s_add_u32 s16, s16, s10
            s_add_u32 s16, s16, {AG}
            s_lshl_b32 s17, {TB}, 8
            s_lshl_b32 s10, {WAVE}, 6
            s_add_u32 s17, s17, s10
            s_add_u32 s17, s17, {G_OFF}
            v_lshlrev_b32 v{X + 3}, 2, {L15}
            s_mul_i32 s18, {WAVE}, 20480
            v_add_u32 v{X + 1}, s18, {L16}
            s_mul_i32 s20, {WAVE}, {24 * 4096}
            s_mul_i32 s21, {WAVE}, 3072
            """.strip().split("\n")
        if i == 9:
            for k in range(1, 4):
                misc += [f"s_sub_u32 s10, {WAVE}, {k}", "s_and_b32 s10, s10, 3", "s_mul_i32 s10, s10, 20480", f"v_add_u32 v{X + 19 + k}, s10, {L16}"]
            misc += [f"s_add_u32 s56, s42, s16\ns_addc_u32 s57, s43, 0", f"s_mov_b32 s58, {80 * 4096 - 3968}"]
        if i == 10:
            misc = f"""
            s_lshl_b32 s19, {TB}, 6
            s_lshl_b32 s10, {WAVE}, 4
            s_add_u32 s19, s19, s10
            s_mul_i32 s19, s19, 1280
            s_mul_i32 s10, {CS}, 160
            s_add_u32 s19, s19, s10
            s_mov_b32 s48, s38
            s_mov_b32 s49, s39
            s_mov_b32 s50, {2048 * 1280}
            s_mov_b32 s51, 0x20000
            s_add_u32 s18, s18, 15360
            v_mul_u32_u24 v{X + 7}, {OP}, {L15}
            v_lshl_add_u32 v{X + 7}, {G4}, 3, v{X + 7}
            v_add_u32 v{X + 7}, s18, v{X + 7}
            """.strip().split("\n")
            for m in range(3):
                a(f"s_add_u32 m0, s21, {L_AT + 1024 * m}")
                vm.issue("ag", f"buffer_load_dwordx4 v{X + 2}, {SRDC}, s20 offen sc1 lds")
                a(f"s_add_u32 s20, s20, {8 * 4096}")
            vm.issue("ag", f"buffer_load_dword v{X + 4}, v{X + 3}, {WSRD}, s17 offen sc1")
        if i == 11:
            for n in range(3):
                q, row, c, la, ga = X + 24, X + 25, X + 26, X + 28 + n, X + 32 + n
                misc += f"""
                v_add_u32 v{q}, {64 * n}, {LANE}
                v_mul_u32_u24 v{row}, 205, v{q}
                v_lshrrev_b32 v{row}, 11, v{row}
                v_mul_u32_u24 v{c}, 10, v{row}
                v_sub_u32 v{c}, v{q}, v{c}
                v_lshlrev_b32 v{c}, 4, v{c}
                v_mul_u32_u24 v{la}, {OP}, v{row}
                v_add3_u32 v{la}, v{la}, v{c}, s18
                v_mul_u32_u24 v{ga}, 1280, v{row}
                v_add_u32 v{ga}, v{ga}, v{c}
                """.strip().split("\n")
        if i == 12:
            misc = f"""
            v_lshrrev_b32 v{X + 5}, 2, {LANE}
            v_lshlrev_b32 v{X + 5}, 7, v{X + 5}
            v_bfe_u32 v{X + 6}, {LANE}, 3, 2
            v_xor_b32 v{X + 6}, {WAVE}, v{X + 6}
            v_lshl_add_u32 v{X + 5}, v{X + 6}, 5, v{X + 5}
            v_and_b32 v{X + 6}, 3, {LANE}
            v_lshl_add_u32 v{X + 5}, v{X + 6}, 3, v{X + 5}
            v_add_u32 v{X + 5}, {L_AT}, v{X + 5}
            """.strip().split("\n")
        for k in range(4):
            for dt in range(5):
                d = vr(ACC + 20 * k + 4 * dt, 4)
                a(f"v_mfma_f32_16x16x32_bf16 {d}, {WSLOT[5 * i + dt]}, {vr(HSLOT[i % NH] + 4 * k, 4)}, {'0' if i == 0 else d}")
                for _ in range(2 if i == 11 else 1):
                    if misc:
                        a(misc.pop(0))
                if dt in (1, 4) and hq and (hq[0][0] < i + NH or (hq[0][0] == i + NH and hq[0][1] <= k - (dt != 4))):
                    hload(vm, *hq.pop(0))
                elif dt == 2 and wrest and i >= 2:
                    emit_op(vm, wrest.pop(0))
        assert not misc
    assert not hq and not wrest
    stamp(6)
    for k in range(1, 4):
        for dt in range(5):
            a(f"ds_write_b128 v{X + 1}, {vr(ACC + 20 * k + 4 * dt, 4)} offset:{5120 * (k - 1) + 1024 * dt}")
    GA = 192
    a(f"""
    s_waitcnt vmcnt(0)
    v_sub_f32 v{X + 6}, 1.0, v{X + 4}
    v_cvt_pk_bf16_f32 v{X + 6}, v{X + 6}, v{X + 6}
    v_and_b32 v{X + 6}, 0xffff0000, v{X + 6}
    s_waitcnt lgkmcnt(0)
    s_barrier
    """)
    PR = 88
    for dt in range(5):
        a(f"ds_read_b64_tr_b16 {vr(AR + 2 * dt, 2)}, v{X + 5} offset:{2048 * dt}")
    for k in range(1, 4):
        for dt in range(5):
            a(f"ds_read_b128 {vr(PR + 20 * (k - 1) + 4 * dt, 4)}, v{X + 19 + k} offset:{5120 * (k - 1) + 1024 * dt}")
    a("s_waitcnt lgkmcnt(15)")
    for i in range(10):
        a(f"v_lshlrev_b32 v{GA + 2 * i}, 16, v{AR + i}\nv_and_b32 v{GA + 2 * i + 1}, 0xffff0000, v{AR + i}")
    for i in range(20):
        a(f"v_mul_f32 v{GA + i}, v{X + 4}, v{GA + i}")
    for k in range(3):
        a(f"s_waitcnt lgkmcnt({10 - 5 * k})")
        for i in range(10):
            a(f"v_pk_add_f32 {vr(ACC + 2 * i, 2)}, {vr(ACC + 2 * i, 2)}, {vr(PR + 20 * k + 2 * i, 2)}")
    for i in range(20):
        a(f"v_fma_f32 v{GA + i}, v{X + 6}, v{ACC + i}, v{GA + i}")
    for dt in range(5):
        a(f"v_cvt_pk_bf16_f32 v{AR + 2 * dt}, v{GA + 4 * dt}, v{GA + 4 * dt + 1}\nv_cvt_pk_bf16_f32 v{AR + 2 * dt + 1}, v{GA + 4 * dt + 2}, v{GA + 4 * dt + 3}")
        a(f"ds_write_b64 v{X + 7}, {vr(AR + 2 * dt, 2)} offset:{32 * dt}")
    for n in range(3):
        a(f"ds_read_b128 {vr(PR + 4 * n, 4)}, v{X + 28 + n}")
    for n in range(3):
        a(f"s_waitcnt lgkmcnt({2 - n})")
        if n == 2:
            a("s_mov_b32 exec_hi, 0")
        a(f"buffer_store_dwordx4 {vr(PR + 4 * n, 4)}, v{X + 32 + n}, {SRDA}, s19 offen")
    if DIAG:
        a("s_mov_b64 exec, -1\ns_waitcnt vmcnt(0)")
        stamp(13)
        a(f"""
        s_lshl_b32 s10, s2, 8
        s_lshl_b32 s11, {WAVE}, 6
        s_add_u32 s10, s10, s11
        s_add_u32 s10, s10, {STAMP}
        s_mov_b64 exec, 1
        """)
        for i in range(14):
            a(f"v_mov_b32 v{8 + i}, s{74 + 2 * i}")
        for i in range(4):
            a(f"buffer_store_dwordx4 v[{8 + 4 * i}:{11 + 4 * i}], {ZERO}, {WSRD}, s10 offen offset:{16 * i}")
    a("L_end:\ns_endpgm")


gemm2(vmA)


def typeC():
    vm = VM(a)
    a(f"""
    L_typeC:
    s_getpc_b64 s[12:13]
    L_pc0:
    s_sub_u32 s12, s12, L_pc0-L_code0
    s_subb_u32 s13, s13, 0
    v_lshlrev_b32 v40, 7, v0
    v_min_u32 v40, L_code1-L_code0-4, v40
    global_load_dword {JUNK}, v40, s[12:13]
    v_lshlrev_b32 v40, 7, v0
    v_add_u32 v40, 32768, v40
    v_min_u32 v40, L_code1-L_code0-4, v40
    global_load_dword {JUNK}, v40, s[12:13]
    s_sub_u32 {CP}, s2, 224
    s_mul_i32 {CP}, {CP}, 3
    s_add_u32 {CP}, {CP}, 224
    s_mov_b32 {CPB}, 0
    s_mov_b32 {KCB}, {CB}
    s_lshl_b32 {W2K}, {WAVE}, 11
    v_mov_b32 {VUT}, {OOB}
    s_mov_b32 {HFO}, 0
    v_mov_b32 v253, v0
    """)
    param_addr()
    a("s_waitcnt lgkmcnt(0)\ns_mov_b32 s44, s42\ns_mov_b32 s45, s43\ns_mov_b32 s30, s16\ns_mov_b32 s31, s17")
    param_loads(vm)
    gate_loads(vm)
    for l in late_addr():
        a(l)
    a("s_waitcnt vmcnt(10)\nL_c_kgen:")
    pair_addr()
    for l in kgen_addr() + KS[0]:
        a(l)
    a(f"""
    s_add_u32 s10, {CP}, 1
    s_min_u32 s10, s10, 319
    s_lshl_b32 s66, s10, 9
    v_lshl_add_u32 v68, v253, 1, s66
    s_lshl_b32 s10, s10, 2
    s_lshl_b32 s66, {WT}, 1
    s_add_u32 s10, s10, s66
    v_mov_b32 v69, s10
    """)
    param_loads(vm)
    a(f"s_cmp_lg_u32 {CPB}, 0\ns_cbranch_scc1 L_c_nog\ns_waitcnt vmcnt(6)")
    gate_finish(vm)
    a("L_c_nog:")
    for sec in KS[1:]:
        for l in sec:
            a(l)
    a(f"""
    s_add_u32 {CP}, {CP}, 1
    s_add_u32 {CPB}, {CPB}, {2 * CHP}
    s_add_u32 {KCB}, {KCB}, 12288
    s_waitcnt vmcnt(0)
    s_cmp_lt_u32 {CPB}, {6 * CHP}
    s_cbranch_scc1 L_c_kgen
    global_load_dword {VTAG}, {ZERO}, {DBG} sc1
    """)
    stamp(1)
    a(f"""
    s_sub_u32 {CP}, {CP}, 3
    s_lshr_b32 s10, {CP}, 5
    s_lshl_b32 s10, s10, 8
    s_add_u32 s10, s10, {UFLAG}
    v_lshl_add_u32 v17, {LANE}, 2, s10
    buffer_load_dword {LOOK2}, {VUFL}, {WSRD}, 0 offen sc1
    buffer_load_dword v18, v17, {WSRD}, 0 offen sc1
    """)
    a("s_waitcnt vmcnt(0) lgkmcnt(0)\ns_barrier")
    get_tag()
    flag_store(vm, PF2, VPF)
    poll(VUFL, LOOK2, first_issued=True, nap=8)
    poll("v17", "v18", first_issued=True, nap=8)
    a(f"s_lshl_b32 {ULO}, {CP}, 7\ns_add_u32 {ULO}, {ULO}, {UT}\ns_add_u32 s10, {ULO}, {32 * 40960}")
    for r in range(3):
        a(f"buffer_load_dwordx4 {vr(64 + 8 * r, 4)}, {VUG}, {WSRD}, {ULO} offen offset:{128 * r} sc1")
        a(f"buffer_load_dwordx4 {vr(68 + 8 * r, 4)}, {VUG}, {WSRD}, s10 offen offset:{128 * r} sc1")
    exA, exB = expansion()
    a(f"""
    L_c_exp:
    s_sub_u32 {CPB}, {CPB}, {2 * CHP}
    s_sub_u32 {KCB}, {KCB}, 12288
    s_mul_i32 {CHB}, {WT}, {CHP}
    s_add_u32 {CHB}, {CHB}, {CPB}
    """)
    for l in exA:
        a(l)
    a("s_waitcnt lgkmcnt(0)")
    for l in exB:
        a(l)
    a(f"s_cmp_lg_u32 {CPB}, 0\ns_cbranch_scc1 L_c_exp\ns_waitcnt vmcnt(0)")
    for r in range(3):
        for n in range(2):
            a(f"ds_write_b128 {VUL}, {vr(64 + 8 * r + 4 * n, 4)} offset:{2 * CHP * r + L_U + 512 + 2048 * n}")
    stamp(2)
    W = wload_ops()[:NEARLY + NGAP]
    for r in range(3):
        vm.q = ["hst"]
        if r == 1:
            poll(VWFL, LOOK1, nap=8)
        if r == 2:
            stamp(3)
        conv(vm, [] if r == 0 else W[:35] if r == 1 else W[35:], False)
        if r < 2:
            a(f"""
            s_add_u32 {CP}, {CP}, 1
            s_add_u32 {CHB}, {CHB}, {2 * CHP}
            s_mov_b32 {HFO}, {PFO}
            v_mov_b32 {VUT}, 0
            """)
    stamp(4)
    a(f"buffer_load_dword {LOOK1}, {VHFL}, {WSRD}, 0 offen sc1\ns_waitcnt vmcnt(0)")
    a("s_branch L_gemm2\nL_code1:")


typeC()

body = a.render()
head = open(f"cdna_kernels/{NAME}.s.ref").read().split("; Override launch")[0]
text = head + f"""; Generated by the author's own generator script; single fused kernel, one workgroup per CU.
; @launch grid=(256,1,1) block=(256,1,1) lds=163840
.amdgcn_target "amdgcn-amd-amdhsa--gfx950"
.text
.globl {NAME}_kernel
.p2align 8
.type {NAME}_kernel,@function
{NAME}_kernel:
{body}.section .rodata,"a"
.p2align 6
.amdhsa_kernel {NAME}_kernel
  .amdhsa_next_free_vgpr 512
  .amdhsa_next_free_sgpr 102
  .amdhsa_accum_offset 256
  .amdhsa_group_segment_fixed_size 0
  .amdhsa_kernarg_size 112
  .amdhsa_user_sgpr_count 2
  .amdhsa_user_sgpr_kernarg_segment_ptr 1
  .amdhsa_system_sgpr_workgroup_id_x 1
.end_amdhsa_kernel
"""
open(OUT, "w").write(text)
print("wrote", OUT, "lines", text.count("\n"), "auto nops", a.nops)
```

```python
import sys, struct
from asmlib import Asm, VM

NAME = "gated_mix__ssm_conv_s4d__dense_activation_relu__prompt"
DIAG = "--diag" in sys.argv
OPT = set(x[2:] for x in sys.argv if x.startswith("--"))
OUT = [x for x in sys.argv[1:] if not x.startswith("--")]
OUT = OUT[0] if OUT else f"cdna_kernels/{NAME}.s"

HFLAG, UFLAG, G_OFF, WFLAG, GFLAG, AFLAG = 0x0, 0x1000, 0x2000, 0x5000, 0x5800, 0x6000
UT = 0x10000
W2F = UT + 64 * 40960
HF = W2F + 54 * 40960
AG = HF + 32 * 54 * 4096
STAMP = AG + 160 * 16384
WS_END = STAMP + 512 * 4 * 64
SPIN_LIMIT = 400000
OOB = 0x40000000

XB, WB, CB = 0, 49152, 98304
NWS = 6
L_U, L_KE, L_KO, CHP = 0, 4608, 9280, 13952
L_KC = CB + 2 * CHP
L_W2 = L_KC + 4 * 3072
L_AT = 81920
TP = 288


def f32(x):
    return "0x%08x" % struct.unpack("<I", struct.pack("<f", x))[0]


def vr(b, n=1, f="v"):
    return f"{f}{b}" if n == 1 else f"{f}[{b}:{b + n - 1}]"


a = Asm()
LOGA, AIM, CR, CI, LDT, DSK = "s[18:19]", "s[20:21]", "s[22:23]", "s[24:25]", "s[26:27]", "s[28:29]"
DBG, WSRD = "s[40:41]", "s[44:47]"
SRDA, SRDB, SRDC = "s[48:51]", "s[52:55]", "s[56:59]"
WAVE, TAG, XCD, J = "s3", "s4", "s5", "s6"
RB, CT = "s7", "s8"
W2K, WT, WF_ = "s11", "s14", "s15"
XS, WSS = 16, 26
HFO, W4K, D0, UTO, UFO = "s60", "s62", "s63", "s64", "s65"
CP, CPB, CHB, PFO, PF2 = "s67", "s70", "s61", "s71", "s68"
ULO = "s69"
TB, CS = "s72", "s73"
WSO, HSO = "s36", "s37"
LANE, ZERO = "v1", "v3"
VXS, VWS, VXR, VWR = [236, 237, 238, 239], [240, 241, 242, 243], [244, 245], [246, 247, 248, 249]
L16, VUT, VTAG = "v250", "v251", "v252"
L15, G4 = "v254", "v255"


def stamp(i):
    if DIAG:
        a(f"s_memrealtime s[{74 + 2 * i}:{75 + 2 * i}]\ns_waitcnt lgkmcnt(0)")


def srd(dst, lo, hi, off_s, size):
    if off_s is None:
        a(f"s_mov_b32 s{dst}, s{lo}\ns_mov_b32 s{dst + 1}, s{hi}")
    else:
        a(f"s_add_u32 s{dst}, s{lo}, {off_s}\ns_addc_u32 s{dst + 1}, s{hi}, 0")
    a(f"s_mov_b32 s{dst + 2}, {size}\ns_mov_b32 s{dst + 3}, 0x20000")


def poll(voff, vf, first_issued=False, nap=4):
    lp, chk, done = (a.newlabel(x) for x in ("Lp", "Lc", "Ld"))
    if first_issued:
        a(f"v_cmp_ne_u32 vcc, {TAG}, {vf}\ns_cmp_eq_u64 vcc, 0\ns_cbranch_scc1 {done}")
    a(f"""
    s_mov_b32 s66, 0
    {lp}:
    buffer_load_dword {vf}, {voff}, {WSRD}, 0 offen sc1
    s_waitcnt vmcnt(0)
    v_cmp_ne_u32 vcc, {TAG}, {vf}
    s_cmp_eq_u64 vcc, 0
    s_cbranch_scc1 {done}
    s_sleep {nap}
    s_add_u32 s66, s66, 1
    s_cmp_lt_u32 s66, {SPIN_LIMIT}
    s_cbranch_scc1 {lp}
    {done}:
    """)


def get_tag():
    lp, done = a.newlabel("Lt"), a.newlabel("Ld")
    a(f"""
    v_readfirstlane_b32 {TAG}, {VTAG}
    s_cmp_lg_u32 {TAG}, 0
    s_cbranch_scc1 {done}
    s_mov_b32 s66, 0
    {lp}:
    global_load_dword {VTAG}, {ZERO}, {DBG} sc1
    s_waitcnt vmcnt(0)
    v_readfirstlane_b32 {TAG}, {VTAG}
    s_cmp_lg_u32 {TAG}, 0
    s_cbranch_scc1 {done}
    s_sleep 2
    s_add_u32 s66, s66, 1
    s_cmp_lt_u32 s66, {SPIN_LIMIT}
    s_cbranch_scc1 {lp}
    {done}:
    """)


def flag_store(vm, soff, voff):
    a("s_mov_b64 exec, 1")
    vm.issue("fl", f"buffer_store_dword {VTAG}, {voff}, {WSRD}, {soff} offen sc1")
    a("s_mov_b64 exec, -1")


def dmax(D, ms=range(4)):
    return [(f"s_add_u32 m0, {W4K}, {XB + (D % 3) * 16384 + 1024 * m}",
             f"buffer_load_dwordx4 v{VXS[m]}, {SRDA}, s{XS + D} offen lds", f"x{D}") for m in ms]


def dmaw(ks):
    return [(f"s_add_u32 m0, {W2K}, {WB + (ks % NWS) * 8192 + 1024 * m}",
             f"buffer_load_dwordx4 v{VWS[2 * (ks & 1) + m]}, {SRDB}, s{WSS + (ks >> 1)} offen lds", f"w{ks}") for m in range(2)]


def emit_dma(vm, gs):
    for g in gs:
        a(g[0])
        vm.issue(g[2], g[1])


def soff(D):
    return [f"s_add_u32 s{XS + D}, s{XS + D - 1}, 128\ns_add_u32 s{WSS + D}, s{WSS + D - 1}, {64 * 3456}",
            f"s_cmp_eq_u32 s{XS + D}, 1280\ns_cselect_b32 s{XS + D}, 0, s{XS + D}\ns_cselect_b32 s{WSS + D}, 0, s{WSS + D}"]


def g1_setup_a():
    a(f"""
    s_mul_i32 {RB}, {J}, 37
    s_lshr_b32 {RB}, {RB}, 8
    s_mul_i32 {CT}, {RB}, 7
    s_sub_u32 {CT}, {J}, {CT}
    s_lshr_b32 s9, {XCD}, 1
    s_lshl_b32 s9, s9, 2
    s_add_u32 {RB}, {RB}, s9
    s_and_b32 s9, {XCD}, 1
    s_mul_i32 s9, s9, 7
    s_add_u32 {CT}, {CT}, s9
    v_lshrrev_b32 v4, 3, {LANE}
    s_lshl_b32 s10, {WAVE}, 5
    v_add_u32 v4, s10, v4
    v_mul_u32_u24 v4, 1280, v4
    v_and_b32 v6, 7, {LANE}
    v_xor_b32 v6, v6, {G4}
    v_lshl_add_u32 v{VXS[0]}, v6, 4, v4
    v_xor_b32 v{VXS[1]}, 64, v{VXS[0]}
    v_add_u32 v{VXS[1]}, 10240, v{VXS[1]}
    v_add_u32 v{VXS[2]}, 20480, v{VXS[0]}
    v_add_u32 v{VXS[3]}, 20480, v{VXS[1]}
    s_lshl_b32 s10, {WAVE}, 3
    v_add_u32 v4, s10, {G4}
    v_mul_u32_u24 v4, 3456, v4
    s_lshl_b32 s10, {WF_}, 2
    v_or_b32 v6, s10, {G4}
    v_lshlrev_b32 v6, 1, v6
    v_xor_b32 v6, v6, {L15}
    v_lshl_add_u32 v{VWS[0]}, v6, 4, v4
    s_lshl_b32 s10, {CT}, 8
    v_add_u32 v{VWS[0]}, s10, v{VWS[0]}
    v_add_u32 v{VWS[1]}, 13824, v{VWS[0]}
    v_add_u32 v{VWS[2]}, {32 * 3456}, v{VWS[0]}
    v_add_u32 v{VWS[3]}, {32 * 3456}, v{VWS[1]}
    s_lshl_b32 {W2K}, {WAVE}, 11
    s_lshl_b32 {W4K}, {WAVE}, 12
    s_mul_i32 s12, {RB}, 3
    s_add_u32 s12, s12, {CT}
    s_mul_i32 s13, s12, 205
    s_lshr_b32 s13, s13, 11
    s_mul_i32 s13, s13, 10
    s_sub_u32 {D0}, s12, s13
    s_mul_i32 s9, {RB}, {128 * 1280}
    """)


def g1_setup_b():
    srd(48, 16, 17, "s9", 128 * 1280)
    srd(52, 32, 33, None, 640 * 3456)


def g1_setup_c():
    a(f"""
    s_lshl_b32 s10, {WT}, 13
    v_lshlrev_b32 v{VXR[0]}, 7, {L15}
    v_add_u32 v{VXR[0]}, s10, v{VXR[0]}
    v_bfe_u32 v4, {LANE}, 1, 3
    v_xor_b32 v4, v4, {G4}
    v_lshl_add_u32 v{VXR[0]}, v4, 4, v{VXR[0]}
    v_xor_b32 v{VXR[1]}, 64, v{VXR[0]}
    v_bfe_u32 v4, {LANE}, 2, 2
    v_lshl_add_u32 v6, {G4}, 3, v4
    v_lshlrev_b32 v{VWR[0]}, 8, v6
    v_and_b32 v6, 1, {G4}
    v_lshl_or_b32 v6, v6, 2, v4
    s_lshl_b32 s10, {WF_}, 2
    v_xor_b32 v6, s10, v6
    v_lshl_add_u32 v{VWR[0]}, v6, 5, v{VWR[0]}
    v_and_b32 v7, 3, {LANE}
    v_lshl_add_u32 v{VWR[0]}, v7, 3, v{VWR[0]}
    v_add_u32 v{VWR[0]}, {WB}, v{VWR[0]}
    v_xor_b32 v{VWR[1]}, 32, v{VWR[0]}
    v_xor_b32 v{VWR[2]}, 64, v{VWR[0]}
    v_xor_b32 v{VWR[3]}, 0x60, v{VWR[0]}
    v_lshl_add_u32 v6, v7, 3, v4
    v_lshlrev_b32 v253, 7, v6
    v_add_u32 v253, {W4K}, v253
    v_bfe_u32 v6, v6, 1, 3
    v_lshrrev_b32 v7, 5, {LANE}
    v_xor_b32 v6, v6, v7
    v_lshl_add_u32 v253, v6, 4, v253
    v_and_b32 v6, 1, {G4}
    v_lshl_add_u32 v253, v6, 3, v253
    s_lshl_b32 s10, {RB}, 2
    s_add_u32 s10, s10, {WAVE}
    s_mul_i32 {UTO}, s10, 40960
    s_lshl_b32 {UFO}, {D0}, 12
    s_add_u32 {UTO}, {UTO}, {UFO}
    s_add_u32 {UTO}, {UTO}, {UT}
    s_lshl_b32 {UFO}, {D0}, 8
    s_lshl_b32 s10, s10, 2
    s_add_u32 {UFO}, {UFO}, s10
    s_add_u32 {UFO}, {UFO}, {UFLAG}
    s_cmp_lt_u32 {CT}, 10
    s_cselect_b32 s10, 0, {OOB}
    v_lshlrev_b32 {VUT}, 8, {G4}
    v_lshl_add_u32 {VUT}, v4, 5, {VUT}
    v_bfe_u32 v6, {LANE}, 1, 1
    v_lshl_add_u32 {VUT}, v6, 7, {VUT}
    v_and_b32 v6, 1, {LANE}
    v_lshl_add_u32 {VUT}, v6, 4, {VUT}
    v_add_u32 {VUT}, s10, {VUT}
    """)


def ut_step(vm, t):
    vm.wait("x0")
    vm.issue("tag", f"global_load_dword {VTAG}, {ZERO}, {DBG} sc1")
    a(f"v_mov_b32 v{t + 16}, v253\nv_xor_b32 v{t + 17}, 32, v253\nv_xor_b32 v{t + 18}, 64, v253\nv_xor_b32 v{t + 19}, 0x60, v253")
    for dt in range(4):
        a(f"ds_read_b64_tr_b16 {vr(t + 4 * dt, 2)}, v{t + 16 + dt}\nds_read_b64_tr_b16 {vr(t + 2 + 4 * dt, 2)}, v{t + 16 + (dt ^ 1)} offset:512")
    for dt in range(4):
        a(f"s_waitcnt lgkmcnt({6 - 2 * dt})")
        vm.issue("ut", f"buffer_store_dwordx4 {vr(t + 4 * dt, 4)}, {VUT}, {WSRD}, {'s46' if 'nout' in OPT else UTO} offen offset:{1024 * dt} sc1")


def ut_flag(vm):
    vm.wait("ut")
    get_tag()
    flag_store(vm, UFO, VUT)


VWFL, VUFL, VHFL, VUG, VUL, LOOK1, LOOK2, VPS, VPF = "v8", "v9", "v10", "v11", "v12", "v13", "v14", "v15", "v16"
HV = ["v0", "v5", "v6", "v7"]
JUNK = "v233"
KCB, HFM = "s9", "s[30:31]"

a("L_code0:")
CODEPF = f"""
s_getpc_b64 s[12:13]
L_pc0:
s_lshr_b32 s10, s2, 3
s_lshl_b32 s10, s10, 11
v_lshl_add_u32 v40, v0, 7, s10
v_min_u32 v40, L_code1-L_pc0-4, v40
v_cmp_gt_u32 vcc, 16, v0
s_and_saveexec_b64 s[8:9], vcc
s_cbranch_execz L_nopf
global_load_dword {JUNK}, v40, s[12:13]
L_nopf:
s_mov_b64 exec, -1
""" if "nopf" not in OPT else ""
stamp(0)
a(f"""
s_cmp_ge_u32 s2, 256
s_cbranch_scc1 L_end
s_load_dwordx16 s[16:31], s[0:1], 0
s_load_dwordx8 s[32:39], s[0:1], 64
s_load_dwordx4 s[40:43], s[0:1], 96
{CODEPF}
v_lshrrev_b32 v2, 6, v0
v_and_b32 {LANE}, 63, v0
v_mov_b32 {ZERO}, 0
v_readfirstlane_b32 {WAVE}, v2
s_and_b32 {XCD}, s2, 7
s_lshr_b32 {J}, s2, 3
s_mov_b32 s46, {WS_END}
s_mov_b32 s47, 0x20000
v_and_b32 {L15}, 15, v0
v_bfe_u32 {G4}, v0, 4, 2
v_lshlrev_b32 {L16}, 4, {LANE}
s_lshr_b32 {WT}, {WAVE}, 1
s_and_b32 {WF_}, {WAVE}, 1
s_cmp_ge_u32 {J}, 28
s_cbranch_scc1 L_typeC
""")


def bf16_round_int(l):
    if l < 256:
        return l
    e = l.bit_length() - 8
    q, r = l >> e, l & ((1 << e) - 1)
    h = 1 << (e - 1)
    if r > h or (r == h and (q & 1)):
        q += 1
    return q << e


PAR = 208
SDT, SDS = 20, 23


def param_loads(vm, n=1):
    for r in range(n):
        for k, ptr in enumerate((LOGA, AIM, CR, CI)):
            vm.issue("par", f"global_load_ushort v{CPAR[r] + k}, v68, {ptr} offset:{512 * r}")


CPAR = [208, 212, 240]
GX, GW = 152, 172


def gate_addr():
    a(f"""
    s_lshl_b32 s10, {XCD}, 4
    s_add_u32 s10, s10, {J}
    s_sub_u32 s13, s10, 16
    s_lshl_b32 s10, s13, 4
    v_lshrrev_b32 v65, 4, v0
    v_add_u32 v65, s10, v65
    v_lshlrev_b32 v93, 4, {L15}
    v_mul_u32_u24 v92, 1280, v65
    v_add_u32 v92, v92, v93
    {"v_mov_b32 v92, v93" if "nogate" in OPT else ""}
    v_lshlrev_b32 {VPS}, 2, v65
    v_mov_b32 {VPF}, 0
    s_lshl_b32 {PF2}, s13, 4
    s_lshl_b32 s10, {WAVE}, 2
    s_add_u32 {PF2}, {PF2}, s10
    s_add_u32 {PF2}, {PF2}, {GFLAG}
    """)


def gate_loads(vm):
    for k in range(5):
        a(f"global_load_dwordx4 {vr(GW + 4 * k, 4)}, v93, s[36:37] offset:{256 * k}")
    for k in range(5):
        vm.issue("pre", f"global_load_dwordx4 {vr(GX + 4 * k, 4)}, v92, s[30:31] offset:{256 * k}")


def gate_finish(vm):
    a("v_mov_b32 v64, 0")
    for k in range(20):
        a(f"v_dot2_f32_bf16 v64, v{GX + k}, v{GW + k}, v64")
    a("s_nop 2")
    for sh in (8, 4, 2, 1):
        a(f"v_add_f32_dpp v64, v64, v64 row_ror:{sh} row_mask:0xf bank_mask:0xf")
    a(f"""
    v_cvt_pk_bf16_f32 v64, v64, v64
    v_and_b32 v64, 0xffff0000, v64
    v_mul_f32 v64, {f32(-1.4426950408889634)}, v64
    v_exp_f32 v64, v64
    v_add_f32 v64, 1.0, v64
    v_rcp_f32 v64, v64
    v_cvt_pk_bf16_f32 v64, v64, v64
    v_and_b32 v64, 0xffff0000, v64
    s_mov_b32 s10, {G_OFF}
    s_mov_b32 s12, 0x10001
    s_mov_b32 s13, 0x10001
    s_mov_b64 exec, s[12:13]
    """)
    vm.issue("pst", f"buffer_store_dword v64, {VPS}, {WSRD}, s10 offen sc1")
    a("s_mov_b64 exec, -1")


def late_addr():
    L = f"""
    s_lshr_b32 {TB}, {XCD}, 1
    s_lshl_b32 {TB}, {TB}, 3
    s_lshr_b32 s10, {J}, 2
    s_add_u32 {TB}, {TB}, s10
    s_and_b32 {CS}, {XCD}, 1
    s_lshl_b32 {CS}, {CS}, 2
    s_and_b32 s10, {J}, 3
    s_add_u32 {CS}, {CS}, s10
    s_mul_i32 s10, {CS}, 5120
    v_add_u32 v2, s10, {L16}
    v_add_u32 v4, 4096, v2
    s_mul_i32 s10, {WAVE}, 14
    v_lshrrev_b32 {VWFL}, 2, {LANE}
    v_min_u32 {VWFL}, 13, {VWFL}
    v_add_u32 {VWFL}, s10, {VWFL}
    v_min_u32 {VWFL}, 53, {VWFL}
    v_lshlrev_b32 {VWFL}, 5, {VWFL}
    v_and_b32 v6, 3, {LANE}
    v_lshl_add_u32 {VWFL}, v6, 2, {VWFL}
    s_and_b32 s10, {XCD}, 1
    s_lshl_b32 s10, s10, 4
    s_add_u32 s10, s10, {WFLAG}
    v_add_u32 {VWFL}, s10, {VWFL}
    s_mul_i32 s10, {WAVE}, 7
    v_min_u32 {VHFL}, 6, {LANE}
    v_add_u32 {VHFL}, s10, {VHFL}
    v_min_u32 {VHFL}, 26, {VHFL}
    v_lshlrev_b32 {VHFL}, 2, {VHFL}
    s_lshl_b32 s10, {TB}, 7
    v_add_u32 {VHFL}, s10, {VHFL}
    v_lshrrev_b32 v6, 3, v0
    v_mul_u32_u24 {VUG}, 40960, v6
    v_and_b32 v7, 7, {LANE}
    v_lshl_add_u32 {VUG}, v7, 4, {VUG}
    v_and_b32 v5, 1, {LANE}
    v_mul_u32_u24 {VUL}, {CHP}, v5
    v_lshl_add_u32 {VUL}, v6, 6, {VUL}
    v_lshrrev_b32 v7, 1, v7
    v_lshl_add_u32 {VUL}, v7, 4, {VUL}
    """.strip().replace("\n", "|").replace("@", "\n").split("|")
    for k in range(4):
        L += [f"s_add_u32 s10, {WAVE}, {k}", "s_and_b32 s10, s10, 3", "s_lshl_b32 s10, s10, 10", f"v_add_u32 {HV[k]}, s10, {L16}"]
    return L


def pair_addr():
    a(f"""
    s_lshr_b32 s10, {CP}, 5
    s_lshl_b32 s10, s10, 8
    s_add_u32 s10, s10, {UFLAG}
    v_lshl_add_u32 {VUFL}, {LANE}, 2, s10
    s_lshl_b32 {ULO}, {CP}, 7
    s_add_u32 {ULO}, {ULO}, {UT}
    s_mul_i32 {CHB}, {WT}, {CHP}
    s_add_u32 {CHB}, {CHB}, {CPB}
    """)


TW, TR = 58, 62


def kgen_addr():
    return f"""
    s_mul_i32 s10, {WF_}, {L_KO - L_KE}
    s_add_u32 s10, s10, {CHB}
    s_add_u32 s10, s10, {L_KE}
    v_lshl_add_u32 v{TW}, {LANE}, 2, s10
    v_add_u32 v{TW + 1}, {4 * TP}, v{TW}
    v_add_u32 v{TW + 2}, {8 * TP}, v{TW}
    v_add_u32 v{TW + 3}, {12 * TP}, v{TW}
    v_mul_u32_u24 v{TR}, {TP}, {L15}
    v_lshl_add_u32 v{TR}, {G4}, 4, v{TR}
    v_add_u32 v{TR}, s10, v{TR}
    s_lshl_b32 s10, {WF_}, 8
    s_add_u32 s10, s10, {CHB}
    v_lshl_add_u32 v70, {LANE}, 2, s10
    ds_write_b32 v70, {ZERO} offset:{L_U}
    s_mul_i32 s10, {WAVE}, 3072
    s_add_u32 s10, s10, {KCB}
    v_lshrrev_b32 v70, 1, {G4}
    v_and_b32 v71, 1, {G4}
    v_lshlrev_b32 v228, 9, v70
    v_lshl_add_u32 v228, v71, 4, v228
    v_lshl_add_u32 v228, {L15}, 5, v228
    v_add_u32 v228, s10, v228
    v_lshlrev_b32 v73, 8, {G4}
    v_lshlrev_b32 v229, 4, {L15}
    v_lshlrev_b32 v230, 3, {L15}
    v_cmp_gt_u32 vcc, 2, {G4}
    v_add_u32 v231, s10, v73
    v_mov_b32 v78, 0x80
    v_cndmask_b32 v229, v230, v229, vcc
    v_cndmask_b32 v78, v78, 8, vcc
    v_add_u32 v229, v231, v229
    v_add_u32 v230, v229, v78
    v_lshl_add_u32 v231, {L15}, 2, v231
    v_or_b32 v70, {WF_}, {LANE}
    v_cmp_eq_u32 vcc, 0, v70
    v_cndmask_b32 v232, 0, 1.0, vcc
    """.strip().split("\n")


def kgen_sections(PAR=208, sdt='s66', sds='s69'):
    L2E_HI = struct.unpack("<f", struct.pack("<f", 1.4426950408889634))[0]
    L2E_LO = 1.4426950408889634 - L2E_HI
    S = [[]]

    def e(t):
        S[-1].extend(x.strip() for x in t.strip().split("\n"))

    R_, Z8, G1, GC, T1, O1 = 32, 34, 36, 38, 40, 42
    P = lambda k: 44 + 2 * (k - 1)
    RBF, QA, D = 192, [120, 136], [216, 220, 224]
    e(f"s_mov_b32 s12, {f32(L2E_HI)}\ns_mov_b32 s13, {f32(L2E_LO)}")
    e(f"v_mov_b32 v70, {sdt}\nv_lshlrev_b32 v71, 16, v{PAR}")
    for t in ("v_mul_f32 v{a}, s12, v{x}", "v_fma_f32 v{b}, v{x}, s12, -v{a}", "v_exp_f32 v{a}, v{a}", "v_fma_f32 v{b}, v{x}, s13, v{b}",
              "v_mul_f32 v{b}, " + f32(0.6931471805599453) + ", v{b}", "v_fma_f32 v{a}, v{a}, v{b}, v{a}"):
        for i in range(2):
            e(t.format(a=72 + i, b=74 + i, x=70 + i))
    e(f"""
    v_cvt_pk_bf16_f32 v71, v72, v73
    v_lshlrev_b32 v70, 16, v71
    v_and_b32 v71, 0xffff0000, v71
    v_mul_f32 v71, v71, v70
    v_mul_f32 v71, {f32(-1.4426950408889634)}, v71
    v_lshlrev_b32 v72, 16, v{PAR + 1}
    v_mul_f32 v72, v72, v70
    v_mul_f32 v72, 0.15915494, v72
    v_add_f32 v73, v70, v70
    v_lshlrev_b32 v74, 16, v{PAR + 2}
    v_lshlrev_b32 v75, 16, v{PAR + 3}
    v_mul_f32 v{R_}, v74, v73
    v_mul_f32 v{R_ + 1}, -v75, v73
    v_mul_f32 v76, {f32(8.0)}, v71
    v_mul_f32 v77, {f32(128.0)}, v71
    v_mul_f32 v79, {f32(8.0)}, v72
    v_mul_f32 v80, {f32(128.0)}, v72
    v_exp_f32 v76, v76
    v_exp_f32 v77, v77
    v_exp_f32 v78, v71
    v_fract_f32 v79, v79
    v_fract_f32 v80, v80
    v_fract_f32 v81, v72
    v_cos_f32 v82, v79
    v_sin_f32 v83, v79
    v_cos_f32 v84, v80
    v_sin_f32 v85, v80
    v_cos_f32 v86, v81
    v_sin_f32 v87, v81
    v_mul_f32 v{Z8}, v76, v82
    v_mul_f32 v{Z8 + 1}, -v76, v83
    v_mul_f32 v{G1}, v77, v84
    v_mul_f32 v{G1 + 1}, v77, v85
    v_mul_f32 v{P(1)}, v78, v86
    v_mul_f32 v{P(1) + 1}, v78, v87
    """)
    st = {"n": 0}

    def put(row, reg, last=False):
        t = 88 + (st["n"] & 3)
        st["n"] += 1
        e(f"v_mov_b32 v{t}, 0x3f80" if reg is None else f"v_cvt_pk_bf16_f32 v{t}, v{reg}, v{reg + 1}")
        if row & 1:
            e(f"ds_write2_b32 v{TW + row // 4}, v{t - 1}, v{t} offset0:{((row - 1) % 4) * TP // 4} offset1:{(row % 4) * TP // 4}")
        elif last:
            e(f"ds_write_b32 v{TW + row // 4}, v{t} offset:{(row % 4) * TP}")
            st["n"] += 1

    def cm(out, x, y):
        e(f"v_pk_mul_f32 {vr(T1, 2)}, {vr(x, 2)}, {vr(y, 2)} op_sel:[0,0] op_sel_hi:[1,0]")
        e(f"v_pk_fma_f32 {vr(out, 2)}, {vr(x, 2)}, {vr(y, 2)}, {vr(T1, 2)} op_sel:[1,1,0] op_sel_hi:[0,1,1] neg_lo:[1,0,0]")

    def rd(base):
        for ks in range(4):
            e(f"ds_read_b128 {vr(base + 4 * ks, 4)}, v{TR} offset:{64 * ks}")

    def mm(d, q, zero):
        for ks in range(4):
            e(f"v_mfma_f32_16x16x32_bf16 {vr(d, 4)}, {vr(q + 4 * ks, 4)}, {vr(RBF + 4 * ks, 4)}, {'0' if (zero and ks == 0) else vr(d, 4)}")

    S.append([])
    for x in range(16):
        put(x, R_)
        if x < 15:
            cm(R_, R_, Z8)
    rd(RBF)
    S.append([])
    put(0, None)
    for k in range(1, 8):
        put(k, P(k))
        if k < 7:
            cm(P(k + 1), P(k), P(1))
    put(8, G1)
    cm(GC, G1, G1)
    for k in range(1, 8):
        cm(O1, G1, P(k))
        put(8 + k, O1)
    S.append([])
    rd(QA[0])
    row = 0
    for i in range(2, 8):
        put(row, GC)
        row += 1
        for k in ((2, 4, 6) if i < 4 else (4,)):
            cm(O1, GC, P(k))
            put(row, O1)
            row += 1
        cm(GC, GC, G1)
        if i == 3:
            e(f"v_mul_f32 v{D[0]}, {sds}, v232\nv_mov_b32 v{D[0] + 1}, 0\nv_mov_b32 v{D[0] + 2}, 0\nv_mov_b32 v{D[0] + 3}, 0\ns_waitcnt lgkmcnt(4)")
            mm(D[0], QA[0], False)
    S.append([])
    rd(QA[1])
    for i in range(8, 17):
        put(i - 8, GC, last=(i == 16))
        if i < 16:
            cm(GC, GC, G1)
    rd(QA[0])
    e(f"ds_write_b128 v228, {vr(D[0], 4)}\ns_waitcnt lgkmcnt(10)")
    mm(D[1], QA[1], True)
    S.append([])
    e("s_waitcnt lgkmcnt(0)")
    mm(D[2], QA[0], True)
    e(f"ds_write_b64 v229, {vr(D[1], 2)} offset:1024\nds_write_b64 v230, {vr(D[1] + 2, 2)} offset:1024")
    for j in range(4):
        e(f"ds_write_b32 v231, v{D[2] + j} offset:{2048 + 64 * j}")
    return S


def emit_mixed(vm, lines, ops, every):
    for n, l in enumerate(lines):
        a(l)
        if ops and n % every == every - 1:
            emit_op(vm, ops.pop(0))


def expansion():
    E = {3: 36, 2: 40, 1: 44, 0: 48}
    F = {3: 192, 2: 196, 1: 200, 0: 204}
    A = f"""
    s_mul_i32 s10, {WT}, 6144
    s_add_u32 s10, s10, {KCB}
    v_sub_u32 v32, 63, {LANE}
    v_lshl_add_u32 v33, v32, 3, s10
    v_mov_b32 v53, s10
    s_lshl_b32 s12, {WF_}, 2
    s_sub_u32 s10, s10, s12
    v_lshl_add_u32 v34, v32, 4, s10
    v_add_u32 v35, 3072, v34
    """.strip().split("\n")
    for h, R in enumerate((E, F)):
        for s, idx in ((3, 512), (2, 384), (1, 256)):
            A += [f"ds_read_b64 {vr(R[s], 2)}, v33 offset:{3072 * h + 4 * idx}", f"ds_read_b32 v{R[s] + 2}, v33 offset:{3072 * h + 4 * idx + 8}"]
        A += [f"ds_read2_b32 {vr(R[0], 2)}, v{34 + h} offset0:1 offset1:2", f"ds_read2_b32 {vr(R[0] + 2, 2)}, v{34 + h} offset0:3 offset1:4"]
    A += ["ds_read2st64_b32 v[208:209], v53 offset0:0 offset1:12"]
    B = f"""
    s_mul_i32 s10, {WF_}, {L_KO - L_KE}
    s_add_u32 s10, s10, {CHB}
    s_add_u32 s10, s10, {L_KE}
    v_lshl_add_u32 v32, {LANE}, 5, s10
    v_lshl_add_u32 v33, {LANE}, 4, s10
    v_lshl_add_u32 v34, {LANE}, 3, s10
    v_lshl_add_u32 v35, {LANE}, 2, s10
    s_sub_u32 s12, 0, {WF_}
    s_mov_b32 s13, s12
    """.strip().split("\n")
    for s in (3, 2, 1, 0):
        B.append(f"v_pk_add_f32 {vr(E[s], 2)}, {vr(E[s], 2)}, {vr(F[s], 2)}")
        B.append(f"v_add_f32 v{E[s] + 2}, v{E[s] + 2}, v{F[s] + 2}" if s else f"v_pk_add_f32 {vr(E[0] + 2, 2)}, {vr(E[0] + 2, 2)}, {vr(F[0] + 2, 2)}")
    B += ["v_add_f32 v208, v208, v209", "v_mul_f32 v208, v232, v208"]
    t = 192
    for s, l0, Bn, step in ((3, 1024, 16, 8), (2, 512, 8, 4), (1, 256, 4, 2)):
        val = lambda x: E[s] + (bf16_round_int(l0 + 64 + x) - (l0 + 64)) // step
        for m in range(Bn // 2):
            src = []
            for k in range(2):
                e, o = val(Bn - k - 2 * m), val(Bn - 1 - k - 2 * m)
                if e != o:
                    B.append(f"v_cndmask_b32 v52, v{e}, v{o}, s[12:13]")
                    e = 52
                src.append(e)
            B.append(f"v_cvt_pk_bf16_f32 v{t + m}, v{src[0]}, v{src[1]}")
        t += Bn // 2
    B += [f"v_cvt_pk_bf16_f32 v{t}, v{E[0] + 3}, v{E[0] + 2}", f"v_cvt_pk_bf16_f32 v{t + 1}, v{E[0] + 1}, v{E[0]}",
          f"v_cvt_pk_bf16_f32 v208, v208, {ZERO}",
          "ds_write_b128 v32, v[192:195]", "ds_write_b128 v32, v[196:199] offset:16", "ds_write_b128 v33, v[200:203] offset:2048",
          "ds_write_b64 v34, v[204:205] offset:3072", "ds_write_b64 v34, v[206:207] offset:3584", "ds_write_b32 v35, v208 offset:4096"]
    return A, B


WSLOT = [vr(4 * i, 4, "a") for i in range(64)] + [vr(224 + 4 * i, 4) for i in range(6)]


def wload_ops():
    L = []
    for i in range(14):
        for dt in range(5):
            post = f"s_add_u32 {WSO}, {WSO}, 40960" if dt == 4 else None
            L.append((f"buffer_load_dwordx4 {WSLOT[5 * i + dt]}, {'v4' if dt == 4 else 'v2'}, {SRDC}, {WSO} offen offset:{1024 * (dt & 3)} sc1", f"W{i}", post))
    return L


def emit_op(vm, op):
    vm.issue(op[1], op[0])
    if op[2]:
        a(op[2])


def uload_ops():
    return [(f"buffer_load_dwordx4 {vr(24 + 4 * n, 4)}, {VUG}, {WSRD}, {ULO} offen sc1", "u",
             f"s_add_u32 {ULO}, {ULO}, {32 * 40960}" if n == 0 else None) for n in range(2)]


NEARLY, NGAP = 26, 44
LOOKAT, CHECKAT = 11, 13

vmA = VM(a)
a(f"""
s_mov_b32 {CP}, s2
s_mov_b32 {CPB}, {CB}
s_lshl_b32 s10, {CP}, 9
v_lshl_add_u32 v68, v0, 1, s10
s_lshl_b32 s69, {CP}, 2
""")
g1_setup_a()
a("s_waitcnt lgkmcnt(0)")
param_loads(vmA)
a(f"s_load_dword s66, {LDT}, s69\ns_load_dword s69, {DSK}, s69")
g1_setup_b()
a(f"""
s_mov_b32 s44, s42
s_mov_b32 s45, s43
s_mov_b32 s30, s16
s_mov_b32 s31, s17
s_lshl_b32 s{XS}, {D0}, 7
s_mul_i32 s{WSS}, {D0}, {64 * 3456}
""")
emit_dma(vmA, dmax(0) + dmaw(0))
stamp(7)
srd(56, 34, 35, None, 0 if "now2" in OPT else 1728 * 1280)
a("s_cmp_ge_u32 s2, 128\ns_cbranch_scc1 L_a_gate")
a(f"""
s_cmp_lt_u32 s2, 120
s_cbranch_scc1 L_a_notag
s_cmp_lg_u32 {WAVE}, 0
s_cbranch_scc1 L_a_notag
s_memrealtime s[12:13]
s_waitcnt lgkmcnt(0)
s_or_b32 s12, s12, 1
v_mov_b32 v40, s12
v_mov_b32 v41, 0
s_mov_b64 exec, 1
global_atomic_cmpswap {ZERO}, v[40:41], {DBG} sc1
s_mov_b64 exec, -1
L_a_notag:
""")
a(f"""
s_lshr_b32 s9, s2, 1
s_mul_i32 s9, s9, 40960
s_and_b32 s12, s2, 1
s_mul_i32 s13, s12, 640
s_add_u32 s13, s13, s9
s_mul_i32 s10, {WAVE}, 10240
s_add_u32 s13, s13, s10
v_lshrrev_b32 v7, 3, {LANE}
""")
for m in range(5):
    a(f"""
    v_add_u32 v42, {8 * m}, v7
    v_mul_u32_u24 v42, 13, v42
    v_lshrrev_b32 v42, 6, v42
    v_and_b32 v43, 6, v42
    v_xor_b32 v43, v43, {LANE}
    v_mul_u32_u24 v42, 640, v42
    v_lshl_add_u32 v42, v43, 4, v42
    v_add_u32 v{92 + m}, s13, v42
    """)
a(f"""
v_add_u32 v96, 4096, v96
s_mul_i32 s12, s12, 20480
s_add_u32 s12, s12, s9
s_add_u32 s12, s12, {W2F}
s_lshl_b32 s10, {WAVE}, 10
s_add_u32 s12, s12, s10
s_cmp_lt_u32 s2, 108
s_cselect_b32 s10, 0, {OOB}
v_mov_b32 {VPF}, s10
s_add_u32 s12, s12, s10
v_add_u32 {VPS}, s12, {L16}
s_lshl_b32 {PF2}, s2, 4
s_lshl_b32 s10, {WAVE}, 2
s_add_u32 {PF2}, {PF2}, s10
s_add_u32 {PF2}, {PF2}, {WFLAG}
v_lshrrev_b32 v40, 2, {LANE}
v_mul_u32_u24 v234, 640, v40
v_bfe_u32 v40, {LANE}, 3, 2
v_xor_b32 v40, {WAVE}, v40
v_lshl_add_u32 v234, v40, 5, v234
v_and_b32 v40, 3, {LANE}
v_lshl_add_u32 v234, v40, 3, v234
v_add_u32 v234, {L_W2}, v234
s_branch L_a_join
L_a_gate:
""")
gate_addr()
a("v_mov_b32 v94, 0\nv_mov_b32 v95, 0\nv_mov_b32 v96, 0\nL_a_join:")
a(f"s_mov_b32 {KCB}, {L_KC}\ns_mul_i32 {CHB}, {WT}, {CHP}\ns_add_u32 {CHB}, {CHB}, {CPB}")
for l in kgen_addr():
    a(l)
for D in range(1, 4):
    for l in soff(D):
        a(l)
g1_setup_c()
for l in late_addr():
    a(l)
a(f"""
s_lshl_b32 s10, {WT}, 4
s_waitcnt lgkmcnt(0)
s_lshr_b32 s66, s66, s10
s_lshl_b32 s66, s66, 16
s_lshr_b32 s69, s69, s10
s_lshl_b32 s69, s69, 16
""")
KS = kgen_sections()
vmA.wait("par")
stamp(8)
pend = dmaw(1) + dmax(1) + dmaw(2) + dmaw(3) + dmax(2) + dmaw(4) + dmaw(5)
for n, sec in enumerate(KS):
    for l in sec:
        a(l)
    emit_dma(vmA, pend[:4])
    pend = pend[4:]
    if n == 2:
        ut_step(vmA, 100)
    if n == 0:
        a("s_cmp_ge_u32 s2, 128\ns_cbranch_scc1 L_a_gate1")
        q0 = list(vmA.q)
        a(f"s_mul_i32 s10, {WAVE}, 5120\ns_add_u32 s10, s10, {L_W2}")
        for m in range(5):
            a(f"s_add_u32 m0, s10, {4096 if m == 4 else 0}")
            vmA.issue("pre", f"buffer_load_dwordx4 v{92 + m}, {SRDC}, 0 offen offset:{1024 * (m & 3)} lds")
        a("s_branch L_a_join1\nL_a_gate1:")
        vmA.q = q0
        gate_loads(vmA)
        a("L_a_join1:")
assert not pend
for D in range(4, 10):
    for l in soff(D):
        a(l)
srd(56, 42, 43, W2F, 54 * 40960); a(f"s_mul_i32 {WSO}, {WAVE}, {14 * 40960}\ns_mul_i32 {HSO}, {WAVE}, {14 * 4096}")
pair_addr()
stamp(9)


def prep_block(vm):
    a("s_cmp_ge_u32 s2, 128\ns_cbranch_scc1 L_a_gate2")
    for aa in range(5):
        a(f"ds_read_b64_tr_b16 {vr(68 + 4 * aa, 2)}, v234 offset:{128 * aa}\nds_read_b64_tr_b16 {vr(70 + 4 * aa, 2)}, v234 offset:{128 * aa + 10240}")
    for aa in range(5):
        a(f"s_waitcnt lgkmcnt({8 - 2 * aa})\ns_mov_b32 s10, {OOB if ('now2' in OPT or 'now2st' in OPT) else 4096 * aa}")
        a(f"buffer_store_dwordx4 {vr(68 + 4 * aa, 4)}, {VPS}, {WSRD}, s10 offen sc1")
    a("s_branch L_a_join2\nL_a_gate2:")
    gate_finish(vm)
    a("L_a_join2:")


def gemm1(vm):
    a("L_g1_loop:")
    ACC = 64
    WF, XF = [128, 160], [144, 176]

    def reads(ks):
        s = ks & 1
        L = []
        for i in range(4):
            L.append(f"ds_read_b128 {vr(XF[s] + 4 * i, 4)}, v{VXR[s]} offset:{XB + ((ks >> 1) % 3) * 16384 + 2048 * i}")
            L.append(f"ds_read_b64_tr_b16 {vr(WF[s] + 4 * i, 2)}, v{VWR[i]} offset:{(ks % NWS) * 8192}")
            L.append(f"ds_read_b64_tr_b16 {vr(WF[s] + 4 * i + 2, 2)}, v{VWR[i]} offset:{(ks % NWS) * 8192 + 1024}")
        return L

    vm.wait("x0", "w0", "pre", "ut", extra="lgkmcnt(0)")
    a("s_barrier")
    stamp(1)
    get_tag()
    flag_store(vm, UFO, VUT)
    prep_block(vm)
    for l in reads(0):
        a(l)
    misc = []
    ops = uload_ops() + wload_ops()[:NEARLY]
    for ks in range(20):
        s = ks & 1
        if ks < 19:
            vm.wait(f"x{(ks + 1) >> 1}", f"w{ks + 1}", *(["look"] if ks == CHECKAT else []), *(["pst"] if ks == 3 else []), extra="lgkmcnt(0)")
            a("s_barrier")
        else:
            a("s_waitcnt lgkmcnt(0)")
        if ks in (5, 10, 15) and "g2st" not in OPT:
            stamp(9 + ks // 5)
        if ks == 3:
            flag_store(vm, PF2, VPF)
        if ks == CHECKAT:
            poll(VWFL, LOOK1, first_issued=True)
            poll(VUFL, LOOK2, first_issued=True)
        rd_ = reads(ks + 1) if ks < 19 else []
        dm = []
        if ks + NWS < 20:
            dm += dmaw(ks + NWS)
        if ks >= 1:
            D = (ks - 1) // 2 + 3
            if D < 10:
                dm += dmax(D, (0, 1) if ks & 1 else (2, 3))
        n = 0
        for ft in range(4):
            for tt in range(4):
                d = vr(ACC + 16 * ft + 4 * tt, 4)
                slot = n % 4 == 1 if ks < 15 else n % 3 == 1
                g = dm.pop(0) if (dm and slot) else None
                if g:
                    a(g[0])
                a(f"v_mfma_f32_16x16x32_bf16 {d}, {vr(WF[s] + 4 * ft, 4)}, {vr(XF[s] + 4 * tt, 4)}, {'0' if ks == 0 else d}")
                if g:
                    vm.issue(g[2], g[1])
                elif ks >= CHECKAT and ops and (slot or ks == 19):
                    emit_op(vm, ops.pop(0))
                elif rd_:
                    a(rd_.pop(0))
                    if rd_ and n % 4 == 2:
                        a(rd_.pop(0))
                elif misc:
                    for _ in range(2):
                        if misc:
                            a(misc.pop(0))
                if ks == LOOKAT and n == 15:
                    assert not misc
                    vm.issue("look", f"buffer_load_dword {LOOK1}, {VWFL}, {WSRD}, 0 offen sc1")
                    vm.issue("look", f"buffer_load_dword {LOOK2}, {VUFL}, {WSRD}, 0 offen sc1")
                n += 1
        assert not dm and not rd_
    assert not ops
    stamp(2)
    a(f"""
    s_lshl_b32 {RB}, {RB}, 1
    s_add_u32 {RB}, {RB}, {WT}
    s_lshl_b32 {CT}, {CT}, 1
    s_add_u32 {CT}, {CT}, {WF_}
    s_mul_i32 s16, {RB}, {54 * 4096}
    s_lshl_b32 s10, {CT}, 13
    s_add_u32 s16, s16, s10
    s_add_u32 s16, s16, {HF}
    s_add_u32 s17, s16, 4096
    s_lshl_b32 {HFO}, {RB}, 7
    s_lshl_b32 s10, {CT}, 2
    s_add_u32 {HFO}, {HFO}, s10
    s_cmp_lt_u32 {CT}, 27
    s_cselect_b32 s10, 0, {OOB}
    v_add_u32 {VUT}, s10, {L16}
    """)
    t = 160
    for m in range(2):
        for tt in range(4):
            for h in range(2):
                r = ACC + 16 * (2 * m + h) + 4 * tt
                a(f"v_cvt_pk_bf16_f32 v{t + 2 * h}, v{r}, v{r + 1}\nv_cvt_pk_bf16_f32 v{t + 2 * h + 1}, v{r + 2}, v{r + 3}")
            for k in range(4):
                a(f"v_pk_max_i16 v{t + k}, v{t + k}, 0")
            vm.issue("hst", f"buffer_store_dwordx4 {vr(t, 4)}, {VUT}, {WSRD}, s{16 + m} offen offset:{1024 * tt} sc1")
            t += 4


gemm1(vmA)
gops = wload_ops()[NEARLY:NEARLY + NGAP]
exA, exB = expansion()
emit_mixed(vmA, exA + ["s_waitcnt lgkmcnt(0)"] + exB, gops, 14)

HSLOT = [192, 208, 88, 104, 120, 136]
NH = 6


def hload(vm, i, k):
    vm.issue(f"h{i}", f"buffer_load_dwordx4 {vr(HSLOT[i % NH] + 4 * k, 4)}, {HV[k]}, {SRDB}, {HSO} offen sc1")
    if k == 3:
        a(f"s_add_u32 {HSO}, {HSO}, 4096")


def conv(vm, ops, rounds):
    main = rounds == 1
    if main:
        a(f"v_add_u32 v17, {CPB}, {VUL}")
        vm.wait("u")
        for n in range(2):
            a(f"ds_write_b128 v17, {vr(24 + 4 * n, 4)} offset:{L_U + 512 + 2048 * n}")
    a(f"""
    s_lshl_b32 s10, {WF_}, 6
    s_sub_u32 s10, {CHB}, s10
    v_and_b32 v19, 1, {L15}
    v_mul_u32_u24 v19, {L_KO - 2 - L_KE}, v19
    v_lshl_add_u32 v19, {G4}, 4, v19
    v_lshlrev_b32 v18, 1, {L15}
    v_sub_u32 v19, v19, v18
    v_add_u32 v19, s10, v19
    v_add_u32 v20, {L_KE + 4064 - 512}, v19
    v_add_u32 v21, {L_KE + 4064 - 512 * 3}, v19
    v_add_u32 v22, {L_KE + 4064 - 512 * 5}, v19
    v_add_u32 v23, {L_KE + 4064 - 512 * 7}, v19
    v_lshlrev_b32 v19, 5, {L15}
    v_lshl_add_u32 v19, {G4}, 4, v19
    v_add_u32 v19, s10, v19
    v_add_u32 v19, {L_U + 480}, v19
    s_waitcnt lgkmcnt(0)
    s_barrier
    """)
    stamp(3)
    ACCS = [32, 192]
    AS, BS = [64, 128], [96, 160]

    def loads(g):
        s = g & 1
        L = []
        for m in range(8):
            L.append(f"ds_read_b128 {vr(BS[s] + 4 * m, 4)}, v19 offset:{512 * m}")
        for q in range(8):
            o = 128 if q % 2 == 0 else 0
            r = AS[s] + 4 * q
            L.append(f"ds_read2_b32 {vr(r, 2)}, v{20 + q // 2} offset0:{o} offset1:{o + 1}")
            L.append(f"ds_read2_b32 {vr(r + 2, 2)}, v{20 + q // 2} offset0:{o + 2} offset1:{o + 3}")
        for r in range(19, 24):
            L.append(f"v_add_u32 v{r}, {2 * CHP + 384}, v{r}" if g % 4 == 3 else f"v_subrev_u32 v{r}, 128, v{r}")
        return L

    def send(ACC):
        l1, l2 = a.newlabel("Lx"), a.newlabel("Lx")
        a(f"s_cmp_eq_u32 {WF_}, 1\ns_cbranch_scc1 {l1}\ns_nop 5")
        for j in range(4):
            a(f"ds_write_b128 v17, {vr(ACC + 16 + 4 * j, 4)} offset:{1024 * j}")
        a(f"s_branch {l2}\n{l1}:\ns_nop 5")
        for j in range(4):
            a(f"ds_write_b128 v17, {vr(ACC + 4 * j, 4)} offset:{1024 * j}")
        a(f"{l2}:")

    def recv(ACC):
        l1, l2 = a.newlabel("Lx"), a.newlabel("Lx")
        a(f"s_cmp_eq_u32 {WF_}, 1\ns_cbranch_scc1 {l1}")
        for j in range(4):
            a(f"ds_read_b128 {vr(ACC + 16 + 4 * j, 4)}, v18 offset:{1024 * j}")
        a(f"s_branch {l2}\n{l1}:")
        for j in range(4):
            a(f"ds_read_b128 {vr(ACC + 4 * j, 4)}, v18 offset:{1024 * j}")
        a(f"{l2}:")

    def out_lines(ACC):
        L = []
        for j in range(4):
            L += [f"v_pk_add_f32 {vr(ACC + 4 * j, 2)}, {vr(ACC + 4 * j, 2)}, {vr(ACC + 16 + 4 * j, 2)}",
                  f"v_pk_add_f32 {vr(ACC + 4 * j + 2, 2)}, {vr(ACC + 4 * j + 2, 2)}, {vr(ACC + 18 + 4 * j, 2)}",
                  f"v_cvt_pk_bf16_f32 v{24 + 2 * j}, v{ACC + 4 * j}, v{ACC + 4 * j + 1}", f"v_cvt_pk_bf16_f32 v{25 + 2 * j}, v{ACC + 4 * j + 2}, v{ACC + 4 * j + 3}"]
        for jp in range(2):
            L += [f"v_permlane16_swap_b32 v{24 + 4 * jp}, v{26 + 4 * jp}", f"v_permlane16_swap_b32 v{25 + 4 * jp}, v{27 + 4 * jp}"]
        return L

    def out_store():
        for jp in range(2):
            vm.issue("ast", f"buffer_store_dwordx4 {vr(24 + 4 * jp, 4)}, {VPS}, {WSRD}, s16 offen offset:{1024 * jp} sc1")

    for l in loads(0):
        a(l)
    misc = f"""
    s_lshl_b32 s10, {WAVE}, 12
    s_add_u32 s10, s10, {L_W2}
    v_add_u32 v17, s10, {L16}
    s_xor_b32 s10, {WAVE}, 1
    s_lshl_b32 s10, s10, 12
    s_add_u32 s10, s10, {L_W2}
    v_add_u32 v18, s10, {L16}
    v_lshlrev_b32 {VPS}, 5, {L15}
    v_lshrrev_b32 {VPF}, 1, {G4}
    v_lshl_add_u32 {VPS}, {VPF}, 4, {VPS}
    v_and_b32 {VPF}, 1, {G4}
    v_lshl_add_u32 {VPS}, {VPF}, 9, {VPS}
    s_lshl_b32 s16, {CP}, 13
    s_add_u32 s16, s16, {W2K}
    s_add_u32 s16, s16, {AG}
    s_mul_i32 {PFO}, {WF_}, 2560
    s_lshl_b32 s10, {CP}, 3
    s_add_u32 {PFO}, {PFO}, s10
    s_lshl_b32 s10, {WT}, 2
    s_add_u32 {PFO}, {PFO}, s10
    s_add_u32 {PFO}, {PFO}, {AFLAG}
    """.strip().split("\n")
    every = 3 if main else 4
    for g in range(4 * rounds):
        r, p, s = g // 4, g % 4, g & 1
        ACC = ACCS[r & 1]
        nxt = loads(g + 1) if g + 1 < 4 * rounds else []
        a("s_waitcnt lgkmcnt(0)")
        extra = []
        if main and p == 1:
            vm.wait("hst")
            flag_store(vm, HFO, VUT)
        if r > 0 and p == 1:
            a("s_barrier")
            recv(ACCS[(r - 1) & 1])
        if r > 0 and p == 2:
            a("s_barrier")
            extra = out_lines(ACCS[(r - 1) & 1])
        if r > 0 and p == 3:
            out_store()
            a("s_add_u32 s16, s16, 8192")
        if r > 1 and p == 1:
            vm.wait("ast")
            flag_store(vm, PFO, ZERO)
            a(f"s_add_u32 {PFO}, {PFO}, 8")
        if not main and g == 3:
            vm.wait("look")
            poll(VWFL, LOOK1, first_issued=True, nap=8)
        n = 0
        for q in range(8):
            for j in range(q, 8):
                c = "0" if (p == 0 and q == 0) else vr(ACC + 4 * j, 4)
                a(f"v_mfma_f32_16x16x32_bf16 {vr(ACC + 4 * j, 4)}, {vr(AS[s] + 4 * q, 4)}, {vr(BS[s] + 4 * (j - q), 4)}, {c}")
                if nxt:
                    a(nxt.pop(0))
                elif misc:
                    a(misc.pop(0))
                if ops and n % every == every - 1 and (main or g >= 3):
                    emit_op(vm, ops.pop(0))
                elif extra:
                    a(extra.pop(0))
                if not main and g == 1 and n == 30:
                    vm.issue("look", f"buffer_load_dword {LOOK1}, {VWFL}, {WSRD}, 0 offen sc1")
                if g == 4 * rounds - 1 and n == 30:
                    vm.issue("look", f"buffer_load_dword {LOOK1}, {VHFL}, {WSRD}, 0 offen sc1")
                n += 1
        assert not nxt and not extra
        if p == 3:
            if g == 4 * rounds - 1:
                stamp(4)
            send(ACC)
    assert not misc and not ops
    if not main:
        vm.wait("ast")
        flag_store(vm, PFO, ZERO)
        a(f"s_add_u32 {PFO}, {PFO}, 8")
    a("s_waitcnt lgkmcnt(0)\ns_barrier")
    recv(ACCS[0])
    a("s_waitcnt lgkmcnt(0)")
    for l in out_lines(ACCS[0]):
        a(l)
    out_store()


conv(vmA, gops, 1)
q_g2 = list(vmA.q)
a("L_gemm2:")


def gemm2(vm):
    a(f"s_mul_i32 s10, {TB}, {54 * 4096}\ns_add_u32 s10, s10, {HF}")
    srd(52, 42, 43, "s10", 54 * 4096)
    vm.wait("look")
    poll(VHFL, LOOK1, first_issued=True)
    stamp(5)
    ACC = 8
    wrest = wload_ops()[NEARLY + NGAP:]
    for i in range(3):
        for k in range(4):
            hload(vm, i, k)
        if i == 1:
            vm.wait("ast")
            flag_store(vm, PFO, ZERO)
    hq = [(i, k) for i in range(3, 14) for k in range(4)]
    X = 152
    AR = X + 8
    OP = 176
    for i in range(14):
        vm.wait(f"h{i}", f"W{i}", *(["look"] if i == 10 else []))
        if "g2st" in OPT and i in (0, 5, 10):
            stamp(9 + i // 5)
        if i == 10:
            lab = a.newlabel("La")
            a(f"v_cmp_ne_u32 vcc, {TAG}, v{X + 6}\nv_cmp_ne_u32 s[12:13], {TAG}, v{X + 7}\ns_or_b64 vcc, vcc, s[12:13]\ns_cbranch_scc0 {lab}")
            poll(f"v{X + 5}", f"v{X + 6}")
            a(f"v_add_u32 v{X + 5}, 4, v{X + 5}")
            poll(f"v{X + 5}", f"v{X + 6}")
            a(f"{lab}:")
            if "g2st" in OPT:
                stamp(12)
        misc = []
        if i == 7:
            misc = f"""
            s_lshr_b32 s10, {TB}, 4
            s_mul_i32 s10, s10, 2560
            s_mul_i32 s16, {CS}, 320
            s_add_u32 s10, s10, s16
            s_add_u32 s10, s10, {AFLAG}
            v_lshl_add_u32 v{X + 5}, {LANE}, 3, s10
            s_lshl_b32 s10, {TB}, 2
            s_add_u32 s10, s10, {WAVE}
            s_lshl_b32 s10, s10, 4
            s_add_u32 s10, s10, {GFLAG}
            v_and_b32 v{X + 6}, 1, {LANE}
            v_lshl_add_u32 v{X + 6}, v{X + 6}, 3, s10
            v_cmp_gt_u32 vcc, 40, {LANE}
            v_cndmask_b32 v{X + 5}, v{X + 6}, v{X + 5}, vcc
            """.strip().split("\n")
        if i == 8:
            vm.issue("look", f"buffer_load_dwordx2 {vr(X + 6, 2)}, v{X + 5}, {WSRD}, 0 offen sc1")
            misc = f"""
            v_lshrrev_b32 v{X + 2}, 3, {LANE}
            v_and_b32 v{X + 3}, 6, v{X + 2}
            v_and_b32 v{X}, 7, {LANE}
            v_xor_b32 v{X + 3}, v{X + 3}, v{X}
            v_lshlrev_b32 v{X + 2}, 12, v{X + 2}
            v_lshl_add_u32 v{X + 2}, v{X + 3}, 4, v{X + 2}
            s_mul_i32 s16, {CS}, {80 * 4096}
            s_lshl_b32 s10, {TB}, 7
            s_add_u32 s16, s16, s10
            s_add_u32 s16, s16, {AG}
            s_lshl_b32 s17, {TB}, 8
            s_lshl_b32 s10, {WAVE}, 6
            s_add_u32 s17, s17, s10
            s_add_u32 s17, s17, {G_OFF}
            v_lshlrev_b32 v{X + 3}, 2, {L15}
            s_mul_i32 s18, {WAVE}, 20480
            v_add_u32 v{X + 1}, s18, {L16}
            s_mul_i32 s20, {WAVE}, {24 * 4096}
            s_mul_i32 s21, {WAVE}, 3072
            """.strip().split("\n")
        if i == 9:
            for k in range(1, 4):
                misc += [f"s_sub_u32 s10, {WAVE}, {k}", "s_and_b32 s10, s10, 3", "s_mul_i32 s10, s10, 20480", f"v_add_u32 v{X + 19 + k}, s10, {L16}"]
            misc += [f"s_add_u32 s56, s42, s16\ns_addc_u32 s57, s43, 0", f"s_mov_b32 s58, {80 * 4096 - 3968}"]
        if i == 10:
            misc = f"""
            s_lshl_b32 s19, {TB}, 6
            s_lshl_b32 s10, {WAVE}, 4
            s_add_u32 s19, s19, s10
            s_mul_i32 s19, s19, 1280
            s_mul_i32 s10, {CS}, 160
            s_add_u32 s19, s19, s10
            s_mov_b32 s48, s38
            s_mov_b32 s49, s39
            s_mov_b32 s50, {2048 * 1280}
            s_mov_b32 s51, 0x20000
            s_add_u32 s18, s18, 15360
            v_mul_u32_u24 v{X + 7}, {OP}, {L15}
            v_lshl_add_u32 v{X + 7}, {G4}, 3, v{X + 7}
            v_add_u32 v{X + 7}, s18, v{X + 7}
            """.strip().split("\n")
            for m in range(3):
                a(f"s_add_u32 m0, s21, {L_AT + 1024 * m}")
                vm.issue("ag", f"buffer_load_dwordx4 v{X + 2}, {SRDC}, s20 offen sc1 lds")
                a(f"s_add_u32 s20, s20, {8 * 4096}")
            vm.issue("ag", f"buffer_load_dword v{X + 4}, v{X + 3}, {WSRD}, s17 offen sc1")
        if i == 11:
            for n in range(3):
                q, row, c, la, ga = X + 24, X + 25, X + 26, X + 28 + n, X + 32 + n
                misc += f"""
                v_add_u32 v{q}, {64 * n}, {LANE}
                v_mul_u32_u24 v{row}, 205, v{q}
                v_lshrrev_b32 v{row}, 11, v{row}
                v_mul_u32_u24 v{c}, 10, v{row}
                v_sub_u32 v{c}, v{q}, v{c}
                v_lshlrev_b32 v{c}, 4, v{c}
                v_mul_u32_u24 v{la}, {OP}, v{row}
                v_add3_u32 v{la}, v{la}, v{c}, s18
                v_mul_u32_u24 v{ga}, 1280, v{row}
                v_add_u32 v{ga}, v{ga}, v{c}
                """.strip().split("\n")
        if i == 12:
            misc = f"""
            v_lshrrev_b32 v{X + 5}, 2, {LANE}
            v_lshlrev_b32 v{X + 5}, 7, v{X + 5}
            v_bfe_u32 v{X + 6}, {LANE}, 3, 2
            v_xor_b32 v{X + 6}, {WAVE}, v{X + 6}
            v_lshl_add_u32 v{X + 5}, v{X + 6}, 5, v{X + 5}
            v_and_b32 v{X + 6}, 3, {LANE}
            v_lshl_add_u32 v{X + 5}, v{X + 6}, 3, v{X + 5}
            v_add_u32 v{X + 5}, {L_AT}, v{X + 5}
            """.strip().split("\n")
        for k in range(4):
            for dt in range(5):
                d = vr(ACC + 20 * k + 4 * dt, 4)
                a(f"v_mfma_f32_16x16x32_bf16 {d}, {WSLOT[5 * i + dt]}, {vr(HSLOT[i % NH] + 4 * k, 4)}, {'0' if i == 0 else d}")
                for _ in range(2 if i == 11 else 1):
                    if misc:
                        a(misc.pop(0))
                if dt in (1, 4) and hq and (hq[0][0] < i + NH or (hq[0][0] == i + NH and hq[0][1] <= k - (dt != 4))):
                    hload(vm, *hq.pop(0))
                elif dt == 2 and wrest and i >= 2:
                    emit_op(vm, wrest.pop(0))
        assert not misc
    assert not hq and not wrest
    stamp(6)
    for k in range(1, 4):
        for dt in range(5):
            a(f"ds_write_b128 v{X + 1}, {vr(ACC + 20 * k + 4 * dt, 4)} offset:{5120 * (k - 1) + 1024 * dt}")
    GA = 192
    a(f"""
    s_waitcnt vmcnt(0)
    v_sub_f32 v{X + 6}, 1.0, v{X + 4}
    v_cvt_pk_bf16_f32 v{X + 6}, v{X + 6}, v{X + 6}
    v_and_b32 v{X + 6}, 0xffff0000, v{X + 6}
    s_waitcnt lgkmcnt(0)
    s_barrier
    """)
    PR = 88
    for dt in range(5):
        a(f"ds_read_b64_tr_b16 {vr(AR + 2 * dt, 2)}, v{X + 5} offset:{2048 * dt}")
    for k in range(1, 4):
        for dt in range(5):
            a(f"ds_read_b128 {vr(PR + 20 * (k - 1) + 4 * dt, 4)}, v{X + 19 + k} offset:{5120 * (k - 1) + 1024 * dt}")
    a("s_waitcnt lgkmcnt(15)")
    for i in range(10):
        a(f"v_lshlrev_b32 v{GA + 2 * i}, 16, v{AR + i}\nv_and_b32 v{GA + 2 * i + 1}, 0xffff0000, v{AR + i}")
    for i in range(20):
        a(f"v_mul_f32 v{GA + i}, v{X + 4}, v{GA + i}")
    for k in range(3):
        a(f"s_waitcnt lgkmcnt({10 - 5 * k})")
        for i in range(10):
            a(f"v_pk_add_f32 {vr(ACC + 2 * i, 2)}, {vr(ACC + 2 * i, 2)}, {vr(PR + 20 * k + 2 * i, 2)}")
    for i in range(20):
        a(f"v_fma_f32 v{GA + i}, v{X + 6}, v{ACC + i}, v{GA + i}")
    for dt in range(5):
        a(f"v_cvt_pk_bf16_f32 v{AR + 2 * dt}, v{GA + 4 * dt}, v{GA + 4 * dt + 1}\nv_cvt_pk_bf16_f32 v{AR + 2 * dt + 1}, v{GA + 4 * dt + 2}, v{GA + 4 * dt + 3}")
        a(f"ds_write_b64 v{X + 7}, {vr(AR + 2 * dt, 2)} offset:{32 * dt}")
    for n in range(3):
        a(f"ds_read_b128 {vr(PR + 4 * n, 4)}, v{X + 28 + n}")
    for n in range(3):
        a(f"s_waitcnt lgkmcnt({2 - n})")
        if n == 2:
            a("s_mov_b32 exec_hi, 0")
        a(f"buffer_store_dwordx4 {vr(PR + 4 * n, 4)}, v{X + 32 + n}, {SRDA}, s19 offen")
    if DIAG:
        a("s_mov_b64 exec, -1\ns_waitcnt vmcnt(0)")
        stamp(13)
        a(f"""
        s_lshl_b32 s10, s2, 8
        s_lshl_b32 s11, {WAVE}, 6
        s_add_u32 s10, s10, s11
        s_add_u32 s10, s10, {STAMP}
        s_mov_b64 exec, 1
        """)
        for i in range(14):
            a(f"v_mov_b32 v{8 + i}, s{74 + 2 * i}")
        for i in range(4):
            a(f"buffer_store_dwordx4 v[{8 + 4 * i}:{11 + 4 * i}], {ZERO}, {WSRD}, s10 offen offset:{16 * i}")
        if "dbgspan" in OPT:
            a(f"v_not_b32 v30, v8\nglobal_atomic_umax {ZERO}, v30, {DBG} offset:4 sc1")
            for k, i in enumerate((0, 1, 2, 3, 4, 5, 6, 13)):
                a(f"global_atomic_umax {ZERO}, v{8 + i}, {DBG} offset:{8 + 4 * k} sc1")
    a("L_end:\ns_endpgm")


gemm2(vmA)


def typeC():
    vm = VM(a)
    a(f"""
    L_typeC:
    s_sub_u32 {CP}, s2, 224
    s_mul_i32 {CP}, {CP}, 3
    s_add_u32 {CP}, {CP}, 224
    s_mov_b32 {CPB}, 0
    s_mov_b32 {KCB}, {CB}
    s_lshl_b32 {W2K}, {WAVE}, 11
    s_mul_i32 {CHB}, {WT}, {CHP}
    s_lshl_b32 s10, {CP}, 9
    v_lshl_add_u32 v68, v0, 1, s10
    s_lshl_b32 s69, {CP}, 2
    s_waitcnt lgkmcnt(0)
    """)
    param_loads(vm, 3)
    for r in range(3):
        a(f"s_load_dword s{48 + r}, {LDT}, s69\ns_load_dword s{52 + r}, {DSK}, s69\ns_add_u32 s69, s69, 4")
    a("s_mov_b32 s44, s42\ns_mov_b32 s45, s43\ns_mov_b32 s30, s16\ns_mov_b32 s31, s17")
    gate_addr()
    gate_loads(vm)
    for l in kgen_addr() + late_addr():
        a(l)
    srd(56, 42, 43, W2F, 54 * 40960); a(f"s_mul_i32 {WSO}, {WAVE}, {14 * 40960}\ns_mul_i32 {HSO}, {WAVE}, {14 * 4096}")
    a(f"s_lshl_b32 s10, {WF_}, 8\ns_add_u32 s10, s10, {CHB}\nv_lshl_add_u32 v70, {LANE}, 2, s10")
    a(f"ds_write_b32 v70, {ZERO} offset:{2 * CHP}\nds_write_b32 v70, {ZERO} offset:{4 * CHP}")
    a(f"s_lshl_b32 s10, {WT}, 4\ns_waitcnt lgkmcnt(0)")
    for r in range(3):
        for b, d in ((48, SDT), (52, SDS)):
            a(f"s_lshr_b32 s{d + r}, s{b + r}, s10\ns_lshl_b32 s{d + r}, s{d + r}, 16")
    a("s_waitcnt vmcnt(10)")
    stamp(8)
    K = [kgen_sections(CPAR[r], f"s{SDT + r}", f"s{SDS + r}") for r in range(3)]
    for l in K[0][0]:
        a(l)
    for r in range(3):
        for sec in K[r][1:5]:
            for l in sec:
                a(l)
        if r == 0:
            a("s_waitcnt vmcnt(0)")
            gate_finish(vm)
        if r == 1:
            a(f"global_load_dword {VTAG}, {ZERO}, {DBG} sc1")
        if r < 2:
            for l in K[r + 1][0]:
                a(l)
        else:
            a(f"""
            s_lshr_b32 s10, {CP}, 5
            s_lshl_b32 s10, s10, 8
            s_add_u32 s10, s10, {UFLAG}
            v_lshl_add_u32 v17, {LANE}, 2, s10
            s_add_u32 s10, {CP}, 2
            s_lshr_b32 s10, s10, 5
            s_lshl_b32 s10, s10, 8
            s_add_u32 s10, s10, {UFLAG}
            v_lshl_add_u32 {VUFL}, {LANE}, 2, s10
            s_waitcnt vmcnt(0)
            buffer_load_dword {LOOK2}, {VUFL}, {WSRD}, 0 offen sc1
            buffer_load_dword v18, v17, {WSRD}, 0 offen sc1
            """)
            get_tag()
            flag_store(vm, PF2, VPF)
        for l in K[r][5]:
            a(l)
        if r < 2:
            for x in range(TW, TR + 1):
                a(f"v_add_u32 v{x}, {2 * CHP}, v{x}")
            for x in range(228, 232):
                a(f"v_add_u32 v{x}, 12288, v{x}")
    stamp(1)
    a("s_waitcnt vmcnt(0) lgkmcnt(0)\ns_barrier")
    poll(VUFL, LOOK2, first_issued=True, nap=8)
    poll("v17", "v18", first_issued=True, nap=8)
    a(f"s_lshl_b32 {ULO}, {CP}, 7\ns_add_u32 {ULO}, {ULO}, {UT}\ns_add_u32 s10, {ULO}, {32 * 40960}")
    for r in range(3):
        a(f"buffer_load_dwordx4 {vr(64 + 8 * r, 4)}, {VUG}, {WSRD}, {ULO} offen offset:{128 * r} sc1")
        a(f"buffer_load_dwordx4 {vr(68 + 8 * r, 4)}, {VUG}, {WSRD}, s10 offen offset:{128 * r} sc1")
    exA, exB = expansion()
    a("L_c_exp:")
    for l in exA:
        a(l)
    a("s_waitcnt lgkmcnt(0)")
    for l in exB:
        a(l)
    a(f"""
    s_add_u32 {CHB}, {CHB}, {2 * CHP}
    s_add_u32 {KCB}, {KCB}, 12288
    s_cmp_lt_u32 {CHB}, {6 * CHP}
    s_cbranch_scc1 L_c_exp
    s_mul_i32 {CHB}, {WT}, {CHP}
    s_waitcnt vmcnt(0)
    """)
    for r in range(3):
        for n in range(2):
            a(f"ds_write_b128 {VUL}, {vr(64 + 8 * r + 4 * n, 4)} offset:{2 * CHP * r + L_U + 512 + 2048 * n}")
    stamp(2)
    vm.q = []
    conv(vm, wload_ops()[:NEARLY + NGAP], 3)
    vm.wait("look")
    assert q_g2[-3:] == ["look", "ast", "ast"] and vm.q[-2:] == ["ast", "ast"]
    a("s_branch L_gemm2\nL_code1:")


typeC()

body = a.render()
head = open(f"cdna_kernels/{NAME}.s.ref").read().split("; Override launch")[0]
text = head + f"""; Generated by the author's own generator script; single fused kernel, one workgroup per CU.
; @launch grid=(256,1,1) block=(256,1,1) lds=163840
.amdgcn_target "amdgcn-amd-amdhsa--gfx950"
.text
.globl {NAME}_kernel
.p2align 8
.type {NAME}_kernel,@function
{NAME}_kernel:
{body}.section .rodata,"a"
.p2align 6
.amdhsa_kernel {NAME}_kernel
  .amdhsa_next_free_vgpr 512
  .amdhsa_next_free_sgpr 102
  .amdhsa_accum_offset 256
  .amdhsa_group_segment_fixed_size 0
  .amdhsa_kernarg_size 112
  .amdhsa_user_sgpr_count 2
  .amdhsa_user_sgpr_kernarg_segment_ptr 1
  .amdhsa_system_sgpr_workgroup_id_x 1
.end_amdhsa_kernel
"""
open(OUT, "w").write(text)
print("wrote", OUT, "lines", text.count("\n"), "auto nops", a.nops)
```

```python
import sys, struct
from asmlib import Asm, VM

NAME = "gated_mix__ssm_conv_s4d__dense_activation_relu__prompt"
DIAG = "--diag" in sys.argv
OPT = set(x[2:] for x in sys.argv if x.startswith("--"))
OUT = [x for x in sys.argv[1:] if not x.startswith("--")]
OUT = OUT[0] if OUT else f"cdna_kernels/{NAME}.s"

HFLAG, UFLAG, G_OFF, WFLAG, GFLAG, AFLAG = 0x0, 0x1000, 0x2000, 0x5000, 0x5800, 0x6000
UT = 0x10000
W2F = UT + 64 * 40960
HF = W2F + 54 * 40960
AG = HF + 32 * 54 * 4096
STAMP = AG + 160 * 16384
WS_END = STAMP + 512 * 4 * 64
SPIN_LIMIT = 400000
OOB = 0x40000000
WSHIFT = "\ns_add_u32 s42, s42, 0xF000000\ns_addc_u32 s43, s43, 0" if "wsend" in OPT else ""

XB, WB, CB = 0, 49152, 98304
NWS = 6
L_U, L_KE, L_KO, CHP = 0, 4608, 9280, 13952
L_KC = CB + 2 * CHP
L_W2 = L_KC + 4 * 3072
L_AT = 81920
TP = 288


def f32(x):
    return "0x%08x" % struct.unpack("<I", struct.pack("<f", x))[0]


def vr(b, n=1, f="v"):
    return f"{f}{b}" if n == 1 else f"{f}[{b}:{b + n - 1}]"


a = Asm()
LOGA, AIM, CR, CI, LDT, DSK = "s[18:19]", "s[20:21]", "s[22:23]", "s[24:25]", "s[26:27]", "s[28:29]"
DBG, WSRD = "s[40:41]", "s[44:47]"
SRDA, SRDB, SRDC = "s[48:51]", "s[52:55]", "s[56:59]"
WAVE, TAG, XCD, J = "s3", "s4", "s5", "s6"
RB, CT = "s7", "s8"
W2K, WT, WF_ = "s11", "s14", "s15"
XS, WSS = 16, 26
HFO, W4K, D0, UTO, UFO = "s60", "s62", "s63", "s64", "s65"
CP, CPB, CHB, PFO, PF2 = "s67", "s70", "s61", "s71", "s68"
ULO = "s69"
TB, CS = "s72", "s73"
WSO, HSO = "s36", "s37"
LANE, ZERO = "v1", "v3"
VXS, VWS, VXR, VWR = [236, 237, 238, 239], [240, 241, 242, 243], [244, 245], [246, 247, 248, 249]
L16, VUT, VTAG = "v250", "v251", "v252"
L15, G4 = "v254", "v255"


def stamp(i):
    if DIAG:
        a(f"s_memrealtime s[{74 + 2 * i}:{75 + 2 * i}]\ns_waitcnt lgkmcnt(0)")


def srd(dst, lo, hi, off_s, size):
    if off_s is None:
        a(f"s_mov_b32 s{dst}, s{lo}\ns_mov_b32 s{dst + 1}, s{hi}")
    else:
        a(f"s_add_u32 s{dst}, s{lo}, {off_s}\ns_addc_u32 s{dst + 1}, s{hi}, 0")
    a(f"s_mov_b32 s{dst + 2}, {size}\ns_mov_b32 s{dst + 3}, 0x20000")


def poll(voff, vf, first_issued=False, nap=4):
    lp, chk, done = (a.newlabel(x) for x in ("Lp", "Lc", "Ld"))
    if first_issued:
        a(f"v_cmp_ne_u32 vcc, {TAG}, {vf}\ns_cmp_eq_u64 vcc, 0\ns_cbranch_scc1 {done}")
    a(f"""
    s_mov_b32 s66, 0
    {lp}:
    buffer_load_dword {vf}, {voff}, {WSRD}, 0 offen sc1
    s_waitcnt vmcnt(0)
    v_cmp_ne_u32 vcc, {TAG}, {vf}
    s_cmp_eq_u64 vcc, 0
    s_cbranch_scc1 {done}
    s_sleep {nap}
    s_add_u32 s66, s66, 1
    s_cmp_lt_u32 s66, {SPIN_LIMIT}
    s_cbranch_scc1 {lp}
    {done}:
    """)


def get_tag():
    lp, done = a.newlabel("Lt"), a.newlabel("Ld")
    a(f"""
    v_readfirstlane_b32 {TAG}, {VTAG}
    s_cmp_lg_u32 {TAG}, 0
    s_cbranch_scc1 {done}
    s_mov_b32 s66, 0
    {lp}:
    global_load_dword {VTAG}, {ZERO}, {DBG} sc1
    s_waitcnt vmcnt(0)
    v_readfirstlane_b32 {TAG}, {VTAG}
    s_cmp_lg_u32 {TAG}, 0
    s_cbranch_scc1 {done}
    s_sleep 2
    s_add_u32 s66, s66, 1
    s_cmp_lt_u32 s66, {SPIN_LIMIT}
    s_cbranch_scc1 {lp}
    {done}:
    """)


def flag_store(vm, soff, voff):
    a("s_mov_b64 exec, 1")
    vm.issue("fl", f"buffer_store_dword {VTAG}, {voff}, {WSRD}, {soff} offen sc1")
    a("s_mov_b64 exec, -1")


def dmax(D, ms=range(4)):
    return [(f"s_add_u32 m0, {W4K}, {XB + (D % 3) * 16384 + 1024 * m}",
             f"buffer_load_dwordx4 v{VXS[m]}, {SRDA}, s{XS + D} offen lds", f"x{D}") for m in ms]


def dmaw(ks):
    return [(f"s_add_u32 m0, {W2K}, {WB + (ks % NWS) * 8192 + 1024 * m}",
             f"buffer_load_dwordx4 v{VWS[2 * (ks & 1) + m]}, {SRDB}, s{WSS + (ks >> 1)} offen lds", f"w{ks}") for m in range(2)]


def emit_dma(vm, gs):
    for g in gs:
        a(g[0])
        vm.issue(g[2], g[1])


def soff(D):
    return [f"s_add_u32 s{XS + D}, s{XS + D - 1}, 128\ns_add_u32 s{WSS + D}, s{WSS + D - 1}, {64 * 3456}",
            f"s_cmp_eq_u32 s{XS + D}, 1280\ns_cselect_b32 s{XS + D}, 0, s{XS + D}\ns_cselect_b32 s{WSS + D}, 0, s{WSS + D}"]


def g1_setup_a():
    a(f"""
    s_mul_i32 {RB}, {J}, 37
    s_lshr_b32 {RB}, {RB}, 8
    s_mul_i32 {CT}, {RB}, 7
    s_sub_u32 {CT}, {J}, {CT}
    s_lshr_b32 s9, {XCD}, 1
    s_lshl_b32 s9, s9, 2
    s_add_u32 {RB}, {RB}, s9
    s_and_b32 s9, {XCD}, 1
    s_mul_i32 s9, s9, 7
    s_add_u32 {CT}, {CT}, s9
    v_lshrrev_b32 v4, 3, {LANE}
    s_lshl_b32 s10, {WAVE}, 5
    v_add_u32 v4, s10, v4
    v_mul_u32_u24 v4, 1280, v4
    v_and_b32 v6, 7, {LANE}
    v_xor_b32 v6, v6, {G4}
    v_lshl_add_u32 v{VXS[0]}, v6, 4, v4
    v_xor_b32 v{VXS[1]}, 64, v{VXS[0]}
    v_add_u32 v{VXS[1]}, 10240, v{VXS[1]}
    v_add_u32 v{VXS[2]}, 20480, v{VXS[0]}
    v_add_u32 v{VXS[3]}, 20480, v{VXS[1]}
    s_lshl_b32 s10, {WAVE}, 3
    v_add_u32 v4, s10, {G4}
    v_mul_u32_u24 v4, 3456, v4
    s_lshl_b32 s10, {WF_}, 2
    v_or_b32 v6, s10, {G4}
    v_lshlrev_b32 v6, 1, v6
    v_xor_b32 v6, v6, {L15}
    v_lshl_add_u32 v{VWS[0]}, v6, 4, v4
    s_lshl_b32 s10, {CT}, 8
    v_add_u32 v{VWS[0]}, s10, v{VWS[0]}
    v_add_u32 v{VWS[1]}, 13824, v{VWS[0]}
    v_add_u32 v{VWS[2]}, {32 * 3456}, v{VWS[0]}
    v_add_u32 v{VWS[3]}, {32 * 3456}, v{VWS[1]}
    s_lshl_b32 {W2K}, {WAVE}, 11
    s_lshl_b32 {W4K}, {WAVE}, 12
    s_mul_i32 s12, {RB}, 3
    s_add_u32 s12, s12, {CT}
    s_mul_i32 s13, s12, 205
    s_lshr_b32 s13, s13, 11
    s_mul_i32 s13, s13, 10
    s_sub_u32 {D0}, s12, s13
    s_mul_i32 s9, {RB}, {128 * 1280}
    """)


def g1_setup_b():
    srd(48, 16, 17, "s9", 128 * 1280)
    srd(52, 32, 33, None, 640 * 3456)


def g1_setup_c():
    a(f"""
    s_lshl_b32 s10, {WT}, 13
    v_lshlrev_b32 v{VXR[0]}, 7, {L15}
    v_add_u32 v{VXR[0]}, s10, v{VXR[0]}
    v_bfe_u32 v4, {LANE}, 1, 3
    v_xor_b32 v4, v4, {G4}
    v_lshl_add_u32 v{VXR[0]}, v4, 4, v{VXR[0]}
    v_xor_b32 v{VXR[1]}, 64, v{VXR[0]}
    v_bfe_u32 v4, {LANE}, 2, 2
    v_lshl_add_u32 v6, {G4}, 3, v4
    v_lshlrev_b32 v{VWR[0]}, 8, v6
    v_and_b32 v6, 1, {G4}
    v_lshl_or_b32 v6, v6, 2, v4
    s_lshl_b32 s10, {WF_}, 2
    v_xor_b32 v6, s10, v6
    v_lshl_add_u32 v{VWR[0]}, v6, 5, v{VWR[0]}
    v_and_b32 v7, 3, {LANE}
    v_lshl_add_u32 v{VWR[0]}, v7, 3, v{VWR[0]}
    v_add_u32 v{VWR[0]}, {WB}, v{VWR[0]}
    v_xor_b32 v{VWR[1]}, 32, v{VWR[0]}
    v_xor_b32 v{VWR[2]}, 64, v{VWR[0]}
    v_xor_b32 v{VWR[3]}, 0x60, v{VWR[0]}
    v_lshl_add_u32 v6, v7, 3, v4
    v_lshlrev_b32 v253, 7, v6
    v_add_u32 v253, {W4K}, v253
    v_bfe_u32 v6, v6, 1, 3
    v_lshrrev_b32 v7, 5, {LANE}
    v_xor_b32 v6, v6, v7
    v_lshl_add_u32 v253, v6, 4, v253
    v_and_b32 v6, 1, {G4}
    v_lshl_add_u32 v253, v6, 3, v253
    s_lshl_b32 s10, {RB}, 2
    s_add_u32 s10, s10, {WAVE}
    s_mul_i32 {UTO}, s10, 40960
    s_lshl_b32 {UFO}, {D0}, 12
    s_add_u32 {UTO}, {UTO}, {UFO}
    s_add_u32 {UTO}, {UTO}, {UT}
    s_lshl_b32 {UFO}, {D0}, 8
    s_lshl_b32 s10, s10, 2
    s_add_u32 {UFO}, {UFO}, s10
    s_add_u32 {UFO}, {UFO}, {UFLAG}
    s_cmp_lt_u32 {CT}, 10
    s_cselect_b32 s10, 0, {OOB}
    v_lshlrev_b32 {VUT}, 8, {G4}
    v_lshl_add_u32 {VUT}, v4, 5, {VUT}
    v_bfe_u32 v6, {LANE}, 1, 1
    v_lshl_add_u32 {VUT}, v6, 7, {VUT}
    v_and_b32 v6, 1, {LANE}
    v_lshl_add_u32 {VUT}, v6, 4, {VUT}
    v_add_u32 {VUT}, s10, {VUT}
    """)


def ut_step(vm, t):
    vm.wait("x0")
    vm.issue("tag", f"global_load_dword {VTAG}, {ZERO}, {DBG} sc1")
    a(f"v_mov_b32 v{t + 16}, v253\nv_xor_b32 v{t + 17}, 32, v253\nv_xor_b32 v{t + 18}, 64, v253\nv_xor_b32 v{t + 19}, 0x60, v253")
    for dt in range(4):
        a(f"ds_read_b64_tr_b16 {vr(t + 4 * dt, 2)}, v{t + 16 + dt}\nds_read_b64_tr_b16 {vr(t + 2 + 4 * dt, 2)}, v{t + 16 + (dt ^ 1)} offset:512")
    for dt in range(4):
        a(f"s_waitcnt lgkmcnt({6 - 2 * dt})")
        vm.issue("ut", f"buffer_store_dwordx4 {vr(t + 4 * dt, 4)}, {VUT}, {WSRD}, {'s46' if 'nout' in OPT else UTO} offen offset:{1024 * dt} sc1")


def ut_flag(vm):
    vm.wait("ut")
    get_tag()
    flag_store(vm, UFO, VUT)


VWFL, VUFL, VHFL, VUG, VUL, LOOK1, LOOK2, VPS, VPF = "v8", "v9", "v10", "v11", "v12", "v13", "v14", "v15", "v16"
HV = ["v0", "v5", "v6", "v7"]
JUNK = "v233"
KCB, HFM = "s9", "s[30:31]"

a("L_code0:")
CODEPF = f"""
s_getpc_b64 s[12:13]
L_pc0:
s_lshr_b32 s10, s2, 3
s_lshl_b32 s10, s10, 11
v_lshl_add_u32 v40, v0, 7, s10
v_min_u32 v40, L_code1-L_pc0-4, v40
v_cmp_gt_u32 vcc, 16, v0
s_and_saveexec_b64 s[8:9], vcc
s_cbranch_execz L_nopf
global_load_dword {JUNK}, v40, s[12:13]
L_nopf:
s_mov_b64 exec, -1
""" if "nopf" not in OPT else ""
stamp(0)
a(f"""
s_cmp_ge_u32 s2, 256
s_cbranch_scc1 L_end
s_load_dwordx16 s[16:31], s[0:1], 0
s_load_dwordx8 s[32:39], s[0:1], 64
s_load_dwordx4 s[40:43], s[0:1], 96
{CODEPF}
v_lshrrev_b32 v2, 6, v0
v_and_b32 {LANE}, 63, v0
v_mov_b32 {ZERO}, 0
v_readfirstlane_b32 {WAVE}, v2
s_and_b32 {XCD}, s2, 7
s_lshr_b32 {J}, s2, 3
s_mov_b32 s46, {WS_END}
s_mov_b32 s47, 0x20000
v_and_b32 {L15}, 15, v0
v_bfe_u32 {G4}, v0, 4, 2
v_lshlrev_b32 {L16}, 4, {LANE}
s_lshr_b32 {WT}, {WAVE}, 1
s_and_b32 {WF_}, {WAVE}, 1
s_cmp_ge_u32 {J}, 28
s_cbranch_scc1 L_typeC
""")


def tlb_touch():
    if "tlb" not in OPT:
        return
    lab = a.newlabel("Ltl")
    a(f"""
    s_cmp_lg_u32 {WAVE}, 1
    s_cbranch_scc1 {lab}
    v_lshlrev_b32 v40, 18, {LANE}
    v_add_u32 v40, 0xff80, v40
    buffer_load_dword {JUNK}, v40, {WSRD}, 0 offen sc1
    v_lshlrev_b32 v40, 16, {LANE}
    v_min_u32 v40, {2048 * 1280 - 4}, v40
    global_load_dword {JUNK}, v40, s[38:39] sc1
    {lab}:
    """)


def bf16_round_int(l):
    if l < 256:
        return l
    e = l.bit_length() - 8
    q, r = l >> e, l & ((1 << e) - 1)
    h = 1 << (e - 1)
    if r > h or (r == h and (q & 1)):
        q += 1
    return q << e


PAR = 208
SDT, SDS = 20, 23


def param_loads(vm, n=1):
    for r in range(n):
        for k, ptr in enumerate((LOGA, AIM, CR, CI)):
            vm.issue("par", f"global_load_ushort v{CPAR[r] + k}, v68, {ptr} offset:{512 * r}")


CPAR = [208, 212, 240]
GX, GW = 152, 172


def gate_addr():
    a(f"""
    s_lshl_b32 s10, {XCD}, 4
    s_add_u32 s10, s10, {J}
    s_sub_u32 s13, s10, 16
    s_lshl_b32 s10, s13, 4
    v_lshrrev_b32 v65, 4, v0
    v_add_u32 v65, s10, v65
    v_lshlrev_b32 v93, 4, {L15}
    v_mul_u32_u24 v92, 1280, v65
    v_add_u32 v92, v92, v93
    {"v_mov_b32 v92, v93" if "nogate" in OPT else ""}
    v_lshlrev_b32 {VPS}, 2, v65
    v_mov_b32 {VPF}, 0
    s_lshl_b32 {PF2}, s13, 4
    s_lshl_b32 s10, {WAVE}, 2
    s_add_u32 {PF2}, {PF2}, s10
    s_add_u32 {PF2}, {PF2}, {GFLAG}
    """)


def gate_loads(vm):
    for k in range(5):
        a(f"global_load_dwordx4 {vr(GW + 4 * k, 4)}, v93, s[36:37] offset:{256 * k}")
    for k in range(5):
        vm.issue("pre", f"global_load_dwordx4 {vr(GX + 4 * k, 4)}, v92, s[30:31] offset:{256 * k}")


def gate_finish(vm):
    a("v_mov_b32 v64, 0")
    for k in range(20):
        a(f"v_dot2_f32_bf16 v64, v{GX + k}, v{GW + k}, v64")
    a("s_nop 2")
    for sh in (8, 4, 2, 1):
        a(f"v_add_f32_dpp v64, v64, v64 row_ror:{sh} row_mask:0xf bank_mask:0xf")
    a(f"""
    v_cvt_pk_bf16_f32 v64, v64, v64
    v_and_b32 v64, 0xffff0000, v64
    v_mul_f32 v64, {f32(-1.4426950408889634)}, v64
    v_exp_f32 v64, v64
    v_add_f32 v64, 1.0, v64
    v_rcp_f32 v64, v64
    v_cvt_pk_bf16_f32 v64, v64, v64
    v_and_b32 v64, 0xffff0000, v64
    s_mov_b32 s10, {G_OFF}
    s_mov_b32 s12, 0x10001
    s_mov_b32 s13, 0x10001
    s_mov_b64 exec, s[12:13]
    """)
    vm.issue("pst", f"buffer_store_dword v64, {VPS}, {WSRD}, s10 offen sc1")
    a("s_mov_b64 exec, -1")


def late_addr():
    L = f"""
    s_lshr_b32 {TB}, {XCD}, 1
    s_lshl_b32 {TB}, {TB}, 3
    s_lshr_b32 s10, {J}, 2
    s_add_u32 {TB}, {TB}, s10
    s_and_b32 {CS}, {XCD}, 1
    s_lshl_b32 {CS}, {CS}, 2
    s_and_b32 s10, {J}, 3
    s_add_u32 {CS}, {CS}, s10
    s_mul_i32 s10, {CS}, 5120
    v_add_u32 v2, s10, {L16}
    v_add_u32 v4, 4096, v2
    s_mul_i32 s10, {WAVE}, 14
    v_lshrrev_b32 {VWFL}, 2, {LANE}
    v_min_u32 {VWFL}, 13, {VWFL}
    v_add_u32 {VWFL}, s10, {VWFL}
    v_min_u32 {VWFL}, 53, {VWFL}
    v_lshlrev_b32 {VWFL}, 5, {VWFL}
    v_and_b32 v6, 3, {LANE}
    v_lshl_add_u32 {VWFL}, v6, 2, {VWFL}
    s_and_b32 s10, {XCD}, 1
    s_lshl_b32 s10, s10, 4
    s_add_u32 s10, s10, {WFLAG}
    v_add_u32 {VWFL}, s10, {VWFL}
    s_mul_i32 s10, {WAVE}, 7
    v_min_u32 {VHFL}, 6, {LANE}
    v_add_u32 {VHFL}, s10, {VHFL}
    v_min_u32 {VHFL}, 26, {VHFL}
    v_lshlrev_b32 {VHFL}, 2, {VHFL}
    s_lshl_b32 s10, {TB}, 7
    v_add_u32 {VHFL}, s10, {VHFL}
    v_lshrrev_b32 v6, 3, v0
    v_mul_u32_u24 {VUG}, 40960, v6
    v_and_b32 v7, 7, {LANE}
    v_lshl_add_u32 {VUG}, v7, 4, {VUG}
    v_and_b32 v5, 1, {LANE}
    v_mul_u32_u24 {VUL}, {CHP}, v5
    v_lshl_add_u32 {VUL}, v6, 6, {VUL}
    v_lshrrev_b32 v7, 1, v7
    v_lshl_add_u32 {VUL}, v7, 4, {VUL}
    """.strip().replace("\n", "|").replace("@", "\n").split("|")
    for k in range(4):
        L += [f"s_add_u32 s10, {WAVE}, {k}", "s_and_b32 s10, s10, 3", "s_lshl_b32 s10, s10, 10", f"v_add_u32 {HV[k]}, s10, {L16}"]
    return L


def pair_addr():
    a(f"""
    s_lshr_b32 s10, {CP}, 5
    s_lshl_b32 s10, s10, 8
    s_add_u32 s10, s10, {UFLAG}
    v_lshl_add_u32 {VUFL}, {LANE}, 2, s10
    s_lshl_b32 {ULO}, {CP}, 7
    s_add_u32 {ULO}, {ULO}, {UT}
    s_mul_i32 {CHB}, {WT}, {CHP}
    s_add_u32 {CHB}, {CHB}, {CPB}
    """)


TW, TR = 58, 62


def kgen_addr():
    return f"""
    s_mul_i32 s10, {WF_}, {L_KO - L_KE}
    s_add_u32 s10, s10, {CHB}
    s_add_u32 s10, s10, {L_KE}
    v_lshl_add_u32 v{TW}, {LANE}, 2, s10
    v_add_u32 v{TW + 1}, {4 * TP}, v{TW}
    v_add_u32 v{TW + 2}, {8 * TP}, v{TW}
    v_add_u32 v{TW + 3}, {12 * TP}, v{TW}
    v_mul_u32_u24 v{TR}, {TP}, {L15}
    v_lshl_add_u32 v{TR}, {G4}, 4, v{TR}
    v_add_u32 v{TR}, s10, v{TR}
    s_lshl_b32 s10, {WF_}, 8
    s_add_u32 s10, s10, {CHB}
    v_lshl_add_u32 v70, {LANE}, 2, s10
    ds_write_b32 v70, {ZERO} offset:{L_U}
    s_mul_i32 s10, {WAVE}, 3072
    s_add_u32 s10, s10, {KCB}
    v_lshrrev_b32 v70, 1, {G4}
    v_and_b32 v71, 1, {G4}
    v_lshlrev_b32 v228, 9, v70
    v_lshl_add_u32 v228, v71, 4, v228
    v_lshl_add_u32 v228, {L15}, 5, v228
    v_add_u32 v228, s10, v228
    v_lshlrev_b32 v73, 8, {G4}
    v_lshlrev_b32 v229, 4, {L15}
    v_lshlrev_b32 v230, 3, {L15}
    v_cmp_gt_u32 vcc, 2, {G4}
    v_add_u32 v231, s10, v73
    v_mov_b32 v78, 0x80
    v_cndmask_b32 v229, v230, v229, vcc
    v_cndmask_b32 v78, v78, 8, vcc
    v_add_u32 v229, v231, v229
    v_add_u32 v230, v229, v78
    v_lshl_add_u32 v231, {L15}, 2, v231
    v_or_b32 v70, {WF_}, {LANE}
    v_cmp_eq_u32 vcc, 0, v70
    v_cndmask_b32 v232, 0, 1.0, vcc
    """.strip().split("\n")


def kgen_sections(PAR=208, sdt='s66', sds='s69'):
    L2E_HI = struct.unpack("<f", struct.pack("<f", 1.4426950408889634))[0]
    L2E_LO = 1.4426950408889634 - L2E_HI
    S = [[]]

    def e(t):
        S[-1].extend(x.strip() for x in t.strip().split("\n"))

    R_, Z8, G1, GC, T1, O1 = 32, 34, 36, 38, 40, 42
    P = lambda k: 44 + 2 * (k - 1)
    RBF, QA, D = 192, [120, 136], [216, 220, 224]
    e(f"s_mov_b32 s12, {f32(L2E_HI)}\ns_mov_b32 s13, {f32(L2E_LO)}")
    e(f"v_mov_b32 v70, {sdt}\nv_lshlrev_b32 v71, 16, v{PAR}")
    for t in ("v_mul_f32 v{a}, s12, v{x}", "v_fma_f32 v{b}, v{x}, s12, -v{a}", "v_exp_f32 v{a}, v{a}", "v_fma_f32 v{b}, v{x}, s13, v{b}",
              "v_mul_f32 v{b}, " + f32(0.6931471805599453) + ", v{b}", "v_fma_f32 v{a}, v{a}, v{b}, v{a}"):
        for i in range(2):
            e(t.format(a=72 + i, b=74 + i, x=70 + i))
    e(f"""
    v_cvt_pk_bf16_f32 v71, v72, v73
    v_lshlrev_b32 v70, 16, v71
    v_and_b32 v71, 0xffff0000, v71
    v_mul_f32 v71, v71, v70
    v_mul_f32 v71, {f32(-1.4426950408889634)}, v71
    v_lshlrev_b32 v72, 16, v{PAR + 1}
    v_mul_f32 v72, v72, v70
    v_mul_f32 v72, 0.15915494, v72
    v_add_f32 v73, v70, v70
    v_lshlrev_b32 v74, 16, v{PAR + 2}
    v_lshlrev_b32 v75, 16, v{PAR + 3}
    v_mul_f32 v{R_}, v74, v73
    v_mul_f32 v{R_ + 1}, -v75, v73
    v_mul_f32 v76, {f32(8.0)}, v71
    v_mul_f32 v77, {f32(128.0)}, v71
    v_mul_f32 v79, {f32(8.0)}, v72
    v_mul_f32 v80, {f32(128.0)}, v72
    v_exp_f32 v76, v76
    v_exp_f32 v77, v77
    v_exp_f32 v78, v71
    v_fract_f32 v79, v79
    v_fract_f32 v80, v80
    v_fract_f32 v81, v72
    v_cos_f32 v82, v79
    v_sin_f32 v83, v79
    v_cos_f32 v84, v80
    v_sin_f32 v85, v80
    v_cos_f32 v86, v81
    v_sin_f32 v87, v81
    v_mul_f32 v{Z8}, v76, v82
    v_mul_f32 v{Z8 + 1}, -v76, v83
    v_mul_f32 v{G1}, v77, v84
    v_mul_f32 v{G1 + 1}, v77, v85
    v_mul_f32 v{P(1)}, v78, v86
    v_mul_f32 v{P(1) + 1}, v78, v87
    """)
    st = {"n": 0}

    def put(row, reg, last=False):
        t = 88 + (st["n"] & 3)
        st["n"] += 1
        e(f"v_mov_b32 v{t}, 0x3f80" if reg is None else f"v_cvt_pk_bf16_f32 v{t}, v{reg}, v{reg + 1}")
        if row & 1:
            e(f"ds_write2_b32 v{TW + row // 4}, v{t - 1}, v{t} offset0:{((row - 1) % 4) * TP // 4} offset1:{(row % 4) * TP // 4}")
        elif last:
            e(f"ds_write_b32 v{TW + row // 4}, v{t} offset:{(row % 4) * TP}")
            st["n"] += 1

    def cm(out, x, y):
        e(f"v_pk_mul_f32 {vr(T1, 2)}, {vr(x, 2)}, {vr(y, 2)} op_sel:[0,0] op_sel_hi:[1,0]")
        e(f"v_pk_fma_f32 {vr(out, 2)}, {vr(x, 2)}, {vr(y, 2)}, {vr(T1, 2)} op_sel:[1,1,0] op_sel_hi:[0,1,1] neg_lo:[1,0,0]")

    def rd(base):
        for ks in range(4):
            e(f"ds_read_b128 {vr(base + 4 * ks, 4)}, v{TR} offset:{64 * ks}")

    def mm(d, q, zero):
        for ks in range(4):
            e(f"v_mfma_f32_16x16x32_bf16 {vr(d, 4)}, {vr(q + 4 * ks, 4)}, {vr(RBF + 4 * ks, 4)}, {'0' if (zero and ks == 0) else vr(d, 4)}")

    S.append([])
    for x in range(16):
        put(x, R_)
        if x < 15:
            cm(R_, R_, Z8)
    rd(RBF)
    S.append([])
    put(0, None)
    for k in range(1, 8):
        put(k, P(k))
        if k < 7:
            cm(P(k + 1), P(k), P(1))
    put(8, G1)
    cm(GC, G1, G1)
    for k in range(1, 8):
        cm(O1, G1, P(k))
        put(8 + k, O1)
    S.append([])
    rd(QA[0])
    row = 0
    for i in range(2, 8):
        put(row, GC)
        row += 1
        for k in ((2, 4, 6) if i < 4 else (4,)):
            cm(O1, GC, P(k))
            put(row, O1)
            row += 1
        cm(GC, GC, G1)
        if i == 3:
            e(f"v_mul_f32 v{D[0]}, {sds}, v232\nv_mov_b32 v{D[0] + 1}, 0\nv_mov_b32 v{D[0] + 2}, 0\nv_mov_b32 v{D[0] + 3}, 0\ns_waitcnt lgkmcnt(4)")
            mm(D[0], QA[0], False)
    S.append([])
    rd(QA[1])
    for i in range(8, 17):
        put(i - 8, GC, last=(i == 16))
        if i < 16:
            cm(GC, GC, G1)
    rd(QA[0])
    e(f"ds_write_b128 v228, {vr(D[0], 4)}\ns_waitcnt lgkmcnt(10)")
    mm(D[1], QA[1], True)
    S.append([])
    e("s_waitcnt lgkmcnt(0)")
    mm(D[2], QA[0], True)
    e(f"ds_write_b64 v229, {vr(D[1], 2)} offset:1024\nds_write_b64 v230, {vr(D[1] + 2, 2)} offset:1024")
    for j in range(4):
        e(f"ds_write_b32 v231, v{D[2] + j} offset:{2048 + 64 * j}")
    return S


def emit_mixed(vm, lines, ops, every):
    for n, l in enumerate(lines):
        a(l)
        if ops and n % every == every - 1:
            emit_op(vm, ops.pop(0))


def expansion():
    E = {3: 36, 2: 40, 1: 44, 0: 48}
    F = {3: 192, 2: 196, 1: 200, 0: 204}
    A = f"""
    s_mul_i32 s10, {WT}, 6144
    s_add_u32 s10, s10, {KCB}
    v_sub_u32 v32, 63, {LANE}
    v_lshl_add_u32 v33, v32, 3, s10
    v_mov_b32 v53, s10
    s_lshl_b32 s12, {WF_}, 2
    s_sub_u32 s10, s10, s12
    v_lshl_add_u32 v34, v32, 4, s10
    v_add_u32 v35, 3072, v34
    """.strip().split("\n")
    for h, R in enumerate((E, F)):
        for s, idx in ((3, 512), (2, 384), (1, 256)):
            A += [f"ds_read_b64 {vr(R[s], 2)}, v33 offset:{3072 * h + 4 * idx}", f"ds_read_b32 v{R[s] + 2}, v33 offset:{3072 * h + 4 * idx + 8}"]
        A += [f"ds_read2_b32 {vr(R[0], 2)}, v{34 + h} offset0:1 offset1:2", f"ds_read2_b32 {vr(R[0] + 2, 2)}, v{34 + h} offset0:3 offset1:4"]
    A += ["ds_read2st64_b32 v[208:209], v53 offset0:0 offset1:12"]
    B = f"""
    s_mul_i32 s10, {WF_}, {L_KO - L_KE}
    s_add_u32 s10, s10, {CHB}
    s_add_u32 s10, s10, {L_KE}
    v_lshl_add_u32 v32, {LANE}, 5, s10
    v_lshl_add_u32 v33, {LANE}, 4, s10
    v_lshl_add_u32 v34, {LANE}, 3, s10
    v_lshl_add_u32 v35, {LANE}, 2, s10
    s_sub_u32 s12, 0, {WF_}
    s_mov_b32 s13, s12
    """.strip().split("\n")
    for s in (3, 2, 1, 0):
        B.append(f"v_pk_add_f32 {vr(E[s], 2)}, {vr(E[s], 2)}, {vr(F[s], 2)}")
        B.append(f"v_add_f32 v{E[s] + 2}, v{E[s] + 2}, v{F[s] + 2}" if s else f"v_pk_add_f32 {vr(E[0] + 2, 2)}, {vr(E[0] + 2, 2)}, {vr(F[0] + 2, 2)}")
    B += ["v_add_f32 v208, v208, v209", "v_mul_f32 v208, v232, v208"]
    t = 192
    for s, l0, Bn, step in ((3, 1024, 16, 8), (2, 512, 8, 4), (1, 256, 4, 2)):
        val = lambda x: E[s] + (bf16_round_int(l0 + 64 + x) - (l0 + 64)) // step
        for m in range(Bn // 2):
            src = []
            for k in range(2):
                e, o = val(Bn - k - 2 * m), val(Bn - 1 - k - 2 * m)
                if e != o:
                    B.append(f"v_cndmask_b32 v52, v{e}, v{o}, s[12:13]")
                    e = 52
                src.append(e)
            B.append(f"v_cvt_pk_bf16_f32 v{t + m}, v{src[0]}, v{src[1]}")
        t += Bn // 2
    B += [f"v_cvt_pk_bf16_f32 v{t}, v{E[0] + 3}, v{E[0] + 2}", f"v_cvt_pk_bf16_f32 v{t + 1}, v{E[0] + 1}, v{E[0]}",
          f"v_cvt_pk_bf16_f32 v208, v208, {ZERO}",
          "ds_write_b128 v32, v[192:195]", "ds_write_b128 v32, v[196:199] offset:16", "ds_write_b128 v33, v[200:203] offset:2048",
          "ds_write_b64 v34, v[204:205] offset:3072", "ds_write_b64 v34, v[206:207] offset:3584", "ds_write_b32 v35, v208 offset:4096"]
    return A, B


WSLOT = [vr(4 * i, 4, "a") for i in range(64)] + [vr(224 + 4 * i, 4) for i in range(6)]


def wload_ops():
    L = []
    for i in range(14):
        for dt in range(5):
            post = f"s_add_u32 {WSO}, {WSO}, 40960" if dt == 4 else None
            L.append((f"buffer_load_dwordx4 {WSLOT[5 * i + dt]}, {'v4' if dt == 4 else 'v2'}, {SRDC}, {WSO} offen offset:{1024 * (dt & 3)} sc1", f"W{i}", post))
    return L


def emit_op(vm, op):
    vm.issue(op[1], op[0])
    if op[2]:
        a(op[2])


def uload_ops():
    return [(f"buffer_load_dwordx4 {vr(24 + 4 * n, 4)}, {VUG}, {WSRD}, {ULO} offen sc1", "u",
             f"s_add_u32 {ULO}, {ULO}, {32 * 40960}" if n == 0 else None) for n in range(2)]


NEARLY, NGAP = 26, 44
LOOKAT, CHECKAT = 11, 13

vmA = VM(a)
a(f"""
s_mov_b32 {CP}, s2
s_mov_b32 {CPB}, {CB}
s_lshl_b32 s10, {CP}, 9
v_lshl_add_u32 v68, v0, 1, s10
s_lshl_b32 s69, {CP}, 2
""")
g1_setup_a()
a("s_waitcnt lgkmcnt(0)" + WSHIFT)
param_loads(vmA)
a(f"s_load_dword s66, {LDT}, s69\ns_load_dword s69, {DSK}, s69")
g1_setup_b()
a(f"""
s_mov_b32 s44, s42
s_mov_b32 s45, s43
s_mov_b32 s30, s16
s_mov_b32 s31, s17
s_lshl_b32 s{XS}, {D0}, 7
s_mul_i32 s{WSS}, {D0}, {64 * 3456}
""")
emit_dma(vmA, dmax(0) + dmaw(0))
tlb_touch()
stamp(7)
srd(56, 34, 35, None, 0 if "now2" in OPT else 1728 * 1280)
a("s_cmp_ge_u32 s2, 128\ns_cbranch_scc1 L_a_gate")
a(f"""
s_cmp_lt_u32 s2, 120
s_cbranch_scc1 L_a_notag
s_cmp_lg_u32 {WAVE}, 0
s_cbranch_scc1 L_a_notag
s_memrealtime s[12:13]
s_waitcnt lgkmcnt(0)
s_or_b32 s12, s12, 1
v_mov_b32 v40, s12
v_mov_b32 v41, 0
s_mov_b64 exec, 1
global_atomic_cmpswap {ZERO}, v[40:41], {DBG} sc1
s_mov_b64 exec, -1
L_a_notag:
""")
a(f"""
s_lshr_b32 s9, s2, 1
s_mul_i32 s9, s9, 40960
s_and_b32 s12, s2, 1
s_mul_i32 s13, s12, 640
s_add_u32 s13, s13, s9
s_mul_i32 s10, {WAVE}, 10240
s_add_u32 s13, s13, s10
v_lshrrev_b32 v7, 3, {LANE}
""")
for m in range(5):
    a(f"""
    v_add_u32 v42, {8 * m}, v7
    v_mul_u32_u24 v42, 13, v42
    v_lshrrev_b32 v42, 6, v42
    v_and_b32 v43, 6, v42
    v_xor_b32 v43, v43, {LANE}
    v_mul_u32_u24 v42, 640, v42
    v_lshl_add_u32 v42, v43, 4, v42
    v_add_u32 v{92 + m}, s13, v42
    """)
a(f"""
v_add_u32 v96, 4096, v96
s_mul_i32 s12, s12, 20480
s_add_u32 s12, s12, s9
s_add_u32 s12, s12, {W2F}
s_lshl_b32 s10, {WAVE}, 10
s_add_u32 s12, s12, s10
s_cmp_lt_u32 s2, 108
s_cselect_b32 s10, 0, {OOB}
v_mov_b32 {VPF}, s10
s_add_u32 s12, s12, s10
v_add_u32 {VPS}, s12, {L16}
s_lshl_b32 {PF2}, s2, 4
s_lshl_b32 s10, {WAVE}, 2
s_add_u32 {PF2}, {PF2}, s10
s_add_u32 {PF2}, {PF2}, {WFLAG}
v_lshrrev_b32 v40, 2, {LANE}
v_mul_u32_u24 v234, 640, v40
v_bfe_u32 v40, {LANE}, 3, 2
v_xor_b32 v40, {WAVE}, v40
v_lshl_add_u32 v234, v40, 5, v234
v_and_b32 v40, 3, {LANE}
v_lshl_add_u32 v234, v40, 3, v234
v_add_u32 v234, {L_W2}, v234
s_branch L_a_join
L_a_gate:
""")
gate_addr()
a("v_mov_b32 v94, 0\nv_mov_b32 v95, 0\nv_mov_b32 v96, 0\nL_a_join:")
a(f"s_mov_b32 {KCB}, {L_KC}\ns_mul_i32 {CHB}, {WT}, {CHP}\ns_add_u32 {CHB}, {CHB}, {CPB}")
for l in kgen_addr():
    a(l)
for D in range(1, 4):
    for l in soff(D):
        a(l)
g1_setup_c()
for l in late_addr():
    a(l)
a(f"""
s_lshl_b32 s10, {WT}, 4
s_waitcnt lgkmcnt(0)
s_lshr_b32 s66, s66, s10
s_lshl_b32 s66, s66, 16
s_lshr_b32 s69, s69, s10
s_lshl_b32 s69, s69, 16
""")
KS = kgen_sections()
vmA.wait("par")
stamp(8)
pend = dmaw(1) + dmax(1) + dmaw(2) + dmaw(3) + dmax(2) + dmaw(4) + dmaw(5)
for n, sec in enumerate(KS):
    for l in sec:
        a(l)
    emit_dma(vmA, pend[:4])
    pend = pend[4:]
    if n == 2:
        ut_step(vmA, 100)
    if n == 0:
        a("s_cmp_ge_u32 s2, 128\ns_cbranch_scc1 L_a_gate1")
        q0 = list(vmA.q)
        a(f"s_mul_i32 s10, {WAVE}, 5120\ns_add_u32 s10, s10, {L_W2}")
        for m in range(5):
            a(f"s_add_u32 m0, s10, {4096 if m == 4 else 0}")
            vmA.issue("pre", f"buffer_load_dwordx4 v{92 + m}, {SRDC}, 0 offen offset:{1024 * (m & 3)} {'nt' if 'w2nt' in OPT else ''} lds")
        a("s_branch L_a_join1\nL_a_gate1:")
        vmA.q = q0
        gate_loads(vmA)
        a("L_a_join1:")
assert not pend
for D in range(4, 10):
    for l in soff(D):
        a(l)
srd(56, 42, 43, W2F, 54 * 40960); a(f"s_mul_i32 {WSO}, {WAVE}, {14 * 40960}\ns_mul_i32 {HSO}, {WAVE}, {14 * 4096}")
pair_addr()
stamp(9)


def prep_block(vm):
    a("s_cmp_ge_u32 s2, 128\ns_cbranch_scc1 L_a_gate2")
    for aa in range(5):
        a(f"ds_read_b64_tr_b16 {vr(68 + 4 * aa, 2)}, v234 offset:{128 * aa}\nds_read_b64_tr_b16 {vr(70 + 4 * aa, 2)}, v234 offset:{128 * aa + 10240}")
    for aa in range(5):
        a(f"s_waitcnt lgkmcnt({8 - 2 * aa})\ns_mov_b32 s10, {OOB if ('now2' in OPT or 'now2st' in OPT) else 4096 * aa}")
        a(f"buffer_store_dwordx4 {vr(68 + 4 * aa, 4)}, {VPS}, {WSRD}, s10 offen sc1")
    a("s_branch L_a_join2\nL_a_gate2:")
    gate_finish(vm)
    a("L_a_join2:")


def gemm1(vm):
    a("L_g1_loop:")
    ACC = 64
    WF, XF = [128, 160], [144, 176]

    def reads(ks):
        s = ks & 1
        L = []
        for i in range(4):
            L.append(f"ds_read_b128 {vr(XF[s] + 4 * i, 4)}, v{VXR[s]} offset:{XB + ((ks >> 1) % 3) * 16384 + 2048 * i}")
            L.append(f"ds_read_b64_tr_b16 {vr(WF[s] + 4 * i, 2)}, v{VWR[i]} offset:{(ks % NWS) * 8192}")
            L.append(f"ds_read_b64_tr_b16 {vr(WF[s] + 4 * i + 2, 2)}, v{VWR[i]} offset:{(ks % NWS) * 8192 + 1024}")
        return L

    vm.wait("x0", "w0", "pre", "ut", extra="lgkmcnt(0)")
    a("s_barrier")
    stamp(1)
    get_tag()
    flag_store(vm, UFO, VUT)
    prep_block(vm)
    for l in reads(0):
        a(l)
    misc = []
    ops = uload_ops() + wload_ops()[:NEARLY]
    for ks in range(20):
        s = ks & 1
        if ks < 19:
            vm.wait(f"x{(ks + 1) >> 1}", f"w{ks + 1}", *(["look"] if ks == CHECKAT else []), *(["pst"] if ks == 3 else []), extra="lgkmcnt(0)")
            a("s_barrier")
        else:
            a("s_waitcnt lgkmcnt(0)")
        if ks in (5, 10, 15) and "g2st" not in OPT:
            stamp(9 + ks // 5)
        if ks == 3:
            flag_store(vm, PF2, VPF)
        if ks == CHECKAT:
            poll(VWFL, LOOK1, first_issued=True)
            poll(VUFL, LOOK2, first_issued=True)
        rd_ = reads(ks + 1) if ks < 19 else []
        dm = []
        if ks + NWS < 20:
            dm += dmaw(ks + NWS)
        if ks >= 1:
            D = (ks - 1) // 2 + 3
            if D < 10:
                dm += dmax(D, (0, 1) if ks & 1 else (2, 3))
        n = 0
        for ft in range(4):
            for tt in range(4):
                d = vr(ACC + 16 * ft + 4 * tt, 4)
                slot = n % 4 == 1 if ks < 15 else n % 3 == 1
                g = dm.pop(0) if (dm and slot) else None
                if g:
                    a(g[0])
                a(f"v_mfma_f32_16x16x32_bf16 {d}, {vr(WF[s] + 4 * ft, 4)}, {vr(XF[s] + 4 * tt, 4)}, {'0' if ks == 0 else d}")
                if g:
                    vm.issue(g[2], g[1])
                elif ks >= CHECKAT and ops and (slot or ks == 19):
                    emit_op(vm, ops.pop(0))
                elif rd_:
                    a(rd_.pop(0))
                    if rd_ and n % 4 == 2:
                        a(rd_.pop(0))
                elif misc:
                    for _ in range(2):
                        if misc:
                            a(misc.pop(0))
                if ks == LOOKAT and n == 15:
                    assert not misc
                    vm.issue("look", f"buffer_load_dword {LOOK1}, {VWFL}, {WSRD}, 0 offen sc1")
                    vm.issue("look", f"buffer_load_dword {LOOK2}, {VUFL}, {WSRD}, 0 offen sc1")
                n += 1
        assert not dm and not rd_
    assert not ops
    stamp(2)
    a(f"""
    s_lshl_b32 {RB}, {RB}, 1
    s_add_u32 {RB}, {RB}, {WT}
    s_lshl_b32 {CT}, {CT}, 1
    s_add_u32 {CT}, {CT}, {WF_}
    s_mul_i32 s16, {RB}, {54 * 4096}
    s_lshl_b32 s10, {CT}, 13
    s_add_u32 s16, s16, s10
    s_add_u32 s16, s16, {HF}
    s_add_u32 s17, s16, 4096
    s_lshl_b32 {HFO}, {RB}, 7
    s_lshl_b32 s10, {CT}, 2
    s_add_u32 {HFO}, {HFO}, s10
    s_cmp_lt_u32 {CT}, 27
    s_cselect_b32 s10, 0, {OOB}
    v_add_u32 {VUT}, s10, {L16}
    """)
    t = 160
    for m in range(2):
        for tt in range(4):
            for h in range(2):
                r = ACC + 16 * (2 * m + h) + 4 * tt
                a(f"v_cvt_pk_bf16_f32 v{t + 2 * h}, v{r}, v{r + 1}\nv_cvt_pk_bf16_f32 v{t + 2 * h + 1}, v{r + 2}, v{r + 3}")
            for k in range(4):
                a(f"v_pk_max_i16 v{t + k}, v{t + k}, 0")
            vm.issue("hst", f"buffer_store_dwordx4 {vr(t, 4)}, {VUT}, {WSRD}, s{16 + m} offen offset:{1024 * tt} sc1")
            t += 4


gemm1(vmA)
gops = wload_ops()[NEARLY:NEARLY + NGAP]
exA, exB = expansion()
emit_mixed(vmA, exA + ["s_waitcnt lgkmcnt(0)"] + exB, gops, 14)

HSLOT = [192, 208, 88, 104, 120, 136]
NH = 6


def hload(vm, i, k):
    vm.issue(f"h{i}", f"buffer_load_dwordx4 {vr(HSLOT[i % NH] + 4 * k, 4)}, {HV[k]}, {SRDB}, {HSO} offen sc1")
    if k == 3:
        a(f"s_add_u32 {HSO}, {HSO}, 4096")


def conv(vm, ops, rounds):
    main = rounds == 1
    if main:
        a(f"v_add_u32 v17, {CPB}, {VUL}")
        vm.wait("u")
        for n in range(2):
            a(f"ds_write_b128 v17, {vr(24 + 4 * n, 4)} offset:{L_U + 512 + 2048 * n}")
    a(f"""
    s_lshl_b32 s10, {WF_}, 6
    s_sub_u32 s10, {CHB}, s10
    v_and_b32 v19, 1, {L15}
    v_mul_u32_u24 v19, {L_KO - 2 - L_KE}, v19
    v_lshl_add_u32 v19, {G4}, 4, v19
    v_lshlrev_b32 v18, 1, {L15}
    v_sub_u32 v19, v19, v18
    v_add_u32 v19, s10, v19
    v_add_u32 v20, {L_KE + 4064 - 512}, v19
    v_add_u32 v21, {L_KE + 4064 - 512 * 3}, v19
    v_add_u32 v22, {L_KE + 4064 - 512 * 5}, v19
    v_add_u32 v23, {L_KE + 4064 - 512 * 7}, v19
    v_lshlrev_b32 v19, 5, {L15}
    v_lshl_add_u32 v19, {G4}, 4, v19
    v_add_u32 v19, s10, v19
    v_add_u32 v19, {L_U + 480}, v19
    s_waitcnt lgkmcnt(0)
    s_barrier
    """)
    stamp(3)
    ACCS = [32, 192]
    AS, BS = [64, 128], [96, 160]

    def loads(g):
        s = g & 1
        L = []
        for m in range(8):
            L.append(f"ds_read_b128 {vr(BS[s] + 4 * m, 4)}, v19 offset:{512 * m}")
        for q in range(8):
            o = 128 if q % 2 == 0 else 0
            r = AS[s] + 4 * q
            L.append(f"ds_read2_b32 {vr(r, 2)}, v{20 + q // 2} offset0:{o} offset1:{o + 1}")
            L.append(f"ds_read2_b32 {vr(r + 2, 2)}, v{20 + q // 2} offset0:{o + 2} offset1:{o + 3}")
        for r in range(19, 24):
            L.append(f"v_add_u32 v{r}, {2 * CHP + 384}, v{r}" if g % 4 == 3 else f"v_subrev_u32 v{r}, 128, v{r}")
        return L

    def send(ACC):
        l1, l2 = a.newlabel("Lx"), a.newlabel("Lx")
        a(f"s_cmp_eq_u32 {WF_}, 1\ns_cbranch_scc1 {l1}\ns_nop 5")
        for j in range(4):
            a(f"ds_write_b128 v17, {vr(ACC + 16 + 4 * j, 4)} offset:{1024 * j}")
        a(f"s_branch {l2}\n{l1}:\ns_nop 5")
        for j in range(4):
            a(f"ds_write_b128 v17, {vr(ACC + 4 * j, 4)} offset:{1024 * j}")
        a(f"{l2}:")

    def recv(ACC):
        l1, l2 = a.newlabel("Lx"), a.newlabel("Lx")
        a(f"s_cmp_eq_u32 {WF_}, 1\ns_cbranch_scc1 {l1}")
        for j in range(4):
            a(f"ds_read_b128 {vr(ACC + 16 + 4 * j, 4)}, v18 offset:{1024 * j}")
        a(f"s_branch {l2}\n{l1}:")
        for j in range(4):
            a(f"ds_read_b128 {vr(ACC + 4 * j, 4)}, v18 offset:{1024 * j}")
        a(f"{l2}:")

    def out_lines(ACC):
        L = []
        for j in range(4):
            L += [f"v_pk_add_f32 {vr(ACC + 4 * j, 2)}, {vr(ACC + 4 * j, 2)}, {vr(ACC + 16 + 4 * j, 2)}",
                  f"v_pk_add_f32 {vr(ACC + 4 * j + 2, 2)}, {vr(ACC + 4 * j + 2, 2)}, {vr(ACC + 18 + 4 * j, 2)}",
                  f"v_cvt_pk_bf16_f32 v{24 + 2 * j}, v{ACC + 4 * j}, v{ACC + 4 * j + 1}", f"v_cvt_pk_bf16_f32 v{25 + 2 * j}, v{ACC + 4 * j + 2}, v{ACC + 4 * j + 3}"]
        for jp in range(2):
            L += [f"v_permlane16_swap_b32 v{24 + 4 * jp}, v{26 + 4 * jp}", f"v_permlane16_swap_b32 v{25 + 4 * jp}, v{27 + 4 * jp}"]
        return L

    def out_store():
        for jp in range(2):
            vm.issue("ast", f"buffer_store_dwordx4 {vr(24 + 4 * jp, 4)}, {VPS}, {WSRD}, s16 offen offset:{1024 * jp} sc1")

    for l in loads(0):
        a(l)
    misc = f"""
    s_lshl_b32 s10, {WAVE}, 12
    s_add_u32 s10, s10, {L_W2}
    v_add_u32 v17, s10, {L16}
    s_xor_b32 s10, {WAVE}, 1
    s_lshl_b32 s10, s10, 12
    s_add_u32 s10, s10, {L_W2}
    v_add_u32 v18, s10, {L16}
    v_lshlrev_b32 {VPS}, 5, {L15}
    v_lshrrev_b32 {VPF}, 1, {G4}
    v_lshl_add_u32 {VPS}, {VPF}, 4, {VPS}
    v_and_b32 {VPF}, 1, {G4}
    v_lshl_add_u32 {VPS}, {VPF}, 9, {VPS}
    s_lshl_b32 s16, {CP}, 13
    s_add_u32 s16, s16, {W2K}
    s_add_u32 s16, s16, {AG}
    s_mul_i32 {PFO}, {WF_}, 2560
    s_lshl_b32 s10, {CP}, 3
    s_add_u32 {PFO}, {PFO}, s10
    s_lshl_b32 s10, {WT}, 2
    s_add_u32 {PFO}, {PFO}, s10
    s_add_u32 {PFO}, {PFO}, {AFLAG}
    """.strip().split("\n")
    every = 3 if main else 4
    for g in range(4 * rounds):
        r, p, s = g // 4, g % 4, g & 1
        ACC = ACCS[r & 1]
        nxt = loads(g + 1) if g + 1 < 4 * rounds else []
        a("s_waitcnt lgkmcnt(0)")
        extra = []
        if main and p == 1:
            vm.wait("hst")
            flag_store(vm, HFO, VUT)
        if r > 0 and p == 1:
            a("s_barrier")
            recv(ACCS[(r - 1) & 1])
        if r > 0 and p == 2:
            a("s_barrier")
            extra = out_lines(ACCS[(r - 1) & 1])
        if r > 0 and p == 3:
            out_store()
            a("s_add_u32 s16, s16, 8192")
        if r > 1 and p == 1:
            vm.wait("ast")
            flag_store(vm, PFO, ZERO)
            a(f"s_add_u32 {PFO}, {PFO}, 8")
        if not main and g == 3:
            vm.wait("look")
            poll(VWFL, LOOK1, first_issued=True, nap=8)
        n = 0
        for q in range(8):
            for j in range(q, 8):
                c = "0" if (p == 0 and q == 0) else vr(ACC + 4 * j, 4)
                a(f"v_mfma_f32_16x16x32_bf16 {vr(ACC + 4 * j, 4)}, {vr(AS[s] + 4 * q, 4)}, {vr(BS[s] + 4 * (j - q), 4)}, {c}")
                if nxt:
                    a(nxt.pop(0))
                elif misc:
                    a(misc.pop(0))
                if ops and n % every == every - 1 and (main or g >= 3):
                    emit_op(vm, ops.pop(0))
                elif extra:
                    a(extra.pop(0))
                if not main and g == 1 and n == 30:
                    vm.issue("look", f"buffer_load_dword {LOOK1}, {VWFL}, {WSRD}, 0 offen sc1")
                if g == 4 * rounds - 1 and n == 30:
                    vm.issue("look", f"buffer_load_dword {LOOK1}, {VHFL}, {WSRD}, 0 offen sc1")
                n += 1
        assert not nxt and not extra
        if p == 3:
            if g == 4 * rounds - 1:
                stamp(4)
            send(ACC)
    assert not misc and not ops
    if not main:
        vm.wait("ast")
        flag_store(vm, PFO, ZERO)
        a(f"s_add_u32 {PFO}, {PFO}, 8")
    a("s_waitcnt lgkmcnt(0)\ns_barrier")
    recv(ACCS[0])
    a("s_waitcnt lgkmcnt(0)")
    for l in out_lines(ACCS[0]):
        a(l)
    out_store()


conv(vmA, gops, 1)
q_g2 = list(vmA.q)
a("L_gemm2:")


def gemm2(vm):
    a(f"s_mul_i32 s10, {TB}, {54 * 4096}\ns_add_u32 s10, s10, {HF}")
    srd(52, 42, 43, "s10", 54 * 4096)
    vm.wait("look")
    poll(VHFL, LOOK1, first_issued=True)
    stamp(5)
    ACC = 8
    wrest = wload_ops()[NEARLY + NGAP:]
    for i in range(3):
        for k in range(4):
            hload(vm, i, k)
        if i == 1:
            vm.wait("ast")
            flag_store(vm, PFO, ZERO)
    hq = [(i, k) for i in range(3, 14) for k in range(4)]
    X = 152
    AR = X + 8
    OP = 176
    for i in range(14):
        vm.wait(f"h{i}", f"W{i}", *(["look"] if i == 10 else []))
        if "g2st" in OPT and i in (0, 5, 10):
            stamp(9 + i // 5)
        if i == 10:
            lab = a.newlabel("La")
            a(f"v_cmp_ne_u32 vcc, {TAG}, v{X + 6}\nv_cmp_ne_u32 s[12:13], {TAG}, v{X + 7}\ns_or_b64 vcc, vcc, s[12:13]\ns_cbranch_scc0 {lab}")
            poll(f"v{X + 5}", f"v{X + 6}")
            a(f"v_add_u32 v{X + 5}, 4, v{X + 5}")
            poll(f"v{X + 5}", f"v{X + 6}")
            a(f"{lab}:")
            if "g2st" in OPT:
                stamp(12)
        misc = []
        if i == 7:
            misc = f"""
            s_lshr_b32 s10, {TB}, 4
            s_mul_i32 s10, s10, 2560
            s_mul_i32 s16, {CS}, 320
            s_add_u32 s10, s10, s16
            s_add_u32 s10, s10, {AFLAG}
            v_lshl_add_u32 v{X + 5}, {LANE}, 3, s10
            s_lshl_b32 s10, {TB}, 2
            s_add_u32 s10, s10, {WAVE}
            s_lshl_b32 s10, s10, 4
            s_add_u32 s10, s10, {GFLAG}
            v_and_b32 v{X + 6}, 1, {LANE}
            v_lshl_add_u32 v{X + 6}, v{X + 6}, 3, s10
            v_cmp_gt_u32 vcc, 40, {LANE}
            v_cndmask_b32 v{X + 5}, v{X + 6}, v{X + 5}, vcc
            """.strip().split("\n")
        if i == 8:
            vm.issue("look", f"buffer_load_dwordx2 {vr(X + 6, 2)}, v{X + 5}, {WSRD}, 0 offen sc1")
            misc = f"""
            v_lshrrev_b32 v{X + 2}, 3, {LANE}
            v_and_b32 v{X + 3}, 6, v{X + 2}
            v_and_b32 v{X}, 7, {LANE}
            v_xor_b32 v{X + 3}, v{X + 3}, v{X}
            v_lshlrev_b32 v{X + 2}, 12, v{X + 2}
            v_lshl_add_u32 v{X + 2}, v{X + 3}, 4, v{X + 2}
            s_mul_i32 s16, {CS}, {80 * 4096}
            s_lshl_b32 s10, {TB}, 7
            s_add_u32 s16, s16, s10
            s_add_u32 s16, s16, {AG}
            s_lshl_b32 s17, {TB}, 8
            s_lshl_b32 s10, {WAVE}, 6
            s_add_u32 s17, s17, s10
            s_add_u32 s17, s17, {G_OFF}
            v_lshlrev_b32 v{X + 3}, 2, {L15}
            s_mul_i32 s18, {WAVE}, 20480
            v_add_u32 v{X + 1}, s18, {L16}
            s_mul_i32 s20, {WAVE}, {24 * 4096}
            s_mul_i32 s21, {WAVE}, 3072
            """.strip().split("\n")
        if i == 9:
            for k in range(1, 4):
                misc += [f"s_sub_u32 s10, {WAVE}, {k}", "s_and_b32 s10, s10, 3", "s_mul_i32 s10, s10, 20480", f"v_add_u32 v{X + 19 + k}, s10, {L16}"]
            misc += [f"s_add_u32 s56, s42, s16\ns_addc_u32 s57, s43, 0", f"s_mov_b32 s58, {80 * 4096 - 3968}"]
        if i == 10:
            misc = f"""
            s_lshl_b32 s19, {TB}, 6
            s_lshl_b32 s10, {WAVE}, 4
            s_add_u32 s19, s19, s10
            s_mul_i32 s19, s19, 1280
            s_mul_i32 s10, {CS}, 160
            s_add_u32 s19, s19, s10
            s_mov_b32 s48, s38
            s_mov_b32 s49, s39
            s_mov_b32 s50, {2048 * 1280}
            s_mov_b32 s51, 0x20000
            s_add_u32 s18, s18, 15360
            v_mul_u32_u24 v{X + 7}, {OP}, {L15}
            v_lshl_add_u32 v{X + 7}, {G4}, 3, v{X + 7}
            v_add_u32 v{X + 7}, s18, v{X + 7}
            """.strip().split("\n")
            for m in range(3):
                a(f"s_add_u32 m0, s21, {L_AT + 1024 * m}")
                vm.issue("ag", f"buffer_load_dwordx4 v{X + 2}, {SRDC}, s20 offen sc1 lds")
                a(f"s_add_u32 s20, s20, {8 * 4096}")
            vm.issue("ag", f"buffer_load_dword v{X + 4}, v{X + 3}, {WSRD}, s17 offen sc1")
        if i == 11:
            for n in range(3):
                q, row, c, la, ga = X + 24, X + 25, X + 26, X + 28 + n, X + 32 + n
                misc += f"""
                v_add_u32 v{q}, {64 * n}, {LANE}
                v_mul_u32_u24 v{row}, 205, v{q}
                v_lshrrev_b32 v{row}, 11, v{row}
                v_mul_u32_u24 v{c}, 10, v{row}
                v_sub_u32 v{c}, v{q}, v{c}
                v_lshlrev_b32 v{c}, 4, v{c}
                v_mul_u32_u24 v{la}, {OP}, v{row}
                v_add3_u32 v{la}, v{la}, v{c}, s18
                v_mul_u32_u24 v{ga}, 1280, v{row}
                v_add_u32 v{ga}, v{ga}, v{c}
                """.strip().split("\n")
        if i == 12:
            misc = f"""
            v_lshrrev_b32 v{X + 5}, 2, {LANE}
            v_lshlrev_b32 v{X + 5}, 7, v{X + 5}
            v_bfe_u32 v{X + 6}, {LANE}, 3, 2
            v_xor_b32 v{X + 6}, {WAVE}, v{X + 6}
            v_lshl_add_u32 v{X + 5}, v{X + 6}, 5, v{X + 5}
            v_and_b32 v{X + 6}, 3, {LANE}
            v_lshl_add_u32 v{X + 5}, v{X + 6}, 3, v{X + 5}
            v_add_u32 v{X + 5}, {L_AT}, v{X + 5}
            """.strip().split("\n")
        for k in range(4):
            for dt in range(5):
                d = vr(ACC + 20 * k + 4 * dt, 4)
                a(f"v_mfma_f32_16x16x32_bf16 {d}, {WSLOT[5 * i + dt]}, {vr(HSLOT[i % NH] + 4 * k, 4)}, {'0' if i == 0 else d}")
                for _ in range(2 if i == 11 else 1):
                    if misc:
                        a(misc.pop(0))
                if dt in (1, 4) and hq and (hq[0][0] < i + NH or (hq[0][0] == i + NH and hq[0][1] <= k - (dt != 4))):
                    hload(vm, *hq.pop(0))
                elif dt == 2 and wrest and i >= 2:
                    emit_op(vm, wrest.pop(0))
        assert not misc
    assert not hq and not wrest
    stamp(6)
    for k in range(1, 4):
        for dt in range(5):
            a(f"ds_write_b128 v{X + 1}, {vr(ACC + 20 * k + 4 * dt, 4)} offset:{5120 * (k - 1) + 1024 * dt}")
    GA = 192
    a(f"""
    s_waitcnt vmcnt(0)
    v_sub_f32 v{X + 6}, 1.0, v{X + 4}
    v_cvt_pk_bf16_f32 v{X + 6}, v{X + 6}, v{X + 6}
    v_and_b32 v{X + 6}, 0xffff0000, v{X + 6}
    s_waitcnt lgkmcnt(0)
    s_barrier
    """)
    PR = 88
    for dt in range(5):
        a(f"ds_read_b64_tr_b16 {vr(AR + 2 * dt, 2)}, v{X + 5} offset:{2048 * dt}")
    for k in range(1, 4):
        for dt in range(5):
            a(f"ds_read_b128 {vr(PR + 20 * (k - 1) + 4 * dt, 4)}, v{X + 19 + k} offset:{5120 * (k - 1) + 1024 * dt}")
    a("s_waitcnt lgkmcnt(15)")
    for i in range(10):
        a(f"v_lshlrev_b32 v{GA + 2 * i}, 16, v{AR + i}\nv_and_b32 v{GA + 2 * i + 1}, 0xffff0000, v{AR + i}")
    for i in range(20):
        a(f"v_mul_f32 v{GA + i}, v{X + 4}, v{GA + i}")
    for k in range(3):
        a(f"s_waitcnt lgkmcnt({10 - 5 * k})")
        for i in range(10):
            a(f"v_pk_add_f32 {vr(ACC + 2 * i, 2)}, {vr(ACC + 2 * i, 2)}, {vr(PR + 20 * k + 2 * i, 2)}")
    for i in range(20):
        a(f"v_fma_f32 v{GA + i}, v{X + 6}, v{ACC + i}, v{GA + i}")
    for dt in range(5):
        a(f"v_cvt_pk_bf16_f32 v{AR + 2 * dt}, v{GA + 4 * dt}, v{GA + 4 * dt + 1}\nv_cvt_pk_bf16_f32 v{AR + 2 * dt + 1}, v{GA + 4 * dt + 2}, v{GA + 4 * dt + 3}")
        a(f"ds_write_b64 v{X + 7}, {vr(AR + 2 * dt, 2)} offset:{32 * dt}")
    for n in range(3):
        a(f"ds_read_b128 {vr(PR + 4 * n, 4)}, v{X + 28 + n}")
    for n in range(3):
        a(f"s_waitcnt lgkmcnt({2 - n})")
        if n == 2:
            a("s_mov_b32 exec_hi, 0")
        a(f"buffer_store_dwordx4 {vr(PR + 4 * n, 4)}, v{X + 32 + n}, {SRDA}, s19 offen {'sc1' if 'osc1' in OPT else 'nt' if 'ont' in OPT else ''}")
    if DIAG:
        a("s_mov_b64 exec, -1\ns_waitcnt vmcnt(0)")
        stamp(13)
        a(f"""
        s_lshl_b32 s10, s2, 8
        s_lshl_b32 s11, {WAVE}, 6
        s_add_u32 s10, s10, s11
        s_add_u32 s10, s10, {STAMP}
        s_mov_b64 exec, 1
        """)
        for i in range(14):
            a(f"v_mov_b32 v{8 + i}, s{74 + 2 * i}")
        for i in range(4):
            a(f"buffer_store_dwordx4 v[{8 + 4 * i}:{11 + 4 * i}], {ZERO}, {WSRD}, s10 offen offset:{16 * i}")
        if "dbgspan" in OPT:
            a(f"v_not_b32 v30, v8\nglobal_atomic_umax {ZERO}, v30, {DBG} offset:4 sc1")
            for k, i in enumerate((0, 1, 2, 3, 4, 5, 6, 13)):
                a(f"global_atomic_umax {ZERO}, v{8 + i}, {DBG} offset:{8 + 4 * k} sc1")
    a("L_end:\ns_endpgm")


gemm2(vmA)


def typeC():
    vm = VM(a)
    a(f"""
    L_typeC:
    s_sub_u32 {CP}, s2, 224
    s_mul_i32 {CP}, {CP}, 3
    s_add_u32 {CP}, {CP}, 224
    s_mov_b32 {CPB}, 0
    s_mov_b32 {KCB}, {CB}
    s_lshl_b32 {W2K}, {WAVE}, 11
    s_mul_i32 {CHB}, {WT}, {CHP}
    s_lshl_b32 s10, {CP}, 9
    v_lshl_add_u32 v68, v0, 1, s10
    s_lshl_b32 s69, {CP}, 2
    s_waitcnt lgkmcnt(0)
    {WSHIFT}
    """)
    param_loads(vm, 3)
    for r in range(3):
        a(f"s_load_dword s{48 + r}, {LDT}, s69\ns_load_dword s{52 + r}, {DSK}, s69\ns_add_u32 s69, s69, 4")
    a("s_mov_b32 s44, s42\ns_mov_b32 s45, s43\ns_mov_b32 s30, s16\ns_mov_b32 s31, s17")
    gate_addr()
    gate_loads(vm)
    for l in kgen_addr() + late_addr():
        a(l)
    srd(56, 42, 43, W2F, 54 * 40960); a(f"s_mul_i32 {WSO}, {WAVE}, {14 * 40960}\ns_mul_i32 {HSO}, {WAVE}, {14 * 4096}")
    a(f"s_lshl_b32 s10, {WF_}, 8\ns_add_u32 s10, s10, {CHB}\nv_lshl_add_u32 v70, {LANE}, 2, s10")
    a(f"ds_write_b32 v70, {ZERO} offset:{2 * CHP}\nds_write_b32 v70, {ZERO} offset:{4 * CHP}")
    a(f"s_lshl_b32 s10, {WT}, 4\ns_waitcnt lgkmcnt(0)")
    for r in range(3):
        for b, d in ((48, SDT), (52, SDS)):
            a(f"s_lshr_b32 s{d + r}, s{b + r}, s10\ns_lshl_b32 s{d + r}, s{d + r}, 16")
    a("s_waitcnt vmcnt(10)")
    stamp(8)
    K = [kgen_sections(CPAR[r], f"s{SDT + r}", f"s{SDS + r}") for r in range(3)]
    for l in K[0][0]:
        a(l)
    for r in range(3):
        for sec in K[r][1:5]:
            for l in sec:
                a(l)
        if r == 0:
            a("s_waitcnt vmcnt(0)")
            gate_finish(vm)
        if r == 1:
            a(f"global_load_dword {VTAG}, {ZERO}, {DBG} sc1")
        if r < 2:
            for l in K[r + 1][0]:
                a(l)
        else:
            a(f"""
            s_lshr_b32 s10, {CP}, 5
            s_lshl_b32 s10, s10, 8
            s_add_u32 s10, s10, {UFLAG}
            v_lshl_add_u32 v17, {LANE}, 2, s10
            s_add_u32 s10, {CP}, 2
            s_lshr_b32 s10, s10, 5
            s_lshl_b32 s10, s10, 8
            s_add_u32 s10, s10, {UFLAG}
            v_lshl_add_u32 {VUFL}, {LANE}, 2, s10
            s_waitcnt vmcnt(0)
            buffer_load_dword {LOOK2}, {VUFL}, {WSRD}, 0 offen sc1
            buffer_load_dword v18, v17, {WSRD}, 0 offen sc1
            """)
            get_tag()
            flag_store(vm, PF2, VPF)
        for l in K[r][5]:
            a(l)
        if r < 2:
            for x in range(TW, TR + 1):
                a(f"v_add_u32 v{x}, {2 * CHP}, v{x}")
            for x in range(228, 232):
                a(f"v_add_u32 v{x}, 12288, v{x}")
    stamp(1)
    a("s_waitcnt vmcnt(0) lgkmcnt(0)\ns_barrier")
    poll(VUFL, LOOK2, first_issued=True, nap=8)
    poll("v17", "v18", first_issued=True, nap=8)
    a(f"s_lshl_b32 {ULO}, {CP}, 7\ns_add_u32 {ULO}, {ULO}, {UT}\ns_add_u32 s10, {ULO}, {32 * 40960}")
    for r in range(3):
        a(f"buffer_load_dwordx4 {vr(64 + 8 * r, 4)}, {VUG}, {WSRD}, {ULO} offen offset:{128 * r} sc1")
        a(f"buffer_load_dwordx4 {vr(68 + 8 * r, 4)}, {VUG}, {WSRD}, s10 offen offset:{128 * r} sc1")
    exA, exB = expansion()
    a("L_c_exp:")
    for l in exA:
        a(l)
    a("s_waitcnt lgkmcnt(0)")
    for l in exB:
        a(l)
    a(f"""
    s_add_u32 {CHB}, {CHB}, {2 * CHP}
    s_add_u32 {KCB}, {KCB}, 12288
    s_cmp_lt_u32 {CHB}, {6 * CHP}
    s_cbranch_scc1 L_c_exp
    s_mul_i32 {CHB}, {WT}, {CHP}
    s_waitcnt vmcnt(0)
    """)
    for r in range(3):
        for n in range(2):
            a(f"ds_write_b128 {VUL}, {vr(64 + 8 * r + 4 * n, 4)} offset:{2 * CHP * r + L_U + 512 + 2048 * n}")
    stamp(2)
    vm.q = []
    conv(vm, wload_ops()[:NEARLY + NGAP], 3)
    vm.wait("look")
    assert q_g2[-3:] == ["look", "ast", "ast"] and vm.q[-2:] == ["ast", "ast"]
    a("s_branch L_gemm2\nL_code1:")


typeC()

body = a.render()
head = open(f"cdna_kernels/{NAME}.s.ref").read().split("; Override launch")[0]
text = head + f"""; Generated by the author's own generator script; single fused kernel, one workgroup per CU.
; @launch grid=(256,1,1) block=(256,1,1) lds=163840
.amdgcn_target "amdgcn-amd-amdhsa--gfx950"
.text
.globl {NAME}_kernel
.p2align 8
.type {NAME}_kernel,@function
{NAME}_kernel:
{body}.section .rodata,"a"
.p2align 6
.amdhsa_kernel {NAME}_kernel
  .amdhsa_next_free_vgpr 512
  .amdhsa_next_free_sgpr 102
  .amdhsa_accum_offset 256
  .amdhsa_group_segment_fixed_size 0
  .amdhsa_kernarg_size 112
  .amdhsa_user_sgpr_count 2
  .amdhsa_user_sgpr_kernarg_segment_ptr 1
  .amdhsa_system_sgpr_workgroup_id_x 1
.end_amdhsa_kernel
"""
open(OUT, "w").write(text)
print("wrote", OUT, "lines", text.count("\n"), "auto nops", a.nops)
```

```python
import sys, struct
from asmlib import Asm, VM

NAME = "gated_mix__ssm_conv_s4d__dense_activation_relu__prompt"
DIAG = "--diag" in sys.argv
OPT = set(x[2:] for x in sys.argv if x.startswith("--"))
OUT = [x for x in sys.argv[1:] if not x.startswith("--")]
OUT = OUT[0] if OUT else f"cdna_kernels/{NAME}.s"

HFLAG, UFLAG, G_OFF, WFLAG, GFLAG, AFLAG = 0x0, 0x1000, 0x2000, 0x5000, 0x5800, 0x6000
UT = 0x10000
W2F = UT + 64 * 40960
HF = W2F + 54 * 40960
AG = HF + 32 * 54 * 4096
STAMP = AG + 160 * 16384
WS_END = STAMP + 512 * 4 * 64
SPIN_LIMIT = 400000
OOB = 0x40000000
WSHIFT = "\ns_add_u32 s42, s42, 0xF000000\ns_addc_u32 s43, s43, 0" if "wsend" in OPT else ""

XB, WB, CB = 0, 49152, 98304
NWS = 6
L_U, L_KE, L_KO, CHP = 0, 4608, 9280, 13952
L_KC = CB + 2 * CHP
L_W2 = L_KC + 4 * 3072
L_AT = 81920
TP = 288


def f32(x):
    return "0x%08x" % struct.unpack("<I", struct.pack("<f", x))[0]


def vr(b, n=1, f="v"):
    return f"{f}{b}" if n == 1 else f"{f}[{b}:{b + n - 1}]"


a = Asm()
LOGA, AIM, CR, CI, LDT, DSK = "s[18:19]", "s[20:21]", "s[22:23]", "s[24:25]", "s[26:27]", "s[28:29]"
DBG, WSRD = "s[40:41]", "s[44:47]"
SRDA, SRDB, SRDC = "s[48:51]", "s[52:55]", "s[56:59]"
WAVE, TAG, XCD, J = "s3", "s4", "s5", "s6"
RB, CT = "s7", "s8"
W2K, WT, WF_ = "s11", "s14", "s15"
XS, WSS = 16, 26
HFO, W4K, D0, UTO, UFO = "s60", "s62", "s63", "s64", "s65"
CP, CPB, CHB, PFO, PF2 = "s67", "s70", "s61", "s71", "s68"
ULO = "s69"
TB, CS = "s72", "s73"
WSO, HSO = "s36", "s37"
LANE, ZERO = "v1", "v3"
VXS, VWS, VXR, VWR = [236, 237, 238, 239], [240, 241, 242, 243], [244, 245], [246, 247, 248, 249]
L16, VUT, VTAG = "v250", "v251", "v252"
L15, G4 = "v254", "v255"


def stamp(i, rowst=False):
    if DIAG and (('rows' in OPT) == rowst or i in (0, 13)):
        a(f"s_memrealtime s[{74 + 2 * i}:{75 + 2 * i}]\ns_waitcnt lgkmcnt(0)")


def srd(dst, lo, hi, off_s, size):
    if off_s is None:
        a(f"s_mov_b32 s{dst}, s{lo}\ns_mov_b32 s{dst + 1}, s{hi}")
    else:
        a(f"s_add_u32 s{dst}, s{lo}, {off_s}\ns_addc_u32 s{dst + 1}, s{hi}, 0")
    a(f"s_mov_b32 s{dst + 2}, {size}\ns_mov_b32 s{dst + 3}, 0x20000")


def poll(voff, vf, first_issued=False, nap=4):
    lp, chk, done = (a.newlabel(x) for x in ("Lp", "Lc", "Ld"))
    if first_issued:
        a(f"v_cmp_ne_u32 vcc, {TAG}, {vf}\ns_cmp_eq_u64 vcc, 0\ns_cbranch_scc1 {done}")
    a(f"""
    s_mov_b32 s66, 0
    {lp}:
    buffer_load_dword {vf}, {voff}, {WSRD}, 0 offen sc1
    s_waitcnt vmcnt(0)
    v_cmp_ne_u32 vcc, {TAG}, {vf}
    s_cmp_eq_u64 vcc, 0
    s_cbranch_scc1 {done}
    s_sleep {nap}
    s_add_u32 s66, s66, 1
    s_cmp_lt_u32 s66, {SPIN_LIMIT}
    s_cbranch_scc1 {lp}
    {done}:
    """)


def get_tag():
    lp, done = a.newlabel("Lt"), a.newlabel("Ld")
    a(f"""
    v_readfirstlane_b32 {TAG}, {VTAG}
    s_cmp_lg_u32 {TAG}, 0
    s_cbranch_scc1 {done}
    s_mov_b32 s66, 0
    {lp}:
    global_load_dword {VTAG}, {ZERO}, {DBG} sc1
    s_waitcnt vmcnt(0)
    v_readfirstlane_b32 {TAG}, {VTAG}
    s_cmp_lg_u32 {TAG}, 0
    s_cbranch_scc1 {done}
    s_sleep 2
    s_add_u32 s66, s66, 1
    s_cmp_lt_u32 s66, {SPIN_LIMIT}
    s_cbranch_scc1 {lp}
    {done}:
    """)


def flag_store(vm, soff, voff):
    a("s_mov_b64 exec, 1")
    vm.issue("fl", f"buffer_store_dword {VTAG}, {voff}, {WSRD}, {soff} offen sc1")
    a("s_mov_b64 exec, -1")


def dmax(D, ms=range(4)):
    return [(f"s_add_u32 m0, {W4K}, {XB + (D % 3) * 16384 + 1024 * m}",
             f"buffer_load_dwordx4 v{VXS[m]}, {SRDA}, s{XS + D} offen lds", f"x{D}") for m in ms]


def dmaw(ks):
    return [(f"s_add_u32 m0, {W2K}, {WB + (ks % NWS) * 8192 + 1024 * m}",
             f"buffer_load_dwordx4 v{VWS[2 * (ks & 1) + m]}, {SRDB}, s{WSS + (ks >> 1)} offen lds", f"w{ks}") for m in range(2)]


def emit_dma(vm, gs):
    for g in gs:
        a(g[0])
        vm.issue(g[2], g[1])


def soff(D):
    return [f"s_add_u32 s{XS + D}, s{XS + D - 1}, 128\ns_add_u32 s{WSS + D}, s{WSS + D - 1}, {64 * 3456}",
            f"s_cmp_eq_u32 s{XS + D}, 1280\ns_cselect_b32 s{XS + D}, 0, s{XS + D}\ns_cselect_b32 s{WSS + D}, 0, s{WSS + D}"]


def g1_setup_a():
    a(f"""
    s_mul_i32 {RB}, {J}, 37
    s_lshr_b32 {RB}, {RB}, 8
    s_mul_i32 {CT}, {RB}, 7
    s_sub_u32 {CT}, {J}, {CT}
    s_lshr_b32 s9, {XCD}, 1
    s_lshl_b32 s9, s9, 2
    s_add_u32 {RB}, {RB}, s9
    s_and_b32 s9, {XCD}, 1
    s_mul_i32 s9, s9, 7
    s_add_u32 {CT}, {CT}, s9
    v_lshrrev_b32 v4, 3, {LANE}
    s_lshl_b32 s10, {WAVE}, 5
    v_add_u32 v4, s10, v4
    v_mul_u32_u24 v4, 1280, v4
    v_and_b32 v6, 7, {LANE}
    v_xor_b32 v6, v6, {G4}
    v_lshl_add_u32 v{VXS[0]}, v6, 4, v4
    v_xor_b32 v{VXS[1]}, 64, v{VXS[0]}
    v_add_u32 v{VXS[1]}, 10240, v{VXS[1]}
    v_add_u32 v{VXS[2]}, 20480, v{VXS[0]}
    v_add_u32 v{VXS[3]}, 20480, v{VXS[1]}
    s_lshl_b32 s10, {WAVE}, 3
    v_add_u32 v4, s10, {G4}
    v_mul_u32_u24 v4, 3456, v4
    s_lshl_b32 s10, {WF_}, 2
    v_or_b32 v6, s10, {G4}
    v_lshlrev_b32 v6, 1, v6
    v_xor_b32 v6, v6, {L15}
    v_lshl_add_u32 v{VWS[0]}, v6, 4, v4
    s_lshl_b32 s10, {CT}, 8
    v_add_u32 v{VWS[0]}, s10, v{VWS[0]}
    v_add_u32 v{VWS[1]}, 13824, v{VWS[0]}
    v_add_u32 v{VWS[2]}, {32 * 3456}, v{VWS[0]}
    v_add_u32 v{VWS[3]}, {32 * 3456}, v{VWS[1]}
    s_lshl_b32 {W2K}, {WAVE}, 11
    s_lshl_b32 {W4K}, {WAVE}, 12
    s_mul_i32 s12, {RB}, 3
    s_add_u32 s12, s12, {CT}
    s_mul_i32 s13, s12, 205
    s_lshr_b32 s13, s13, 11
    s_mul_i32 s13, s13, 10
    s_sub_u32 {D0}, s12, s13
    s_mul_i32 s9, {RB}, {128 * 1280}
    """)


def g1_setup_b():
    srd(48, 16, 17, "s9", 128 * 1280)
    srd(52, 32, 33, None, 640 * 3456)


def g1_setup_c():
    a(f"""
    s_lshl_b32 s10, {WT}, 13
    v_lshlrev_b32 v{VXR[0]}, 7, {L15}
    v_add_u32 v{VXR[0]}, s10, v{VXR[0]}
    v_bfe_u32 v4, {LANE}, 1, 3
    v_xor_b32 v4, v4, {G4}
    v_lshl_add_u32 v{VXR[0]}, v4, 4, v{VXR[0]}
    v_xor_b32 v{VXR[1]}, 64, v{VXR[0]}
    v_bfe_u32 v4, {LANE}, 2, 2
    v_lshl_add_u32 v6, {G4}, 3, v4
    v_lshlrev_b32 v{VWR[0]}, 8, v6
    v_and_b32 v6, 1, {G4}
    v_lshl_or_b32 v6, v6, 2, v4
    s_lshl_b32 s10, {WF_}, 2
    v_xor_b32 v6, s10, v6
    v_lshl_add_u32 v{VWR[0]}, v6, 5, v{VWR[0]}
    v_and_b32 v7, 3, {LANE}
    v_lshl_add_u32 v{VWR[0]}, v7, 3, v{VWR[0]}
    v_add_u32 v{VWR[0]}, {WB}, v{VWR[0]}
    v_xor_b32 v{VWR[1]}, 32, v{VWR[0]}
    v_xor_b32 v{VWR[2]}, 64, v{VWR[0]}
    v_xor_b32 v{VWR[3]}, 0x60, v{VWR[0]}
    v_lshl_add_u32 v6, v7, 3, v4
    v_lshlrev_b32 v253, 7, v6
    v_add_u32 v253, {W4K}, v253
    v_bfe_u32 v6, v6, 1, 3
    v_lshrrev_b32 v7, 5, {LANE}
    v_xor_b32 v6, v6, v7
    v_lshl_add_u32 v253, v6, 4, v253
    v_and_b32 v6, 1, {G4}
    v_lshl_add_u32 v253, v6, 3, v253
    s_lshl_b32 s10, {RB}, 2
    s_add_u32 s10, s10, {WAVE}
    s_mul_i32 {UTO}, s10, 40960
    s_lshl_b32 {UFO}, {D0}, 12
    s_add_u32 {UTO}, {UTO}, {UFO}
    s_add_u32 {UTO}, {UTO}, {UT}
    s_lshl_b32 {UFO}, {D0}, 8
    s_lshl_b32 s10, s10, 2
    s_add_u32 {UFO}, {UFO}, s10
    s_add_u32 {UFO}, {UFO}, {UFLAG}
    s_cmp_lt_u32 {CT}, 10
    s_cselect_b32 s10, 0, {OOB}
    v_lshlrev_b32 {VUT}, 8, {G4}
    v_lshl_add_u32 {VUT}, v4, 5, {VUT}
    v_bfe_u32 v6, {LANE}, 1, 1
    v_lshl_add_u32 {VUT}, v6, 7, {VUT}
    v_and_b32 v6, 1, {LANE}
    v_lshl_add_u32 {VUT}, v6, 4, {VUT}
    v_add_u32 {VUT}, s10, {VUT}
    """)


def ut_step(vm, t):
    vm.wait("x0")
    vm.issue("tag", f"global_load_dword {VTAG}, {ZERO}, {DBG} sc1")
    a(f"v_mov_b32 v{t + 16}, v253\nv_xor_b32 v{t + 17}, 32, v253\nv_xor_b32 v{t + 18}, 64, v253\nv_xor_b32 v{t + 19}, 0x60, v253")
    for dt in range(4):
        a(f"ds_read_b64_tr_b16 {vr(t + 4 * dt, 2)}, v{t + 16 + dt}\nds_read_b64_tr_b16 {vr(t + 2 + 4 * dt, 2)}, v{t + 16 + (dt ^ 1)} offset:512")
    for dt in range(4):
        a(f"s_waitcnt lgkmcnt({6 - 2 * dt})")
        vm.issue("ut", f"buffer_store_dwordx4 {vr(t + 4 * dt, 4)}, {VUT}, {WSRD}, {'s46' if 'nout' in OPT else UTO} offen offset:{1024 * dt} sc1")


def ut_flag(vm):
    vm.wait("ut")
    get_tag()
    flag_store(vm, UFO, VUT)


VWFL, VUFL, VHFL, VUG, VUL, LOOK1, LOOK2, VPS, VPF = "v8", "v9", "v10", "v11", "v12", "v13", "v14", "v15", "v16"
HV = ["v0", "v5", "v6", "v7"]
JUNK = "v233"
KCB, HFM = "s9", "s[30:31]"

a("L_code0:")
CODEPF = f"""
s_getpc_b64 s[12:13]
L_pc0:
s_lshr_b32 s10, s2, 3
s_lshl_b32 s10, s10, 11
v_lshl_add_u32 v40, v0, 7, s10
v_min_u32 v40, L_code1-L_pc0-4, v40
v_cmp_gt_u32 vcc, 16, v0
s_and_saveexec_b64 s[8:9], vcc
s_cbranch_execz L_nopf
global_load_dword {JUNK}, v40, s[12:13]
L_nopf:
s_mov_b64 exec, -1
""" if "nopf" not in OPT else ""
stamp(0)
if "entryclk" in OPT:
    a("s_memrealtime s[100:101]")
a(f"""
s_cmp_ge_u32 s2, 256
s_cbranch_scc1 L_end
s_load_dwordx16 s[16:31], s[0:1], 0
s_load_dwordx8 s[32:39], s[0:1], 64
s_load_dwordx4 s[40:43], s[0:1], 96
{CODEPF}
v_lshrrev_b32 v2, 6, v0
v_and_b32 {LANE}, 63, v0
v_mov_b32 {ZERO}, 0
v_readfirstlane_b32 {WAVE}, v2
s_and_b32 {XCD}, s2, 7
s_lshr_b32 {J}, s2, 3
s_mov_b32 s46, {WS_END}
s_mov_b32 s47, 0x20000
v_and_b32 {L15}, 15, v0
v_bfe_u32 {G4}, v0, 4, 2
v_lshlrev_b32 {L16}, 4, {LANE}
s_lshr_b32 {WT}, {WAVE}, 1
s_and_b32 {WF_}, {WAVE}, 1
s_cmp_ge_u32 {J}, 28
s_cbranch_scc1 L_typeC
""")


def tlb_touch():
    if "notlb" in OPT:
        return
    lab = a.newlabel("Ltl")
    a(f"""
    s_cmp_lg_u32 {WAVE}, 1
    s_cbranch_scc1 {lab}
    v_lshlrev_b32 v99, 18, {LANE}
    v_add_u32 v99, 0xff80, v99
    buffer_load_dword {JUNK}, v99, {WSRD}, 0 offen sc1
    v_lshlrev_b32 v99, 16, {LANE}
    v_min_u32 v99, {2048 * 1280 - 4}, v99
    global_load_dword {JUNK}, v99, s[38:39] sc1
    {lab}:
    """)


def bf16_round_int(l):
    if l < 256:
        return l
    e = l.bit_length() - 8
    q, r = l >> e, l & ((1 << e) - 1)
    h = 1 << (e - 1)
    if r > h or (r == h and (q & 1)):
        q += 1
    return q << e


PAR = 208
SDT, SDS = 20, 23


def param_loads(vm, n=1):
    for r in range(n):
        for k, ptr in enumerate((LOGA, AIM, CR, CI)):
            vm.issue("par", f"global_load_ushort v{CPAR[r] + k}, v68, {ptr} offset:{512 * r} nt")


CPAR = [208, 212, 240]
GX, GW, GX2 = 152, 172, 100


def gate_addr():
    a(f"""
    s_lshl_b32 s10, {XCD}, 3
    s_and_b32 s13, {J}, 7
    s_add_u32 s13, s13, s10
    s_lshl_b32 s10, s13, 5
    s_lshl_b32 s12, {WAVE}, 3
    s_add_u32 s10, s10, s12
    v_add_u32 v65, s10, {G4}
    v_lshlrev_b32 v93, 4, {L15}
    v_mul_u32_u24 v92, 1280, v65
    v_add_u32 v92, v92, v93
    v_add_u32 v94, 5120, v92
    v_and_b32 v64, 1, {LANE}
    v_lshl_add_u32 v65, v64, 2, v65
    v_lshlrev_b32 {VPS}, 2, v65
    v_mov_b32 {VPF}, 0
    s_lshl_b32 {PF2}, s13, 4
    s_lshl_b32 s10, {WAVE}, 2
    s_add_u32 {PF2}, {PF2}, s10
    s_add_u32 {PF2}, {PF2}, {GFLAG}
    """)


def gate_loads(vm):
    for k in range(5):
        a(f"global_load_dwordx4 {vr(GW + 4 * k, 4)}, v93, s[36:37] offset:{256 * k}")
        a(f"global_load_dwordx4 {vr(GX2 + 4 * k, 4)}, v94, s[30:31] offset:{256 * k}")
    for k in range(5):
        vm.issue("pre", f"global_load_dwordx4 {vr(GX + 4 * k, 4)}, v92, s[30:31] offset:{256 * k}")


def gate_finish(vm):
    a("v_mov_b32 v64, 0\nv_mov_b32 v65, 0")
    for k in range(20):
        a(f"v_dot2_f32_bf16 v64, v{GX + k}, v{GW + k}, v64\nv_dot2_f32_bf16 v65, v{GX2 + k}, v{GW + k}, v65")
    a(f"v_and_b32 v66, 1, {LANE}\nv_cmp_eq_u32 vcc, 1, v66\ns_nop 0")
    for sh in (8, 4, 2, 1):
        a(f"v_add_f32_dpp v64, v64, v64 row_ror:{sh} row_mask:0xf bank_mask:0xf")
        a(f"v_add_f32_dpp v65, v65, v65 row_ror:{sh} row_mask:0xf bank_mask:0xf")
    a(f"""
    v_cndmask_b32 v64, v64, v65, vcc
    v_cvt_pk_bf16_f32 v64, v64, v64
    v_and_b32 v64, 0xffff0000, v64
    v_mul_f32 v64, {f32(-1.4426950408889634)}, v64
    v_exp_f32 v64, v64
    v_add_f32 v64, 1.0, v64
    v_rcp_f32 v64, v64
    v_cvt_pk_bf16_f32 v64, v64, v64
    v_and_b32 v64, 0xffff0000, v64
    s_mov_b32 s10, {G_OFF}
    s_mov_b32 s12, 0x30003
    s_mov_b32 s13, 0x30003
    s_mov_b64 exec, s[12:13]
    """)
    vm.issue("pst", f"buffer_store_dword v64, {VPS}, {WSRD}, s10 offen sc1")
    a("s_mov_b64 exec, -1")


def late_addr():
    L = f"""
    s_lshr_b32 {TB}, {XCD}, 1
    s_lshl_b32 {TB}, {TB}, 3
    s_lshr_b32 s10, {J}, 2
    s_add_u32 {TB}, {TB}, s10
    s_and_b32 {CS}, {XCD}, 1
    s_lshl_b32 {CS}, {CS}, 2
    s_and_b32 s10, {J}, 3
    s_add_u32 {CS}, {CS}, s10
    s_mul_i32 s10, {CS}, 5120
    v_add_u32 v2, s10, {L16}
    v_add_u32 v4, 4096, v2
    s_mul_i32 s10, {WAVE}, 14
    v_lshrrev_b32 {VWFL}, 2, {LANE}
    v_min_u32 {VWFL}, 13, {VWFL}
    v_add_u32 {VWFL}, s10, {VWFL}
    v_min_u32 {VWFL}, 53, {VWFL}
    v_lshlrev_b32 {VWFL}, 5, {VWFL}
    v_and_b32 v6, 3, {LANE}
    v_lshl_add_u32 {VWFL}, v6, 2, {VWFL}
    s_and_b32 s10, {XCD}, 1
    s_lshl_b32 s10, s10, 4
    s_add_u32 s10, s10, {WFLAG}
    v_add_u32 {VWFL}, s10, {VWFL}
    s_mul_i32 s10, {WAVE}, 7
    v_min_u32 {VHFL}, 6, {LANE}
    v_add_u32 {VHFL}, s10, {VHFL}
    v_min_u32 {VHFL}, 26, {VHFL}
    v_lshlrev_b32 {VHFL}, 2, {VHFL}
    s_lshl_b32 s10, {TB}, 7
    v_add_u32 {VHFL}, s10, {VHFL}
    v_lshrrev_b32 v6, 3, v0
    v_mul_u32_u24 {VUG}, 40960, v6
    v_and_b32 v7, 7, {LANE}
    v_lshl_add_u32 {VUG}, v7, 4, {VUG}
    v_and_b32 v5, 1, {LANE}
    v_mul_u32_u24 {VUL}, {CHP}, v5
    v_lshl_add_u32 {VUL}, v6, 6, {VUL}
    v_lshrrev_b32 v7, 1, v7
    v_lshl_add_u32 {VUL}, v7, 4, {VUL}
    """.strip().replace("\n", "|").replace("@", "\n").split("|")
    for k in range(4):
        L += [f"s_add_u32 s10, {WAVE}, {k}", "s_and_b32 s10, s10, 3", "s_lshl_b32 s10, s10, 10", f"v_add_u32 {HV[k]}, s10, {L16}"]
    return L


def k_order():
    a(f"s_mul_i32 {WSO}, {WAVE}, {14 * 40960}\ns_mul_i32 {HSO}, {WAVE}, {14 * 4096}")


def pair_addr():
    a(f"""
    s_lshr_b32 s10, {CP}, 5
    s_lshl_b32 s10, s10, 8
    s_add_u32 s10, s10, {UFLAG}
    v_lshl_add_u32 {VUFL}, {LANE}, 2, s10
    s_lshl_b32 {ULO}, {CP}, 7
    s_add_u32 {ULO}, {ULO}, {UT}
    s_mul_i32 {CHB}, {WT}, {CHP}
    s_add_u32 {CHB}, {CHB}, {CPB}
    """)


TW, TR = 58, 62


def kgen_addr():
    return f"""
    s_mul_i32 s10, {WF_}, {L_KO - L_KE}
    s_add_u32 s10, s10, {CHB}
    s_add_u32 s10, s10, {L_KE}
    v_lshl_add_u32 v{TW}, {LANE}, 2, s10
    v_add_u32 v{TW + 1}, {4 * TP}, v{TW}
    v_add_u32 v{TW + 2}, {8 * TP}, v{TW}
    v_add_u32 v{TW + 3}, {12 * TP}, v{TW}
    v_mul_u32_u24 v{TR}, {TP}, {L15}
    v_lshl_add_u32 v{TR}, {G4}, 4, v{TR}
    v_add_u32 v{TR}, s10, v{TR}
    s_lshl_b32 s10, {WF_}, 8
    s_add_u32 s10, s10, {CHB}
    v_lshl_add_u32 v70, {LANE}, 2, s10
    ds_write_b32 v70, {ZERO} offset:{L_U}
    s_mul_i32 s10, {WAVE}, 3072
    s_add_u32 s10, s10, {KCB}
    v_lshrrev_b32 v70, 1, {G4}
    v_and_b32 v71, 1, {G4}
    v_lshlrev_b32 v228, 9, v70
    v_lshl_add_u32 v228, v71, 4, v228
    v_lshl_add_u32 v228, {L15}, 5, v228
    v_add_u32 v228, s10, v228
    v_lshlrev_b32 v73, 8, {G4}
    v_lshlrev_b32 v229, 4, {L15}
    v_lshlrev_b32 v230, 3, {L15}
    v_cmp_gt_u32 vcc, 2, {G4}
    v_add_u32 v231, s10, v73
    v_mov_b32 v78, 0x80
    v_cndmask_b32 v229, v230, v229, vcc
    v_cndmask_b32 v78, v78, 8, vcc
    v_add_u32 v229, v231, v229
    v_add_u32 v230, v229, v78
    v_lshl_add_u32 v231, {L15}, 2, v231
    v_or_b32 v70, {WF_}, {LANE}
    v_cmp_eq_u32 vcc, 0, v70
    v_cndmask_b32 v232, 0, 1.0, vcc
    """.strip().split("\n")


def kgen_sections(PAR=208, sdt='s66', sds='s69'):
    L2E_HI = struct.unpack("<f", struct.pack("<f", 1.4426950408889634))[0]
    L2E_LO = 1.4426950408889634 - L2E_HI
    S = [[]]

    def e(t):
        S[-1].extend(x.strip() for x in t.strip().split("\n"))

    R_, Z8, G1, GC, T1, O1 = 32, 34, 36, 38, 40, 42
    P = lambda k: 44 + 2 * (k - 1)
    RBF, QA, D = 192, [120, 136], [216, 220, 224]
    e(f"s_mov_b32 s12, {f32(L2E_HI)}\ns_mov_b32 s13, {f32(L2E_LO)}")
    e(f"v_mov_b32 v70, {sdt}\nv_lshlrev_b32 v71, 16, v{PAR}")
    for t in ("v_mul_f32 v{a}, s12, v{x}", "v_fma_f32 v{b}, v{x}, s12, -v{a}", "v_exp_f32 v{a}, v{a}", "v_fma_f32 v{b}, v{x}, s13, v{b}",
              "v_mul_f32 v{b}, " + f32(0.6931471805599453) + ", v{b}", "v_fma_f32 v{a}, v{a}, v{b}, v{a}"):
        for i in range(2):
            e(t.format(a=72 + i, b=74 + i, x=70 + i))
    e(f"""
    v_cvt_pk_bf16_f32 v71, v72, v73
    v_lshlrev_b32 v70, 16, v71
    v_and_b32 v71, 0xffff0000, v71
    v_mul_f32 v71, v71, v70
    v_mul_f32 v71, {f32(-1.4426950408889634)}, v71
    v_lshlrev_b32 v72, 16, v{PAR + 1}
    v_mul_f32 v72, v72, v70
    v_mul_f32 v72, 0.15915494, v72
    v_add_f32 v73, v70, v70
    v_lshlrev_b32 v74, 16, v{PAR + 2}
    v_lshlrev_b32 v75, 16, v{PAR + 3}
    v_mul_f32 v{R_}, v74, v73
    v_mul_f32 v{R_ + 1}, -v75, v73
    v_mul_f32 v76, {f32(8.0)}, v71
    v_mul_f32 v77, {f32(128.0)}, v71
    v_mul_f32 v79, {f32(8.0)}, v72
    v_mul_f32 v80, {f32(128.0)}, v72
    v_exp_f32 v76, v76
    v_exp_f32 v77, v77
    v_exp_f32 v78, v71
    v_fract_f32 v79, v79
    v_fract_f32 v80, v80
    v_fract_f32 v81, v72
    v_cos_f32 v82, v79
    v_sin_f32 v83, v79
    v_cos_f32 v84, v80
    v_sin_f32 v85, v80
    v_cos_f32 v86, v81
    v_sin_f32 v87, v81
    v_mul_f32 v{Z8}, v76, v82
    v_mul_f32 v{Z8 + 1}, -v76, v83
    v_mul_f32 v{G1}, v77, v84
    v_mul_f32 v{G1 + 1}, v77, v85
    v_mul_f32 v{P(1)}, v78, v86
    v_mul_f32 v{P(1) + 1}, v78, v87
    """)
    st = {"n": 0}

    def put(row, reg, last=False):
        t = 88 + (st["n"] & 3)
        st["n"] += 1
        e(f"v_mov_b32 v{t}, 0x3f80" if reg is None else f"v_cvt_pk_bf16_f32 v{t}, v{reg}, v{reg + 1}")
        if row & 1:
            e(f"ds_write2_b32 v{TW + row // 4}, v{t - 1}, v{t} offset0:{((row - 1) % 4) * TP // 4} offset1:{(row % 4) * TP // 4}")
        elif last:
            e(f"ds_write_b32 v{TW + row // 4}, v{t} offset:{(row % 4) * TP}")
            st["n"] += 1

    def cm(out, x, y):
        e(f"v_pk_mul_f32 {vr(T1, 2)}, {vr(x, 2)}, {vr(y, 2)} op_sel:[0,0] op_sel_hi:[1,0]")
        e(f"v_pk_fma_f32 {vr(out, 2)}, {vr(x, 2)}, {vr(y, 2)}, {vr(T1, 2)} op_sel:[1,1,0] op_sel_hi:[0,1,1] neg_lo:[1,0,0]")

    def rd(base):
        for ks in range(4):
            e(f"ds_read_b128 {vr(base + 4 * ks, 4)}, v{TR} offset:{64 * ks}")

    def mm(d, q, zero):
        for ks in range(4):
            e(f"v_mfma_f32_16x16x32_bf16 {vr(d, 4)}, {vr(q + 4 * ks, 4)}, {vr(RBF + 4 * ks, 4)}, {'0' if (zero and ks == 0) else vr(d, 4)}")

    S.append([])
    for x in range(16):
        put(x, R_)
        if x < 15:
            cm(R_, R_, Z8)
    rd(RBF)
    S.append([])
    put(0, None)
    for k in range(1, 8):
        put(k, P(k))
        if k < 7:
            cm(P(k + 1), P(k), P(1))
    put(8, G1)
    cm(GC, G1, G1)
    for k in range(1, 8):
        cm(O1, G1, P(k))
        put(8 + k, O1)
    S.append([])
    rd(QA[0])
    row = 0
    for i in range(2, 8):
        put(row, GC)
        row += 1
        for k in ((2, 4, 6) if i < 4 else (4,)):
            cm(O1, GC, P(k))
            put(row, O1)
            row += 1
        cm(GC, GC, G1)
        if i == 3:
            e(f"v_mul_f32 v{D[0]}, {sds}, v232\nv_mov_b32 v{D[0] + 1}, 0\nv_mov_b32 v{D[0] + 2}, 0\nv_mov_b32 v{D[0] + 3}, 0\ns_waitcnt lgkmcnt(4)")
            mm(D[0], QA[0], False)
    S.append([])
    rd(QA[1])
    for i in range(8, 17):
        put(i - 8, GC, last=(i == 16))
        if i < 16:
            cm(GC, GC, G1)
    rd(QA[0])
    e(f"ds_write_b128 v228, {vr(D[0], 4)}\ns_waitcnt lgkmcnt(10)")
    mm(D[1], QA[1], True)
    S.append([])
    e("s_waitcnt lgkmcnt(0)")
    mm(D[2], QA[0], True)
    e(f"ds_write_b64 v229, {vr(D[1], 2)} offset:1024\nds_write_b64 v230, {vr(D[1] + 2, 2)} offset:1024")
    for j in range(4):
        e(f"ds_write_b32 v231, v{D[2] + j} offset:{2048 + 64 * j}")
    return S


def emit_mixed(vm, lines, ops, every):
    for n, l in enumerate(lines):
        a(l)
        if ops and n % every == every - 1:
            emit_op(vm, ops.pop(0))


def expansion(between=None):
    E = {3: 36, 2: 36, 1: 40, 0: 44}
    F = {3: 52, 2: 52, 1: 56, 0: 192}
    l1, l2, l3, l4 = (a.newlabel("Le") for _ in range(4))
    a(f"""
    s_mul_i32 s10, {WT}, 6144
    s_add_u32 s10, s10, {KCB}
    v_sub_u32 v32, 63, {LANE}
    v_lshl_add_u32 v33, v32, 3, s10
    s_cmp_eq_u32 {WF_}, 1
    s_cbranch_scc1 {l1}
    """)

    def rd3(s, idx):
        for h, R in enumerate((E, F)):
            a(f"ds_read_b64 {vr(R[s], 2)}, v33 offset:{3072 * h + 4 * idx}\nds_read_b32 v{R[s] + 2}, v33 offset:{3072 * h + 4 * idx + 8}")

    rd3(3, 512)
    a(f"s_branch {l2}\n{l1}:\nv_lshl_add_u32 v34, v32, 4, s10")
    rd3(2, 384)
    rd3(1, 256)
    for h, R in enumerate((E, F)):
        a(f"ds_read_b128 {vr(R[0], 4)}, v34 offset:{3072 * h}\nds_read_b32 v{R[0] + 4}, v34 offset:{3072 * h + 16}")
    a(f"{l2}:")
    if between:
        between()
    a(f"s_cmp_eq_u32 {WF_}, 1\ns_cbranch_scc1 {l3}\nv_lshl_add_u32 v32, {LANE}, 5, {CHB}\ns_waitcnt lgkmcnt(0)")

    def add3(s):
        a(f"v_pk_add_f32 {vr(E[s], 2)}, {vr(E[s], 2)}, {vr(F[s], 2)}\nv_add_f32 v{E[s] + 2}, v{E[s] + 2}, v{F[s] + 2}")

    def pack(s, l0, Bn, step, sh, t):
        val = lambda x: E[s] + (bf16_round_int(l0 + 64 + x) - (l0 + 64)) // step
        for m in range(Bn // 2):
            a(f"v_cvt_pk_bf16_f32 v{t + m}, v{val(Bn - sh - 2 * m)}, v{val(Bn - sh - 1 - 2 * m)}")

    add3(3)
    for sh, base in ((0, L_KE), (1, L_KO)):
        t = 192 + 8 * sh
        pack(3, 1024, 16, 8, sh, t)
        a(f"ds_write_b128 v32, {vr(t, 4)} offset:{base}\nds_write_b128 v32, {vr(t + 4, 4)} offset:{base + 16}")
    a(f"""
    s_branch {l4}
    {l3}:
    v_lshl_add_u32 v33, {LANE}, 4, {CHB}
    v_lshl_add_u32 v34, {LANE}, 3, {CHB}
    v_lshl_add_u32 v35, v32, 2, {CHB}
    v_cmp_eq_u32 vcc, 63, {LANE}
    s_waitcnt lgkmcnt(0)
    """)
    add3(2)
    add3(1)
    a(f"v_pk_add_f32 {vr(E[0], 2)}, {vr(E[0], 2)}, {vr(F[0], 2)}\nv_pk_add_f32 {vr(E[0] + 2, 2)}, {vr(E[0] + 2, 2)}, {vr(F[0] + 2, 2)}\nv_add_f32 v{E[0] + 4}, v{E[0] + 4}, v{F[0] + 4}")
    for sh, base in ((0, L_KE), (1, L_KO)):
        t = 192 + 8 * sh
        pack(2, 512, 8, 4, sh, t)
        pack(1, 256, 4, 2, sh, t + 4)
        pack(0, 0, 4, 1, sh, t + 6)
        a(f"ds_write_b128 v33, {vr(t, 4)} offset:{base + 2048}\nds_write_b64 v34, {vr(t + 4, 2)} offset:{base + 3072}\nds_write_b64 v34, {vr(t + 6, 2)} offset:{base + 3584}")
    a(f"""
    v_cvt_pk_bf16_f32 v208, v{E[0]}, {ZERO}
    v_cndmask_b32 v208, 0, v208, vcc
    ds_write_b32 v35, {ZERO} offset:{L_KO + 4096}
    ds_write_b32 v35, v208 offset:{L_KE + 4096}
    {l4}:
    """)


WSLOT = [vr(4 * i, 4, "a") for i in range(64)] + [vr(224 + 4 * i, 4) for i in range(6)]


def wload_ops():
    L = []
    for i in range(14):
        for dt in range(5):
            post = f"s_add_u32 {WSO}, {WSO}, 40960" if dt == 4 else None
            L.append((f"buffer_load_dwordx4 {WSLOT[5 * i + dt]}, {'v4' if dt == 4 else 'v2'}, {SRDC}, {WSO} offen offset:{1024 * (dt & 3)} sc1", f"W{i}", post))
    return L


def emit_op(vm, op):
    vm.issue(op[1], op[0])
    if op[2]:
        a(op[2])


def uload_ops():
    return [(f"buffer_load_dwordx4 {vr(24 + 4 * n, 4)}, {VUG}, {WSRD}, {ULO} offen sc1", "u",
             f"s_add_u32 {ULO}, {ULO}, {32 * 40960}" if n == 0 else None) for n in range(2)]


def opt_int(name, default):
    for x in OPT:
        if x.startswith(name + "="):
            return int(x.split("=")[1])
    return default


NEARLY, NGAP = 26, opt_int("ngap", 44)
LOOKAT, CHECKAT = 11, 13
HP = opt_int('hp', 0)

def prep_block(vm):
    a("s_lshr_b32 s10, s2, 6\ns_cmp_eq_u32 s10, 2\ns_cbranch_scc1 L_a_gate2")
    for aa in range(5):
        a(f"ds_read_b64_tr_b16 {vr(100 + 4 * aa, 2)}, v234 offset:{128 * aa}\nds_read_b64_tr_b16 {vr(102 + 4 * aa, 2)}, v234 offset:{128 * aa + 10240}")
    for aa in range(5):
        a(f"s_waitcnt lgkmcnt({8 - 2 * aa})\ns_mov_b32 s10, {OOB if ('now2' in OPT or 'now2st' in OPT) else 4096 * aa}")
        a(f"buffer_store_dwordx4 {vr(100 + 4 * aa, 4)}, {VPS}, {WSRD}, s10 offen sc1")
    a("s_branch L_a_join2\nL_a_gate2:")
    gate_finish(vm)
    a("L_a_join2:")


vmA = VM(a)
a(f"""
s_mov_b32 {CP}, s2
s_mov_b32 {CPB}, {CB}
s_lshl_b32 s10, {CP}, 9
v_lshl_add_u32 v68, v0, 1, s10
s_lshl_b32 s69, {CP}, 2
""")
g1_setup_a()
a("s_waitcnt lgkmcnt(0)" + WSHIFT)
param_loads(vmA)
a(f"s_load_dword s66, {LDT}, s69\ns_load_dword s69, {DSK}, s69")
g1_setup_b()
a(f"""
s_mov_b32 s44, s42
s_mov_b32 s45, s43
s_mov_b32 s30, s16
s_mov_b32 s31, s17
s_lshl_b32 s{XS}, {D0}, 7
s_mul_i32 s{WSS}, {D0}, {64 * 3456}
""")
emit_dma(vmA, dmax(0))
tlb_touch()
stamp(7)
srd(56, 34, 35, None, 0 if "now2" in OPT else 1728 * 1280)
a("s_lshr_b32 s10, s2, 6\ns_cmp_eq_u32 s10, 2\ns_cbranch_scc1 L_a_gate")
a(f"""
s_cmp_lg_u32 {J}, 15
s_cbranch_scc1 L_a_notag
s_cmp_lg_u32 {WAVE}, 0
s_cbranch_scc1 L_a_notag
s_memrealtime s[12:13]
s_waitcnt lgkmcnt(0)
{"s_mov_b32 s12, s100" if "entryclk" in OPT else ""}
s_or_b32 s12, s12, 1
v_mov_b32 v40, s12
v_mov_b32 v41, 0
s_mov_b64 exec, 1
global_atomic_cmpswap {ZERO}, v[40:41], {DBG} sc1
s_mov_b64 exec, -1
L_a_notag:
""")
a(f"""
s_lshr_b32 s9, s2, 1
s_mul_i32 s9, s9, 40960
s_and_b32 s12, s2, 1
s_mul_i32 s13, s12, 640
s_add_u32 s13, s13, s9
s_mul_i32 s10, {WAVE}, 10240
s_add_u32 s13, s13, s10
v_lshrrev_b32 v7, 3, {LANE}
""")
for m in range(5):
    a(f"""
    v_add_u32 v42, {8 * m}, v7
    v_mul_u32_u24 v42, 13, v42
    v_lshrrev_b32 v42, 6, v42
    v_and_b32 v43, 6, v42
    v_xor_b32 v43, v43, {LANE}
    v_mul_u32_u24 v42, 640, v42
    v_lshl_add_u32 v42, v43, 4, v42
    v_add_u32 v{92 + m}, s13, v42
    """)
a(f"""
v_add_u32 v96, 4096, v96
s_mul_i32 s10, {WAVE}, 5120
s_add_u32 s10, s10, {L_W2}
""")
q0 = list(vmA.q)
for m in range(5):
    a(f"s_add_u32 m0, s10, {4096 if m == 4 else 0}")
    vmA.issue("pre", f"buffer_load_dwordx4 v{92 + m}, {SRDC}, 0 offen offset:{1024 * (m & 3)} nt lds")
a(f"""
s_mul_i32 s12, s12, 20480
s_add_u32 s12, s12, s9
s_add_u32 s12, s12, {W2F}
s_lshl_b32 s10, {WAVE}, 10
s_add_u32 s12, s12, s10
s_cmp_lt_u32 s2, 108
s_cselect_b32 s10, 0, {OOB}
v_mov_b32 {VPF}, s10
s_add_u32 s12, s12, s10
v_add_u32 {VPS}, s12, {L16}
s_lshl_b32 {PF2}, s2, 4
s_lshl_b32 s10, {WAVE}, 2
s_add_u32 {PF2}, {PF2}, s10
s_add_u32 {PF2}, {PF2}, {WFLAG}
v_lshrrev_b32 v40, 2, {LANE}
v_mul_u32_u24 v234, 640, v40
v_bfe_u32 v40, {LANE}, 3, 2
v_xor_b32 v40, {WAVE}, v40
v_lshl_add_u32 v234, v40, 5, v234
v_and_b32 v40, 3, {LANE}
v_lshl_add_u32 v234, v40, 3, v234
v_add_u32 v234, {L_W2}, v234
s_branch L_a_join
L_a_gate:
""")
gate_addr()
vmA.q = q0
gate_loads(vmA)
a("L_a_join:")
a(f"s_mov_b32 {KCB}, {L_KC}\ns_mul_i32 {CHB}, {WT}, {CHP}\ns_add_u32 {CHB}, {CHB}, {CPB}")
for l in kgen_addr():
    a(l)
for D in range(1, 10):
    for l in soff(D):
        a(l)
g1_setup_c()
for l in late_addr():
    a(l)
a(f"""
s_lshl_b32 s10, {WT}, 4
s_waitcnt lgkmcnt(0)
s_lshr_b32 s66, s66, s10
s_lshl_b32 s66, s66, 16
s_lshr_b32 s69, s69, s10
s_lshl_b32 s69, s69, 16
""")
KS = kgen_sections()
vmA.wait("par")
stamp(8)
pend = dmaw(0) + dmaw(1) + dmax(1) + dmaw(2) + dmaw(3) + dmax(2) + dmaw(4) + dmaw(5)
for n, sec in enumerate(KS):
    for l in sec:
        a(l)
    emit_dma(vmA, pend[:4])
    pend = pend[4:]
    if n == 1:
        ut_step(vmA, 72)
    if n == 3:
        vmA.wait("pre", "ut")
        a("s_barrier")
        get_tag()
        flag_store(vmA, UFO, VUT)
        prep_block(vmA)
assert not pend
srd(56, 42, 43, W2F, 54 * 40960); k_order()
pair_addr()
if "expre" in OPT:
    a("s_waitcnt lgkmcnt(0)\ns_barrier")
    expansion()
stamp(9)


def gemm1(vm):
    a("L_g1_loop:")
    ACC = 64
    WF, XF = [128, 160], [144, 176]

    def reads(ks):
        s = ks & 1
        L = []
        for i in range(4):
            L.append(f"ds_read_b128 {vr(XF[s] + 4 * i, 4)}, v{VXR[s]} offset:{XB + ((ks >> 1) % 3) * 16384 + 2048 * i}")
            L.append(f"ds_read_b64_tr_b16 {vr(WF[s] + 4 * i, 2)}, v{VWR[i]} offset:{(ks % NWS) * 8192}")
            L.append(f"ds_read_b64_tr_b16 {vr(WF[s] + 4 * i + 2, 2)}, v{VWR[i]} offset:{(ks % NWS) * 8192 + 1024}")
        return L

    vm.wait("x0", "w0", "pre", "ut", extra="lgkmcnt(0)")
    a("s_barrier")
    stamp(1)
    for l in reads(0):
        a(l)
    misc = []
    ops = uload_ops() + wload_ops()[:NEARLY]
    for ks in range(20):
        s = ks & 1
        if ks < 19:
            vm.wait(f"x{(ks + 1) >> 1}", f"w{ks + 1}", *(["look"] if ks == CHECKAT else []), *(["pst"] if ks == 0 else []), extra="lgkmcnt(0)")
            a("s_barrier")
        else:
            a("s_waitcnt lgkmcnt(0)")
        if ks in (5, 10, 15) and "g2st" not in OPT and "cvst" not in OPT:
            stamp(9 + ks // 5)
        if ks == 0:
            flag_store(vm, PF2, VPF)
        if ks == CHECKAT:
            poll(VWFL, LOOK1, first_issued=True)
            poll(VUFL, LOOK2, first_issued=True)
        rd_ = reads(ks + 1) if ks < 19 else []
        dm = []
        if ks + NWS < 20:
            dm += dmaw(ks + NWS)
        if ks >= 1:
            D = (ks - 1) // 2 + 3
            if D < 10:
                dm += dmax(D, (0, 1) if ks & 1 else (2, 3))
        n = 0
        for ft in range(4):
            for tt in range(4):
                d = vr(ACC + 16 * ft + 4 * tt, 4)
                slot = n % 4 == 1 if ks < 15 else n % 3 == 1
                g = dm.pop(0) if (dm and slot) else None
                if g:
                    a(g[0])
                a(f"v_mfma_f32_16x16x32_bf16 {d}, {vr(WF[s] + 4 * ft, 4)}, {vr(XF[s] + 4 * tt, 4)}, {'0' if ks == 0 else d}")
                if g:
                    vm.issue(g[2], g[1])
                elif ks >= CHECKAT and ops and (slot or ks == 19):
                    emit_op(vm, ops.pop(0))
                elif rd_:
                    a(rd_.pop(0))
                    if rd_ and n % 4 == 2:
                        a(rd_.pop(0))
                elif misc:
                    for _ in range(2):
                        if misc:
                            a(misc.pop(0))
                if ks == LOOKAT and n == 15:
                    assert not misc
                    vm.issue("look", f"buffer_load_dword {LOOK1}, {VWFL}, {WSRD}, 0 offen sc1")
                    vm.issue("look", f"buffer_load_dword {LOOK2}, {VUFL}, {WSRD}, 0 offen sc1")
                n += 1
        assert not dm and not rd_
    assert not ops
    stamp(2)


def h_publish(vm=vmA, ACC=64):
    a(f"""
    s_lshl_b32 {RB}, {RB}, 1
    s_add_u32 {RB}, {RB}, {WT}
    s_lshl_b32 {CT}, {CT}, 1
    s_add_u32 {CT}, {CT}, {WF_}
    s_mul_i32 s16, {RB}, {54 * 4096}
    s_lshl_b32 s10, {CT}, 13
    s_add_u32 s16, s16, s10
    s_add_u32 s16, s16, {HF}
    s_add_u32 s17, s16, 4096
    s_lshl_b32 {HFO}, {RB}, 7
    s_lshl_b32 s10, {CT}, 2
    s_add_u32 {HFO}, {HFO}, s10
    s_cmp_lt_u32 {CT}, 27
    s_cselect_b32 s10, 0, {OOB}
    v_add_u32 {VUT}, s10, {L16}
    """)
    t = 160
    for m in range(2):
        for tt in range(4):
            for h in range(2):
                r = ACC + 16 * (2 * m + h) + 4 * tt
                a(f"v_cvt_pk_bf16_f32 v{t + 2 * h}, v{r}, v{r + 1}\nv_cvt_pk_bf16_f32 v{t + 2 * h + 1}, v{r + 2}, v{r + 3}")
            for k in range(4):
                a(f"v_pk_max_i16 v{t + k}, v{t + k}, 0")
            vm.issue("hst", f"buffer_store_dwordx4 {vr(t, 4)}, {VUT}, {WSRD}, s{16 + m} offen offset:{1024 * tt} sc1")
            t += 4


gemm1(vmA)
gops = wload_ops()[NEARLY:NEARLY + NGAP]
if "expre" in OPT:
    h_publish()
else:
    expansion(h_publish)
for _ in range(6):
    emit_op(vmA, gops.pop(0))

HSLOT = [192, 208, 88, 104, 120, 136]
NH = 6


def hload(vm, i, k):
    vm.issue(f"h{i}_{k}", f"buffer_load_dwordx4 {vr(HSLOT[i % NH] + 4 * k, 4)}, {HV[k]}, {SRDB}, s{22 + i} offen sc1")


ROWS = [[(i, k) for k in range(4)] for i in range(11)]
g_ = [(i, k) for k in (1, 2, 3, 0) for i in range(11, 14)]
ROWS += [g_[0:4], g_[4:8], g_[8:12]]
HORDER = [x for r in ROWS for x in r]


def conv(vm, ops, rounds):
    main = rounds == 1
    if main:
        a(f"v_add_u32 v17, {CPB}, {VUL}")
        vm.wait("u")
        for n in range(2):
            a(f"ds_write_b128 v17, {vr(24 + 4 * n, 4)} offset:{L_U + 512 + 2048 * n}")
    a(f"""
    s_lshl_b32 s10, {WF_}, 6
    s_sub_u32 s10, {CHB}, s10
    v_and_b32 v19, 1, {L15}
    v_mul_u32_u24 v19, {L_KO - 2 - L_KE}, v19
    v_lshl_add_u32 v19, {G4}, 4, v19
    v_lshlrev_b32 v18, 1, {L15}
    v_sub_u32 v19, v19, v18
    v_add_u32 v19, s10, v19
    v_add_u32 v20, {L_KE + 4064 - 512}, v19
    v_add_u32 v21, {L_KE + 4064 - 512 * 3}, v19
    v_add_u32 v22, {L_KE + 4064 - 512 * 5}, v19
    v_add_u32 v23, {L_KE + 4064 - 512 * 7}, v19
    v_lshlrev_b32 v19, 5, {L15}
    v_lshl_add_u32 v19, {G4}, 4, v19
    v_add_u32 v19, s10, v19
    v_add_u32 v19, {L_U + 480}, v19
    s_waitcnt lgkmcnt(0)
    s_barrier
    """)
    stamp(3)
    ACCS = [32, 192]
    AS, BS = [64, 128], [96, 160]

    def loads(g):
        s = g & 1
        L = []
        for m in range(8):
            L.append(f"ds_read_b128 {vr(BS[s] + 4 * m, 4)}, v19 offset:{512 * m}")
        for q in range(8):
            o = 128 if q % 2 == 0 else 0
            r = AS[s] + 4 * q
            L.append(f"ds_read2_b32 {vr(r, 2)}, v{20 + q // 2} offset0:{o} offset1:{o + 1}")
            L.append(f"ds_read2_b32 {vr(r + 2, 2)}, v{20 + q // 2} offset0:{o + 2} offset1:{o + 3}")
        for r in range(19, 24):
            L.append(f"v_add_u32 v{r}, {2 * CHP + 384}, v{r}" if g % 4 == 3 else f"v_subrev_u32 v{r}, 128, v{r}")
        return L

    def send(ACC):
        l1, l2 = a.newlabel("Lx"), a.newlabel("Lx")
        a(f"s_cmp_eq_u32 {WF_}, 1\ns_cbranch_scc1 {l1}\ns_nop 5")
        for j in range(4):
            a(f"ds_write_b128 v17, {vr(ACC + 16 + 4 * j, 4)} offset:{1024 * j}")
        a(f"s_branch {l2}\n{l1}:\ns_nop 5")
        for j in range(4):
            a(f"ds_write_b128 v17, {vr(ACC + 4 * j, 4)} offset:{1024 * j}")
        a(f"{l2}:")

    def recv(ACC):
        l1, l2 = a.newlabel("Lx"), a.newlabel("Lx")
        a(f"s_cmp_eq_u32 {WF_}, 1\ns_cbranch_scc1 {l1}")
        for j in range(4):
            a(f"ds_read_b128 {vr(ACC + 16 + 4 * j, 4)}, v18 offset:{1024 * j}")
        a(f"s_branch {l2}\n{l1}:")
        for j in range(4):
            a(f"ds_read_b128 {vr(ACC + 4 * j, 4)}, v18 offset:{1024 * j}")
        a(f"{l2}:")

    def out_lines(ACC):
        L = []
        for j in range(4):
            L += [f"v_pk_add_f32 {vr(ACC + 4 * j, 2)}, {vr(ACC + 4 * j, 2)}, {vr(ACC + 16 + 4 * j, 2)}",
                  f"v_pk_add_f32 {vr(ACC + 4 * j + 2, 2)}, {vr(ACC + 4 * j + 2, 2)}, {vr(ACC + 18 + 4 * j, 2)}",
                  f"v_cvt_pk_bf16_f32 v{24 + 2 * j}, v{ACC + 4 * j}, v{ACC + 4 * j + 1}", f"v_cvt_pk_bf16_f32 v{25 + 2 * j}, v{ACC + 4 * j + 2}, v{ACC + 4 * j + 3}"]
        for jp in range(2):
            L += [f"v_permlane16_swap_b32 v{24 + 4 * jp}, v{26 + 4 * jp}", f"v_permlane16_swap_b32 v{25 + 4 * jp}, v{27 + 4 * jp}"]
        return L

    def out_store():
        for jp in range(2):
            vm.issue("ast", f"buffer_store_dwordx4 {vr(24 + 4 * jp, 4)}, {VPS}, {WSRD}, s16 offen offset:{1024 * jp} sc1")

    for l in loads(0):
        a(l)
    misc = f"""
    s_lshl_b32 s10, {WAVE}, 12
    s_add_u32 s10, s10, {L_W2}
    v_add_u32 v17, s10, {L16}
    s_xor_b32 s10, {WAVE}, 1
    s_lshl_b32 s10, s10, 12
    s_add_u32 s10, s10, {L_W2}
    v_add_u32 v18, s10, {L16}
    v_lshlrev_b32 {VPS}, 5, {L15}
    v_lshrrev_b32 {VPF}, 1, {G4}
    v_lshl_add_u32 {VPS}, {VPF}, 4, {VPS}
    v_and_b32 {VPF}, 1, {G4}
    v_lshl_add_u32 {VPS}, {VPF}, 9, {VPS}
    s_lshl_b32 s16, {CP}, 13
    s_add_u32 s16, s16, {W2K}
    s_add_u32 s16, s16, {AG}
    s_mul_i32 {PFO}, {WF_}, 2560
    s_lshl_b32 s10, {CP}, 3
    s_add_u32 {PFO}, {PFO}, s10
    s_lshl_b32 s10, {WT}, 2
    s_add_u32 {PFO}, {PFO}, s10
    s_add_u32 {PFO}, {PFO}, {AFLAG}
    """.strip().split("\n")
    every = max(3, 130 // max(1, len(ops))) if main else 4
    for g in range(4 * rounds):
        r, p, s = g // 4, g % 4, g & 1
        ACC = ACCS[r & 1]
        nxt = loads(g + 1) if g + 1 < 4 * rounds else []
        a("s_waitcnt lgkmcnt(0)")
        extra = []
        if main and "cvst" in OPT and p == HP:
            stamp(10)
        if main and p == HP:
            vm.wait("hst")
            flag_store(vm, HFO, VUT)
        if main and "cvst" in OPT and p == HP:
            stamp(11)
        if main and "cvst" in OPT and p == 3:
            stamp(12)
        if not main and "cvst" in OPT and g in (4, 8):
            stamp(10 + g // 4)
        if r > 0 and p == 1:
            a("s_barrier")
            recv(ACCS[(r - 1) & 1])
        if r > 0 and p == 2:
            a("s_barrier")
            extra = out_lines(ACCS[(r - 1) & 1])
        if r > 0 and p == 3:
            out_store()
            a("s_add_u32 s16, s16, 8192")
        if r > 1 and p == 1:
            vm.wait("ast")
            flag_store(vm, PFO, ZERO)
            a(f"s_add_u32 {PFO}, {PFO}, 8")
        if not main and g == 3:
            vm.wait("look")
            poll(VWFL, LOOK1, first_issued=True, nap=8)
        n = 0
        for q in range(8):
            for j in range(q, 8):
                c = "0" if (p == 0 and q == 0) else vr(ACC + 4 * j, 4)
                a(f"v_mfma_f32_16x16x32_bf16 {vr(ACC + 4 * j, 4)}, {vr(AS[s] + 4 * q, 4)}, {vr(BS[s] + 4 * (j - q), 4)}, {c}")
                if ops and n % every == every - 1 and (main or g >= 3):
                    emit_op(vm, ops.pop(0))
                else:
                    if nxt:
                        a(nxt.pop(0))
                        if nxt and len(nxt) > (35 - n) * (every - 1) // every - 1:
                            a(nxt.pop(0))
                        elif extra:
                            a(extra.pop(0))
                    else:
                        for _ in range(2):
                            if extra:
                                a(extra.pop(0))
                            elif misc:
                                a(misc.pop(0))
                if not main and g == 1 and n == 30:
                    vm.issue("look", f"buffer_load_dword {LOOK1}, {VWFL}, {WSRD}, 0 offen sc1")
                if g == 4 * rounds - 1 and n == 30:
                    vm.issue("look", f"buffer_load_dword {LOOK1}, {VHFL}, {WSRD}, 0 offen sc1")
                n += 1
        for l in nxt + extra + (misc if p == 2 else []):
            a(l)
        if p == 2:
            misc = []
        if p == 3:
            if g == 4 * rounds - 1:
                stamp(4)
            send(ACC)
    assert not misc and not ops
    if not main:
        vm.wait("ast")
        flag_store(vm, PFO, ZERO)
        a(f"s_add_u32 {PFO}, {PFO}, 8")
    a("s_waitcnt lgkmcnt(0)\ns_barrier")
    recv(ACCS[0])
    a("s_waitcnt lgkmcnt(0)")
    for l in out_lines(ACCS[0]):
        a(l)
    out_store()


conv(vmA, gops, 1)
q_g2 = list(vmA.q)
a("L_gemm2:")


def gemm2(vm):
    a(f"s_mul_i32 s10, {TB}, {54 * 4096}\ns_add_u32 s10, s10, {HF}")
    srd(52, 42, 43, "s10", 54 * 4096)
    for i in range(3):
        a(f"s_add_u32 s{22 + i}, {HSO}, {4096 * i}")
    vm.wait("look")
    poll(VHFL, LOOK1, first_issued=True)
    stamp(5)
    hq = list(HORDER)
    LEAD = opt_int("lead", 12)
    for n in range(LEAD):
        hload(vm, *hq.pop(0))
    wrest = wload_ops()[NEARLY + NGAP:]
    ACC = 8
    X, Y = 152, 172
    XW = Y + 12
    GA, AR, PR = 192, X + 8, 88
    for i in range(3, 14):
        a(f"s_add_u32 s{22 + i}, {HSO}, {4096 * i}")
    a(f"""
    s_mul_i32 s18, {WAVE}, 20480
    v_add_u32 v{XW}, s18, {L16}
    """)
    for k in range(1, 4):
        a(f"s_sub_u32 s10, {WAVE}, {k}\ns_and_b32 s10, s10, 3\ns_mul_i32 s10, s10, 20480\nv_add_u32 v{XW + k}, s10, {L16}")
    a(f"""
    s_lshr_b32 s10, {TB}, 4
    s_mul_i32 s10, s10, 2560
    s_mul_i32 s16, {CS}, 320
    s_add_u32 s10, s10, s16
    s_add_u32 s10, s10, {AFLAG}
    v_lshl_add_u32 v{X + 5}, {LANE}, 3, s10
    s_lshl_b32 s10, {TB}, 2
    s_add_u32 s10, s10, {WAVE}
    s_lshl_b32 s10, s10, 3
    s_add_u32 s10, s10, {GFLAG}
    v_mov_b32 v{X + 6}, s10
    v_cmp_gt_u32 vcc, 40, {LANE}
    v_lshrrev_b32 v{X + 2}, 5, {LANE}
    v_bfe_u32 v{X + 3}, {LANE}, 3, 2
    v_cndmask_b32 v{X + 5}, v{X + 6}, v{X + 5}, vcc
    v_lshl_add_u32 v{X + 2}, v{X + 2}, 4, v{X + 3}
    v_and_b32 v{X + 3}, 7, {LANE}
    v_lshlrev_b32 v{X + 2}, 12, v{X + 2}
    v_lshl_add_u32 v{X + 2}, v{X + 3}, 4, v{X + 2}
    s_mul_i32 s16, {CS}, {80 * 4096}
    s_lshl_b32 s10, {TB}, 7
    s_add_u32 s16, s16, s10
    s_add_u32 s16, s16, {AG}
    s_lshl_b32 s17, {TB}, 8
    s_lshl_b32 s10, {WAVE}, 6
    s_add_u32 s17, s17, s10
    s_add_u32 s17, s17, {G_OFF}
    v_lshlrev_b32 v{X + 3}, 2, {L15}
    s_lshl_b32 s20, {WAVE}, 14
    s_lshl_b32 s19, {TB}, 6
    s_lshl_b32 s10, {WAVE}, 4
    s_add_u32 s19, s19, s10
    s_mul_i32 s19, s19, 1280
    s_mul_i32 s10, {CS}, 160
    s_add_u32 s19, s19, s10
    s_mov_b32 s48, s38
    s_mov_b32 s49, s39
    s_mov_b32 s50, {2048 * 1280}
    s_mov_b32 s51, 0x20000
    s_add_u32 s21, s18, 17920
    v_mul_u32_u24 v{Y + 4}, 160, {L15}
    v_lshl_add_u32 v{Y + 4}, {G4}, 3, v{Y + 4}
    v_add_u32 v{Y + 4}, s21, v{Y + 4}
    v_mul_u32_u24 v{Y + 5}, 20480, {G4}
    v_bfe_u32 v{Y + 6}, {LANE}, 2, 2
    v_lshl_add_u32 v{Y + 5}, v{Y + 6}, 7, v{Y + 5}
    v_and_b32 v{Y + 6}, 3, {LANE}
    v_lshl_add_u32 v{Y + 5}, v{Y + 6}, 3, v{Y + 5}
    s_lshl_b32 s10, {WAVE}, 5
    s_add_u32 s10, s10, 15360
    v_add_u32 v{Y + 5}, s10, v{Y + 5}
    """)
    for n in range(3):
        q, r_, ga = Y + 6, Y + 7, Y + 8 + n
        a(f"v_add_u32 v{q}, {64 * n}, {LANE}\nv_mul_u32_u24 v{r_}, 205, v{q}\nv_lshrrev_b32 v{r_}, 11, v{r_}\nv_mul_u32_u24 v{r_}, 1120, v{r_}\nv_lshl_add_u32 v{ga}, v{q}, 4, v{r_}")
    vm.wait("ast")
    flag_store(vm, PFO, ZERO)
    done = set()
    wq = []
    ALOOK, ACHK = opt_int("alook", 8), opt_int("achk", 11)
    for i, rw in enumerate(ROWS):
        if 1 <= i <= 12:
            stamp(i, True)
        if i == ALOOK:
            vm.issue("look", f"buffer_load_dwordx2 {vr(X + 6, 2)}, v{X + 5}, {WSRD}, 0 offen sc1")
        if i == ACHK:
            assert not wrest
            vm.wait("look")
            lab = a.newlabel("La")
            a(f"v_cmp_ne_u32 vcc, {TAG}, v{X + 6}\nv_cmp_ne_u32 s[12:13], {TAG}, v{X + 7}\ns_or_b64 vcc, vcc, s[12:13]\ns_cbranch_scc0 {lab}")
            poll(f"v{X + 5}", f"v{X + 6}")
            a(f"v_add_u32 v{X + 5}, 4, v{X + 5}")
            poll(f"v{X + 5}", f"v{X + 6}")
            a(f"{lab}:\ns_add_u32 s56, s42, s16\ns_addc_u32 s57, s43, 0\ns_mov_b32 s58, {80 * 4096 - 3968}")
            wrest = [(f"s_add_u32 m0, s18, {15360 + 1024 * m}\ns_nop 0\nbuffer_load_dwordx4 v{X + 2}, {SRDC}, s20 offen sc1 lds", "ag", f"s_add_u32 s20, s20, {32 * 4096}") for m in range(3)]
            wrest += [(f"buffer_load_dword v{X + 4}, v{X + 3}, {WSRD}, s17 offen sc1", "ag", None)]
        n = 0
        for (x, k) in rw:
            vm.wait(f"h{x}_{k}", f"W{x}")
            for dt in range(5):
                d = vr(ACC + 20 * k + 4 * dt, 4)
                a(f"v_mfma_f32_16x16x32_bf16 {d}, {WSLOT[5 * x + dt]}, {vr(HSLOT[x % NH] + 4 * k, 4)}, {'0' if x == 0 else d}")
                if wq and wq[0][0] <= 20 * i + n:
                    a(wq.pop(0)[1])
                if dt == 4:
                    done.add((x, k))
                if dt == 2 and hq and (hq[0][0] < NH or (hq[0][0] - NH, hq[0][1]) in done):
                    hload(vm, *hq.pop(0))
                elif dt == 0 and wrest:
                    emit_op(vm, wrest.pop(0))
                n += 1
            if x == 13 and k:
                wq += [(20 * i + n + 1 + 3 * dt, f"ds_write_b128 v{XW}, {vr(ACC + 20 * k + 4 * dt, 4)} offset:{5120 * (k - 1) + 1024 * dt}") for dt in range(5)]
    for _, w in wq:
        a(w)
    assert not hq and not wrest
    stamp(6)
    a(f"""
    s_waitcnt vmcnt(0) lgkmcnt(0)
    s_barrier
    """)
    for dt in range(5):
        a(f"ds_read_b64_tr_b16 {vr(AR + 2 * dt, 2)}, v{Y + 5} offset:{512 * dt}")
    for k in range(1, 4):
        for dt in range(5):
            a(f"ds_read_b128 {vr(PR + 20 * (k - 1) + 4 * dt, 4)}, v{XW + k} offset:{5120 * (k - 1) + 1024 * dt}")
    a(f"""
    v_sub_f32 v{X + 6}, 1.0, v{X + 4}
    v_cvt_pk_bf16_f32 v{X + 6}, v{X + 6}, v{X + 6}
    v_and_b32 v{X + 6}, 0xffff0000, v{X + 6}
    s_waitcnt lgkmcnt(15)
    """)
    for i in range(10):
        a(f"v_lshlrev_b32 v{GA + 2 * i}, 16, v{AR + i}\nv_and_b32 v{GA + 2 * i + 1}, 0xffff0000, v{AR + i}")
    for i in range(10):
        a(f"v_pk_mul_f32 {vr(GA + 2 * i, 2)}, {vr(GA + 2 * i, 2)}, {vr(X + 4, 2)} op_sel_hi:[1,0]")
    for k in range(2):
        a(f"s_waitcnt lgkmcnt({10 - 5 * k})")
        for i in range(10):
            a(f"v_pk_add_f32 {vr(ACC + 2 * i, 2)}, {vr(ACC + 2 * i, 2)}, {vr(PR + 20 * k + 2 * i, 2)}")
    a("s_waitcnt lgkmcnt(0)")
    for dt in range(5):
        for x in (2 * dt, 2 * dt + 1):
            a(f"v_pk_add_f32 {vr(ACC + 2 * x, 2)}, {vr(ACC + 2 * x, 2)}, {vr(PR + 40 + 2 * x, 2)}")
        for x in (2 * dt, 2 * dt + 1):
            a(f"v_pk_fma_f32 {vr(GA + 2 * x, 2)}, {vr(ACC + 2 * x, 2)}, {vr(X + 6, 2)}, {vr(GA + 2 * x, 2)} op_sel_hi:[1,0,1]")
        a(f"v_cvt_pk_bf16_f32 v{AR + 2 * dt}, v{GA + 4 * dt}, v{GA + 4 * dt + 1}\nv_cvt_pk_bf16_f32 v{AR + 2 * dt + 1}, v{GA + 4 * dt + 2}, v{GA + 4 * dt + 3}")
        a(f"ds_write_b64 v{Y + 4}, {vr(AR + 2 * dt, 2)} offset:{32 * dt}")
    for n in range(3):
        a(f"ds_read_b128 {vr(PR + 4 * n, 4)}, v{XW} offset:{17920 + 1024 * n}")
    for n in range(3):
        a(f"s_waitcnt lgkmcnt({2 - n})")
        if n == 2:
            a("s_mov_b32 exec_hi, 0")
        a(f"buffer_store_dwordx4 {vr(PR + 4 * n, 4)}, v{Y + 8 + n}, {SRDA}, s19 offen nt")
    if DIAG:
        a("s_mov_b64 exec, -1\ns_waitcnt vmcnt(0)")
        stamp(13)
        a(f"""
        s_lshl_b32 s10, s2, 8
        s_lshl_b32 s11, {WAVE}, 6
        s_add_u32 s10, s10, s11
        s_add_u32 s10, s10, {STAMP}
        s_mov_b64 exec, 1
        """)
        for i in range(14):
            a(f"v_mov_b32 v{8 + i}, s{74 + 2 * i}")
        for i in range(4):
            a(f"buffer_store_dwordx4 v[{8 + 4 * i}:{11 + 4 * i}], {ZERO}, {WSRD}, s10 offen offset:{16 * i}")
        if "dbgspan" in OPT:
            a(f"v_not_b32 v30, v8\nglobal_atomic_umax {ZERO}, v30, {DBG} offset:4 sc1")
            for k, i in enumerate((0, 1, 2, 3, 4, 5, 6, 13)):
                a(f"global_atomic_umax {ZERO}, v{8 + i}, {DBG} offset:{8 + 4 * k} sc1")
    if opt_int("holdus", 0):
        a(f"L_hold:\ns_memrealtime s[12:13]\ns_waitcnt lgkmcnt(0)\ns_sub_u32 s12, s12, {TAG}\ns_cmp_lt_u32 s12, {100 * opt_int('holdus', 0)}\ns_cbranch_scc1 L_hold")
    a("L_end:\ns_endpgm")


gemm2(vmA)


def typeC():
    vm = VM(a)
    a(f"""
    L_typeC:
    s_sub_u32 {CP}, s2, 224
    s_mul_i32 {CP}, {CP}, 3
    s_add_u32 {CP}, {CP}, 224
    s_mov_b32 {CPB}, 0
    s_mov_b32 {KCB}, {CB}
    s_lshl_b32 {W2K}, {WAVE}, 11
    s_mul_i32 {CHB}, {WT}, {CHP}
    s_lshl_b32 s10, {CP}, 9
    v_lshl_add_u32 v68, v0, 1, s10
    s_lshl_b32 s69, {CP}, 2
    s_waitcnt lgkmcnt(0)
    {WSHIFT}
    """)
    param_loads(vm, 3)
    for r in range(3):
        a(f"s_load_dword s{48 + r}, {LDT}, s69\ns_load_dword s{52 + r}, {DSK}, s69\ns_add_u32 s69, s69, 4")
    a("s_mov_b32 s44, s42\ns_mov_b32 s45, s43\ns_mov_b32 s30, s16\ns_mov_b32 s31, s17")
    for l in kgen_addr() + late_addr():
        a(l)
    srd(56, 42, 43, W2F, 54 * 40960); k_order()
    a(f"s_lshl_b32 s10, {WF_}, 8\ns_add_u32 s10, s10, {CHB}\nv_lshl_add_u32 v70, {LANE}, 2, s10")
    a(f"ds_write_b32 v70, {ZERO} offset:{2 * CHP}\nds_write_b32 v70, {ZERO} offset:{4 * CHP}")
    a(f"s_lshl_b32 s10, {WT}, 4\ns_waitcnt lgkmcnt(0)")
    for r in range(3):
        for b, d in ((48, SDT), (52, SDS)):
            a(f"s_lshr_b32 s{d + r}, s{b + r}, s10\ns_lshl_b32 s{d + r}, s{d + r}, 16")
    a("s_waitcnt vmcnt(8)")
    stamp(8)
    K = [kgen_sections(CPAR[r], f"s{SDT + r}", f"s{SDS + r}") for r in range(3)]
    for l in K[0][0]:
        a(l)
    for r in range(3):
        for sec in K[r][1:5]:
            for l in sec:
                a(l)
        if r == 0:
            a("s_waitcnt vmcnt(0)")
            tlb_touch()
        if r == 1:
            a(f"global_load_dword {VTAG}, {ZERO}, {DBG} sc1")
        if r < 2:
            for l in K[r + 1][0]:
                a(l)
        else:
            a(f"""
            s_lshr_b32 s10, {CP}, 5
            s_lshl_b32 s10, s10, 8
            s_add_u32 s10, s10, {UFLAG}
            v_lshl_add_u32 v17, {LANE}, 2, s10
            s_add_u32 s10, {CP}, 2
            s_lshr_b32 s10, s10, 5
            s_lshl_b32 s10, s10, 8
            s_add_u32 s10, s10, {UFLAG}
            v_lshl_add_u32 {VUFL}, {LANE}, 2, s10
            s_waitcnt vmcnt(0)
            buffer_load_dword {LOOK2}, {VUFL}, {WSRD}, 0 offen sc1
            buffer_load_dword v18, v17, {WSRD}, 0 offen sc1
            """)
            get_tag()
        for l in K[r][5]:
            a(l)
        if r < 2:
            for x in range(TW, TR + 1):
                a(f"v_add_u32 v{x}, {2 * CHP}, v{x}")
            for x in range(228, 232):
                a(f"v_add_u32 v{x}, 12288, v{x}")
    stamp(1)
    a("s_waitcnt lgkmcnt(0)\ns_barrier")
    for r in range(3):
        expansion()
        a(f"s_add_u32 {CHB}, {CHB}, {2 * CHP}\ns_add_u32 {KCB}, {KCB}, 12288")
        if r == 0:
            stamp(9)
            a("s_waitcnt vmcnt(0)")
            poll(VUFL, LOOK2, first_issued=True, nap=8)
            poll("v17", "v18", first_issued=True, nap=8)
            stamp(10)
            a(f"s_lshl_b32 {ULO}, {CP}, 7\ns_add_u32 {ULO}, {ULO}, {UT}\ns_add_u32 s10, {ULO}, {32 * 40960}")
            for q in range(3):
                a(f"buffer_load_dwordx4 {vr(64 + 8 * q, 4)}, {VUG}, {WSRD}, {ULO} offen offset:{128 * q} sc1")
                a(f"buffer_load_dwordx4 {vr(68 + 8 * q, 4)}, {VUG}, {WSRD}, s10 offen offset:{128 * q} sc1")
    a(f"s_mul_i32 {CHB}, {WT}, {CHP}\ns_waitcnt vmcnt(0)")
    for r in range(3):
        for n in range(2):
            a(f"ds_write_b128 {VUL}, {vr(64 + 8 * r + 4 * n, 4)} offset:{2 * CHP * r + L_U + 512 + 2048 * n}")
    stamp(2)
    vm.q = []
    conv(vm, wload_ops()[:NEARLY + NGAP], 3)
    vm.wait("look")
    assert q_g2[-2:] == ["ast", "ast"] and vm.q[-2:] == ["ast", "ast"]
    a("s_branch L_gemm2\nL_code1:")


typeC()

body = a.render()
head = open(f"cdna_kernels/{NAME}.s.ref").read().split("; Override launch")[0]
text = head + f"""; Generated by the author's own generator script; single fused kernel, one workgroup per CU.
; @launch grid=(256,1,1) block=(256,1,1) lds=163840
.amdgcn_target "amdgcn-amd-amdhsa--gfx950"
.text
.globl {NAME}_kernel
.p2align 8
.type {NAME}_kernel,@function
{NAME}_kernel:
{body}.section .rodata,"a"
.p2align 6
.amdhsa_kernel {NAME}_kernel
  .amdhsa_next_free_vgpr 512
  .amdhsa_next_free_sgpr 102
  .amdhsa_accum_offset 256
  .amdhsa_group_segment_fixed_size 0
  .amdhsa_kernarg_size 112
  .amdhsa_user_sgpr_count 2
  .amdhsa_user_sgpr_kernarg_segment_ptr 1
  .amdhsa_system_sgpr_workgroup_id_x 1
.end_amdhsa_kernel
"""
open(OUT, "w").write(text)
print("wrote", OUT, "lines", text.count("\n"), "auto nops", a.nops)
```

```python
import sys, struct
from asmlib import Asm, VM

NAME = "gated_mix__ssm_conv_s4d__dense_activation_relu__prompt"
DIAG = "--diag" in sys.argv
OPT = set(x[2:] for x in sys.argv if x.startswith("--"))
OUT = [x for x in sys.argv[1:] if not x.startswith("--")]
OUT = OUT[0] if OUT else f"cdna_kernels/{NAME}.s"

HFLAG, UFLAG, G_OFF, WFLAG, GFLAG, AFLAG = 0x0, 0x1000, 0x2000, 0x5000, 0x5800, 0x6000
UT = 0x10000
W2F = UT + 64 * 40960
HF = W2F + 54 * 40960
AG = HF + 32 * 54 * 4096
STAMP = AG + 160 * 16384
WS_END = STAMP + 512 * 4 * 64
SPIN_LIMIT = 400000
OOB = 0x40000000
WSHIFT = "\ns_add_u32 s42, s42, 0xF000000\ns_addc_u32 s43, s43, 0" if "wsend" in OPT else ""

XB, WB, CB = 0, 49152, 98304
NWS = 6
L_U, L_KE, L_KO, CHP = 0, 4608, 9280, 13952
L_KC = CB + 2 * CHP
L_W2 = L_KC + 4 * 3072
L_AT = 81920
TP = 288


def f32(x):
    return "0x%08x" % struct.unpack("<I", struct.pack("<f", x))[0]


def vr(b, n=1, f="v"):
    return f"{f}{b}" if n == 1 else f"{f}[{b}:{b + n - 1}]"


a = Asm()
LOGA, AIM, CR, CI, LDT, DSK = "s[18:19]", "s[20:21]", "s[22:23]", "s[24:25]", "s[26:27]", "s[28:29]"
DBG, WSRD = "s[40:41]", "s[44:47]"
SRDA, SRDB, SRDC = "s[48:51]", "s[52:55]", "s[56:59]"
WAVE, TAG, XCD, J = "s3", "s4", "s5", "s6"
RB, CT = "s7", "s8"
W2K, WT, WF_ = "s11", "s14", "s15"
XS, WSS = 16, 26
HFO, W4K, D0, UTO, UFO = "s60", "s62", "s63", "s64", "s65"
CP, CPB, CHB, PFO, PF2 = "s67", "s70", "s61", "s71", "s68"
ULO = "s69"
TB, CS = "s72", "s73"
WSO, HSO = "s36", "s37"
LANE, ZERO = "v1", "v3"
VXS, VWS, VXR, VWR = [236, 237, 238, 239], [240, 241, 242, 243], [244, 245], [246, 247, 248, 249]
L16, VUT, VTAG = "v250", "v251", "v252"
L15, G4 = "v254", "v255"


def stamp(i, rowst=False):
    if DIAG and (('rows' in OPT) == rowst or i in (0, 13)):
        a(f"s_memrealtime s[{74 + 2 * i}:{75 + 2 * i}]\ns_waitcnt lgkmcnt(0)")


def srd(dst, lo, hi, off_s, size):
    if off_s is None:
        a(f"s_mov_b32 s{dst}, s{lo}\ns_mov_b32 s{dst + 1}, s{hi}")
    else:
        a(f"s_add_u32 s{dst}, s{lo}, {off_s}\ns_addc_u32 s{dst + 1}, s{hi}, 0")
    a(f"s_mov_b32 s{dst + 2}, {size}\ns_mov_b32 s{dst + 3}, 0x20000")


def poll(voff, vf, first_issued=False, nap=4):
    lp, chk, done = (a.newlabel(x) for x in ("Lp", "Lc", "Ld"))
    if first_issued:
        a(f"v_cmp_ne_u32 vcc, {TAG}, {vf}\ns_cmp_eq_u64 vcc, 0\ns_cbranch_scc1 {done}")
    a(f"""
    s_mov_b32 s66, 0
    {lp}:
    buffer_load_dword {vf}, {voff}, {WSRD}, 0 offen sc1
    s_waitcnt vmcnt(0)
    v_cmp_ne_u32 vcc, {TAG}, {vf}
    s_cmp_eq_u64 vcc, 0
    s_cbranch_scc1 {done}
    s_sleep {nap}
    s_add_u32 s66, s66, 1
    s_cmp_lt_u32 s66, {SPIN_LIMIT}
    s_cbranch_scc1 {lp}
    {done}:
    """)


def get_tag():
    lp, done = a.newlabel("Lt"), a.newlabel("Ld")
    a(f"""
    v_readfirstlane_b32 {TAG}, {VTAG}
    s_cmp_lg_u32 {TAG}, 0
    s_cbranch_scc1 {done}
    s_mov_b32 s66, 0
    {lp}:
    global_load_dword {VTAG}, {ZERO}, {DBG} sc1
    s_waitcnt vmcnt(0)
    v_readfirstlane_b32 {TAG}, {VTAG}
    s_cmp_lg_u32 {TAG}, 0
    s_cbranch_scc1 {done}
    s_sleep 2
    s_add_u32 s66, s66, 1
    s_cmp_lt_u32 s66, {SPIN_LIMIT}
    s_cbranch_scc1 {lp}
    {done}:
    """)


def flag_store(vm, soff, voff):
    a("s_mov_b64 exec, 1")
    vm.issue("fl", f"buffer_store_dword {VTAG}, {voff}, {WSRD}, {soff} offen sc1")
    a("s_mov_b64 exec, -1")


def dmax(D, ms=range(4)):
    return [(f"s_add_u32 m0, {W4K}, {XB + (D % 3) * 16384 + 1024 * m}",
             f"buffer_load_dwordx4 v{VXS[m]}, {SRDA}, s{XS + D} offen lds", f"x{D}") for m in ms]


def dmaw(ks):
    return [(f"s_add_u32 m0, {W2K}, {WB + (ks % NWS) * 8192 + 1024 * m}",
             f"buffer_load_dwordx4 v{VWS[2 * (ks & 1) + m]}, {SRDB}, s{WSS + (ks >> 1)} offen lds", f"w{ks}") for m in range(2)]


def emit_dma(vm, gs):
    for g in gs:
        a(g[0])
        vm.issue(g[2], g[1])


def soff(D):
    return [f"s_add_u32 s{XS + D}, s{XS + D - 1}, 128\ns_add_u32 s{WSS + D}, s{WSS + D - 1}, {64 * 3456}",
            f"s_cmp_eq_u32 s{XS + D}, 1280\ns_cselect_b32 s{XS + D}, 0, s{XS + D}\ns_cselect_b32 s{WSS + D}, 0, s{WSS + D}"]


def g1_setup_a():
    a(f"""
    s_mul_i32 {RB}, {J}, 37
    s_lshr_b32 {RB}, {RB}, 8
    s_mul_i32 {CT}, {RB}, 7
    s_sub_u32 {CT}, {J}, {CT}
    s_lshr_b32 s9, {XCD}, 1
    s_lshl_b32 s9, s9, 2
    s_add_u32 {RB}, {RB}, s9
    s_and_b32 s9, {XCD}, 1
    s_mul_i32 s9, s9, 7
    s_add_u32 {CT}, {CT}, s9
    v_lshrrev_b32 v4, 3, {LANE}
    s_lshl_b32 s10, {WAVE}, 5
    v_add_u32 v4, s10, v4
    v_mul_u32_u24 v4, 1280, v4
    v_and_b32 v6, 7, {LANE}
    v_xor_b32 v6, v6, {G4}
    v_lshl_add_u32 v{VXS[0]}, v6, 4, v4
    v_xor_b32 v{VXS[1]}, 64, v{VXS[0]}
    v_add_u32 v{VXS[1]}, 10240, v{VXS[1]}
    v_add_u32 v{VXS[2]}, 20480, v{VXS[0]}
    v_add_u32 v{VXS[3]}, 20480, v{VXS[1]}
    s_lshl_b32 s10, {WAVE}, 3
    v_add_u32 v4, s10, {G4}
    v_mul_u32_u24 v4, 3456, v4
    s_lshl_b32 s10, {WF_}, 2
    v_or_b32 v6, s10, {G4}
    v_lshlrev_b32 v6, 1, v6
    v_xor_b32 v6, v6, {L15}
    v_lshl_add_u32 v{VWS[0]}, v6, 4, v4
    s_lshl_b32 s10, {CT}, 8
    v_add_u32 v{VWS[0]}, s10, v{VWS[0]}
    v_add_u32 v{VWS[1]}, 13824, v{VWS[0]}
    v_add_u32 v{VWS[2]}, {32 * 3456}, v{VWS[0]}
    v_add_u32 v{VWS[3]}, {32 * 3456}, v{VWS[1]}
    s_lshl_b32 {W2K}, {WAVE}, 11
    s_lshl_b32 {W4K}, {WAVE}, 12
    s_mul_i32 s12, {RB}, 3
    s_add_u32 s12, s12, {CT}
    s_mul_i32 s13, s12, 205
    s_lshr_b32 s13, s13, 11
    s_mul_i32 s13, s13, 10
    s_sub_u32 {D0}, s12, s13
    s_mul_i32 s9, {RB}, {128 * 1280}
    """)


def g1_setup_b():
    srd(48, 16, 17, "s9", 128 * 1280)
    srd(52, 32, 33, None, 640 * 3456)


def g1_setup_c():
    a(f"""
    s_lshl_b32 s10, {WT}, 13
    v_lshlrev_b32 v{VXR[0]}, 7, {L15}
    v_add_u32 v{VXR[0]}, s10, v{VXR[0]}
    v_bfe_u32 v4, {LANE}, 1, 3
    v_xor_b32 v4, v4, {G4}
    v_lshl_add_u32 v{VXR[0]}, v4, 4, v{VXR[0]}
    v_xor_b32 v{VXR[1]}, 64, v{VXR[0]}
    v_bfe_u32 v4, {LANE}, 2, 2
    v_lshl_add_u32 v6, {G4}, 3, v4
    v_lshlrev_b32 v{VWR[0]}, 8, v6
    v_and_b32 v6, 1, {G4}
    v_lshl_or_b32 v6, v6, 2, v4
    s_lshl_b32 s10, {WF_}, 2
    v_xor_b32 v6, s10, v6
    v_lshl_add_u32 v{VWR[0]}, v6, 5, v{VWR[0]}
    v_and_b32 v7, 3, {LANE}
    v_lshl_add_u32 v{VWR[0]}, v7, 3, v{VWR[0]}
    v_add_u32 v{VWR[0]}, {WB}, v{VWR[0]}
    v_xor_b32 v{VWR[1]}, 32, v{VWR[0]}
    v_xor_b32 v{VWR[2]}, 64, v{VWR[0]}
    v_xor_b32 v{VWR[3]}, 0x60, v{VWR[0]}
    v_lshl_add_u32 v6, v7, 3, v4
    v_lshlrev_b32 v253, 7, v6
    v_add_u32 v253, {W4K}, v253
    v_bfe_u32 v6, v6, 1, 3
    v_lshrrev_b32 v7, 5, {LANE}
    v_xor_b32 v6, v6, v7
    v_lshl_add_u32 v253, v6, 4, v253
    v_and_b32 v6, 1, {G4}
    v_lshl_add_u32 v253, v6, 3, v253
    s_lshl_b32 s10, {RB}, 2
    s_add_u32 s10, s10, {WAVE}
    s_mul_i32 {UTO}, s10, 40960
    s_lshl_b32 {UFO}, {D0}, 12
    s_add_u32 {UTO}, {UTO}, {UFO}
    s_add_u32 {UTO}, {UTO}, {UT}
    s_lshl_b32 {UFO}, {D0}, 8
    s_lshl_b32 s10, s10, 2
    s_add_u32 {UFO}, {UFO}, s10
    s_add_u32 {UFO}, {UFO}, {UFLAG}
    s_cmp_lt_u32 {CT}, 10
    s_cselect_b32 s10, 0, {OOB}
    v_lshlrev_b32 {VUT}, 8, {G4}
    v_lshl_add_u32 {VUT}, v4, 5, {VUT}
    v_bfe_u32 v6, {LANE}, 1, 1
    v_lshl_add_u32 {VUT}, v6, 7, {VUT}
    v_and_b32 v6, 1, {LANE}
    v_lshl_add_u32 {VUT}, v6, 4, {VUT}
    v_add_u32 {VUT}, s10, {VUT}
    """)


def ut_step(vm, t):
    vm.wait("x0")
    vm.issue("tag", f"global_load_dword {VTAG}, {ZERO}, {DBG} sc1")
    a(f"v_mov_b32 v{t + 16}, v253\nv_xor_b32 v{t + 17}, 32, v253\nv_xor_b32 v{t + 18}, 64, v253\nv_xor_b32 v{t + 19}, 0x60, v253")
    for dt in range(4):
        a(f"ds_read_b64_tr_b16 {vr(t + 4 * dt, 2)}, v{t + 16 + dt}\nds_read_b64_tr_b16 {vr(t + 2 + 4 * dt, 2)}, v{t + 16 + (dt ^ 1)} offset:512")
    for dt in range(4):
        a(f"s_waitcnt lgkmcnt({6 - 2 * dt})")
        vm.issue("ut", f"buffer_store_dwordx4 {vr(t + 4 * dt, 4)}, {VUT}, {WSRD}, {'s46' if 'nout' in OPT else UTO} offen offset:{1024 * dt} sc1")


def ut_flag(vm):
    vm.wait("ut")
    get_tag()
    flag_store(vm, UFO, VUT)


VWFL, VUFL, VHFL, VUG, VUL, LOOK1, LOOK2, VPS, VPF = "v8", "v9", "v10", "v11", "v12", "v13", "v14", "v15", "v16"
HV = ["v0", "v5", "v6", "v7"]
JUNK = "v233"
KCB, HFM = "s9", "s[30:31]"

a("L_code0:")
CODEPF = f"""
s_getpc_b64 s[12:13]
L_pc0:
s_lshr_b32 s10, s2, 3
s_lshl_b32 s10, s10, 11
v_lshl_add_u32 v40, v0, 7, s10
v_min_u32 v40, L_code1-L_pc0-4, v40
v_cmp_gt_u32 vcc, 16, v0
s_and_saveexec_b64 s[8:9], vcc
s_cbranch_execz L_nopf
global_load_dword {JUNK}, v40, s[12:13]
L_nopf:
s_mov_b64 exec, -1
""" if "nopf" not in OPT else ""
stamp(0)
if "entryclk" in OPT:
    a("s_memrealtime s[100:101]")
a(f"""
s_cmp_ge_u32 s2, 256
s_cbranch_scc1 L_end
s_load_dwordx16 s[16:31], s[0:1], 0
s_load_dwordx8 s[32:39], s[0:1], 64
s_load_dwordx4 s[40:43], s[0:1], 96
{CODEPF}
v_lshrrev_b32 v2, 6, v0
v_and_b32 {LANE}, 63, v0
v_mov_b32 {ZERO}, 0
v_readfirstlane_b32 {WAVE}, v2
s_and_b32 {XCD}, s2, 7
s_lshr_b32 {J}, s2, 3
s_mov_b32 s46, {WS_END}
s_mov_b32 s47, 0x20000
v_and_b32 {L15}, 15, v0
v_bfe_u32 {G4}, v0, 4, 2
v_lshlrev_b32 {L16}, 4, {LANE}
s_lshr_b32 {WT}, {WAVE}, 1
s_and_b32 {WF_}, {WAVE}, 1
s_cmp_ge_u32 {J}, 28
s_cbranch_scc1 L_typeC
""")


def tlb_touch():
    if "notlb" in OPT:
        return
    lab = a.newlabel("Ltl")
    a(f"""
    s_cmp_lg_u32 {WAVE}, 1
    s_cbranch_scc1 {lab}
    v_lshlrev_b32 v99, 18, {LANE}
    v_add_u32 v99, 0xff80, v99
    buffer_load_dword {JUNK}, v99, {WSRD}, 0 offen sc1
    v_lshlrev_b32 v99, 16, {LANE}
    v_min_u32 v99, {2048 * 1280 - 4}, v99
    global_load_dword {JUNK}, v99, s[38:39] sc1
    {lab}:
    """)


def bf16_round_int(l):
    if l < 256:
        return l
    e = l.bit_length() - 8
    q, r = l >> e, l & ((1 << e) - 1)
    h = 1 << (e - 1)
    if r > h or (r == h and (q & 1)):
        q += 1
    return q << e


PAR = 208
SDT, SDS = 20, 23


def param_loads(vm, n=1):
    for r in range(n):
        for k, ptr in enumerate((LOGA, AIM, CR, CI)):
            vm.issue("par", f"global_load_ushort v{CPAR[r] + k}, v68, {ptr} offset:{512 * r} nt")


CPAR = [208, 212, 240]
GX, GW, GX2 = 152, 172, 100


def gate_addr():
    a(f"""
    s_lshl_b32 s10, {XCD}, 3
    s_and_b32 s13, {J}, 7
    s_add_u32 s13, s13, s10
    s_lshl_b32 s10, s13, 5
    s_lshl_b32 s12, {WAVE}, 3
    s_add_u32 s10, s10, s12
    v_add_u32 v65, s10, {G4}
    v_lshlrev_b32 v93, 4, {L15}
    v_mul_u32_u24 v92, 1280, v65
    v_add_u32 v92, v92, v93
    v_add_u32 v94, 5120, v92
    v_and_b32 v64, 1, {LANE}
    v_lshl_add_u32 v65, v64, 2, v65
    v_lshlrev_b32 {VPS}, 2, v65
    v_mov_b32 {VPF}, 0
    s_lshl_b32 {PF2}, s13, 4
    s_lshl_b32 s10, {WAVE}, 2
    s_add_u32 {PF2}, {PF2}, s10
    s_add_u32 {PF2}, {PF2}, {GFLAG}
    """)


def gate_loads(vm):
    for k in range(5):
        a(f"global_load_dwordx4 {vr(GW + 4 * k, 4)}, v93, s[36:37] offset:{256 * k}")
        a(f"global_load_dwordx4 {vr(GX2 + 4 * k, 4)}, v94, s[30:31] offset:{256 * k}")
    for k in range(5):
        vm.issue("pre", f"global_load_dwordx4 {vr(GX + 4 * k, 4)}, v92, s[30:31] offset:{256 * k}")


def gate_finish(vm):
    a("v_mov_b32 v64, 0\nv_mov_b32 v65, 0")
    for k in range(20):
        a(f"v_dot2_f32_bf16 v64, v{GX + k}, v{GW + k}, v64\nv_dot2_f32_bf16 v65, v{GX2 + k}, v{GW + k}, v65")
    a(f"v_and_b32 v66, 1, {LANE}\nv_cmp_eq_u32 vcc, 1, v66\ns_nop 0")
    for sh in (8, 4, 2, 1):
        a(f"v_add_f32_dpp v64, v64, v64 row_ror:{sh} row_mask:0xf bank_mask:0xf")
        a(f"v_add_f32_dpp v65, v65, v65 row_ror:{sh} row_mask:0xf bank_mask:0xf")
    a(f"""
    v_cndmask_b32 v64, v64, v65, vcc
    v_cvt_pk_bf16_f32 v64, v64, v64
    v_and_b32 v64, 0xffff0000, v64
    v_mul_f32 v64, {f32(-1.4426950408889634)}, v64
    v_exp_f32 v64, v64
    v_add_f32 v64, 1.0, v64
    v_rcp_f32 v64, v64
    v_cvt_pk_bf16_f32 v64, v64, v64
    v_and_b32 v64, 0xffff0000, v64
    s_mov_b32 s10, {G_OFF}
    s_mov_b32 s12, 0x30003
    s_mov_b32 s13, 0x30003
    s_mov_b64 exec, s[12:13]
    """)
    vm.issue("pst", f"buffer_store_dword v64, {VPS}, {WSRD}, s10 offen sc1")
    a("s_mov_b64 exec, -1")


def late_addr():
    L = f"""
    s_lshr_b32 {TB}, {XCD}, 1
    s_lshl_b32 {TB}, {TB}, 3
    s_lshr_b32 s10, {J}, 2
    s_add_u32 {TB}, {TB}, s10
    s_and_b32 {CS}, {XCD}, 1
    s_lshl_b32 {CS}, {CS}, 2
    s_and_b32 s10, {J}, 3
    s_add_u32 {CS}, {CS}, s10
    s_mul_i32 s10, {CS}, 5120
    v_add_u32 v2, s10, {L16}
    v_add_u32 v4, 4096, v2
    s_mul_i32 s10, {WAVE}, 14
    v_lshrrev_b32 {VWFL}, 2, {LANE}
    v_min_u32 {VWFL}, 13, {VWFL}
    v_add_u32 {VWFL}, s10, {VWFL}
    v_min_u32 {VWFL}, 53, {VWFL}
    v_lshlrev_b32 {VWFL}, 5, {VWFL}
    v_and_b32 v6, 3, {LANE}
    v_lshl_add_u32 {VWFL}, v6, 2, {VWFL}
    s_and_b32 s10, {XCD}, 1
    s_lshl_b32 s10, s10, 4
    s_add_u32 s10, s10, {WFLAG}
    v_add_u32 {VWFL}, s10, {VWFL}
    s_mul_i32 s10, {WAVE}, 7
    v_min_u32 {VHFL}, 6, {LANE}
    v_add_u32 {VHFL}, s10, {VHFL}
    v_min_u32 {VHFL}, 26, {VHFL}
    v_lshlrev_b32 {VHFL}, 2, {VHFL}
    s_lshl_b32 s10, {TB}, 7
    v_add_u32 {VHFL}, s10, {VHFL}
    v_lshrrev_b32 v6, 3, v0
    v_mul_u32_u24 {VUG}, 40960, v6
    v_and_b32 v7, 7, {LANE}
    v_lshl_add_u32 {VUG}, v7, 4, {VUG}
    v_and_b32 v5, 1, {LANE}
    v_mul_u32_u24 {VUL}, {CHP}, v5
    v_lshl_add_u32 {VUL}, v6, 6, {VUL}
    v_lshrrev_b32 v7, 1, v7
    v_lshl_add_u32 {VUL}, v7, 4, {VUL}
    """.strip().replace("\n", "|").replace("@", "\n").split("|")
    for k in range(4):
        L += [f"s_add_u32 s10, {WAVE}, {k}", "s_and_b32 s10, s10, 3", "s_lshl_b32 s10, s10, 10", f"v_add_u32 {HV[k]}, s10, {L16}"]
    return L


def k_order():
    a(f"s_mul_i32 {WSO}, {WAVE}, {14 * 40960}\ns_mul_i32 {HSO}, {WAVE}, {14 * 4096}")


def pair_addr():
    a(f"""
    s_lshr_b32 s10, {CP}, 5
    s_lshl_b32 s10, s10, 8
    s_add_u32 s10, s10, {UFLAG}
    v_lshl_add_u32 {VUFL}, {LANE}, 2, s10
    s_lshl_b32 {ULO}, {CP}, 7
    s_add_u32 {ULO}, {ULO}, {UT}
    s_mul_i32 {CHB}, {WT}, {CHP}
    s_add_u32 {CHB}, {CHB}, {CPB}
    """)


TW, TR = 58, 62


def kgen_addr():
    return f"""
    s_mul_i32 s10, {WF_}, {L_KO - L_KE}
    s_add_u32 s10, s10, {CHB}
    s_add_u32 s10, s10, {L_KE}
    v_lshl_add_u32 v{TW}, {LANE}, 2, s10
    v_add_u32 v{TW + 1}, {4 * TP}, v{TW}
    v_add_u32 v{TW + 2}, {8 * TP}, v{TW}
    v_add_u32 v{TW + 3}, {12 * TP}, v{TW}
    v_mul_u32_u24 v{TR}, {TP}, {L15}
    v_lshl_add_u32 v{TR}, {G4}, 4, v{TR}
    v_add_u32 v{TR}, s10, v{TR}
    s_lshl_b32 s10, {WF_}, 8
    s_add_u32 s10, s10, {CHB}
    v_lshl_add_u32 v70, {LANE}, 2, s10
    ds_write_b32 v70, {ZERO} offset:{L_U}
    s_mul_i32 s10, {WAVE}, 3072
    s_add_u32 s10, s10, {KCB}
    v_lshrrev_b32 v70, 1, {G4}
    v_and_b32 v71, 1, {G4}
    v_lshlrev_b32 v228, 9, v70
    v_lshl_add_u32 v228, v71, 4, v228
    v_lshl_add_u32 v228, {L15}, 5, v228
    v_add_u32 v228, s10, v228
    v_lshlrev_b32 v73, 8, {G4}
    v_lshlrev_b32 v229, 4, {L15}
    v_lshlrev_b32 v230, 3, {L15}
    v_cmp_gt_u32 vcc, 2, {G4}
    v_add_u32 v231, s10, v73
    v_mov_b32 v78, 0x80
    v_cndmask_b32 v229, v230, v229, vcc
    v_cndmask_b32 v78, v78, 8, vcc
    v_add_u32 v229, v231, v229
    v_add_u32 v230, v229, v78
    v_lshl_add_u32 v231, {L15}, 2, v231
    v_or_b32 v70, {WF_}, {LANE}
    v_cmp_eq_u32 vcc, 0, v70
    v_cndmask_b32 v232, 0, 1.0, vcc
    """.strip().split("\n")


def kgen_sections(PAR=208, sdt='s66', sds='s69'):
    L2E_HI = struct.unpack("<f", struct.pack("<f", 1.4426950408889634))[0]
    L2E_LO = 1.4426950408889634 - L2E_HI
    S = [[]]

    def e(t):
        S[-1].extend(x.strip() for x in t.strip().split("\n"))

    R_, Z8, G1, GC, T1, O1 = 32, 34, 36, 38, 40, 42
    P = lambda k: 44 + 2 * (k - 1)
    RBF, QA, D = 192, [120, 136], [216, 220, 224]
    e(f"s_mov_b32 s12, {f32(L2E_HI)}\ns_mov_b32 s13, {f32(L2E_LO)}")
    e(f"v_mov_b32 v70, {sdt}\nv_lshlrev_b32 v71, 16, v{PAR}")
    for t in ("v_mul_f32 v{a}, s12, v{x}", "v_fma_f32 v{b}, v{x}, s12, -v{a}", "v_exp_f32 v{a}, v{a}", "v_fma_f32 v{b}, v{x}, s13, v{b}",
              "v_mul_f32 v{b}, " + f32(0.6931471805599453) + ", v{b}", "v_fma_f32 v{a}, v{a}, v{b}, v{a}"):
        for i in range(2):
            e(t.format(a=72 + i, b=74 + i, x=70 + i))
    e(f"""
    v_cvt_pk_bf16_f32 v71, v72, v73
    v_lshlrev_b32 v70, 16, v71
    v_and_b32 v71, 0xffff0000, v71
    v_mul_f32 v71, v71, v70
    v_mul_f32 v71, {f32(-1.4426950408889634)}, v71
    v_lshlrev_b32 v72, 16, v{PAR + 1}
    v_mul_f32 v72, v72, v70
    v_mul_f32 v72, 0.15915494, v72
    v_add_f32 v73, v70, v70
    v_lshlrev_b32 v74, 16, v{PAR + 2}
    v_lshlrev_b32 v75, 16, v{PAR + 3}
    v_mul_f32 v{R_}, v74, v73
    v_mul_f32 v{R_ + 1}, -v75, v73
    v_mul_f32 v76, {f32(8.0)}, v71
    v_mul_f32 v77, {f32(128.0)}, v71
    v_mul_f32 v79, {f32(8.0)}, v72
    v_mul_f32 v80, {f32(128.0)}, v72
    v_exp_f32 v76, v76
    v_exp_f32 v77, v77
    v_exp_f32 v78, v71
    v_fract_f32 v79, v79
    v_fract_f32 v80, v80
    v_fract_f32 v81, v72
    v_cos_f32 v82, v79
    v_sin_f32 v83, v79
    v_cos_f32 v84, v80
    v_sin_f32 v85, v80
    v_cos_f32 v86, v81
    v_sin_f32 v87, v81
    v_mul_f32 v{Z8}, v76, v82
    v_mul_f32 v{Z8 + 1}, -v76, v83
    v_mul_f32 v{G1}, v77, v84
    v_mul_f32 v{G1 + 1}, v77, v85
    v_mul_f32 v{P(1)}, v78, v86
    v_mul_f32 v{P(1) + 1}, v78, v87
    """)
    st = {"n": 0}

    def put(row, reg, last=False):
        t = 88 + (st["n"] & 3)
        st["n"] += 1
        e(f"v_mov_b32 v{t}, 0x3f80" if reg is None else f"v_cvt_pk_bf16_f32 v{t}, v{reg}, v{reg + 1}")
        if row & 1:
            e(f"ds_write2_b32 v{TW + row // 4}, v{t - 1}, v{t} offset0:{((row - 1) % 4) * TP // 4} offset1:{(row % 4) * TP // 4}")
        elif last:
            e(f"ds_write_b32 v{TW + row // 4}, v{t} offset:{(row % 4) * TP}")
            st["n"] += 1

    def cm(out, x, y):
        e(f"v_pk_mul_f32 {vr(T1, 2)}, {vr(x, 2)}, {vr(y, 2)} op_sel:[0,0] op_sel_hi:[1,0]")
        e(f"v_pk_fma_f32 {vr(out, 2)}, {vr(x, 2)}, {vr(y, 2)}, {vr(T1, 2)} op_sel:[1,1,0] op_sel_hi:[0,1,1] neg_lo:[1,0,0]")

    def rd(base):
        for ks in range(4):
            e(f"ds_read_b128 {vr(base + 4 * ks, 4)}, v{TR} offset:{64 * ks}")

    def mm(d, q, zero):
        for ks in range(4):
            e(f"v_mfma_f32_16x16x32_bf16 {vr(d, 4)}, {vr(q + 4 * ks, 4)}, {vr(RBF + 4 * ks, 4)}, {'0' if (zero and ks == 0) else vr(d, 4)}")

    S.append([])
    for x in range(16):
        put(x, R_)
        if x < 15:
            cm(R_, R_, Z8)
    rd(RBF)
    S.append([])
    put(0, None)
    for k in range(1, 8):
        put(k, P(k))
        if k < 7:
            cm(P(k + 1), P(k), P(1))
    put(8, G1)
    cm(GC, G1, G1)
    for k in range(1, 8):
        cm(O1, G1, P(k))
        put(8 + k, O1)
    S.append([])
    rd(QA[0])
    row = 0
    for i in range(2, 8):
        put(row, GC)
        row += 1
        for k in ((2, 4, 6) if i < 4 else (4,)):
            cm(O1, GC, P(k))
            put(row, O1)
            row += 1
        cm(GC, GC, G1)
        if i == 3:
            e(f"v_mul_f32 v{D[0]}, {sds}, v232\nv_mov_b32 v{D[0] + 1}, 0\nv_mov_b32 v{D[0] + 2}, 0\nv_mov_b32 v{D[0] + 3}, 0\ns_waitcnt lgkmcnt(4)")
            mm(D[0], QA[0], False)
    S.append([])
    rd(QA[1])
    for i in range(8, 17):
        put(i - 8, GC, last=(i == 16))
        if i < 16:
            cm(GC, GC, G1)
    rd(QA[0])
    e(f"ds_write_b128 v228, {vr(D[0], 4)}\ns_waitcnt lgkmcnt(10)")
    mm(D[1], QA[1], True)
    S.append([])
    e("s_waitcnt lgkmcnt(0)")
    mm(D[2], QA[0], True)
    e(f"ds_write_b64 v229, {vr(D[1], 2)} offset:1024\nds_write_b64 v230, {vr(D[1] + 2, 2)} offset:1024")
    for j in range(4):
        e(f"ds_write_b32 v231, v{D[2] + j} offset:{2048 + 64 * j}")
    return S


def emit_mixed(vm, lines, ops, every):
    for n, l in enumerate(lines):
        a(l)
        if ops and n % every == every - 1:
            emit_op(vm, ops.pop(0))


def expansion(between=None):
    E = {3: 36, 2: 36, 1: 40, 0: 44}
    F = {3: 52, 2: 52, 1: 56, 0: 192}
    l1, l2, l3, l4 = (a.newlabel("Le") for _ in range(4))
    a(f"""
    s_mul_i32 s10, {WT}, 6144
    s_add_u32 s10, s10, {KCB}
    v_sub_u32 v32, 63, {LANE}
    v_lshl_add_u32 v33, v32, 3, s10
    s_cmp_eq_u32 {WF_}, 1
    s_cbranch_scc1 {l1}
    """)

    def rd3(s, idx):
        for h, R in enumerate((E, F)):
            a(f"ds_read_b64 {vr(R[s], 2)}, v33 offset:{3072 * h + 4 * idx}\nds_read_b32 v{R[s] + 2}, v33 offset:{3072 * h + 4 * idx + 8}")

    rd3(3, 512)
    a(f"s_branch {l2}\n{l1}:\nv_lshl_add_u32 v34, v32, 4, s10")
    rd3(2, 384)
    rd3(1, 256)
    for h, R in enumerate((E, F)):
        a(f"ds_read_b128 {vr(R[0], 4)}, v34 offset:{3072 * h}\nds_read_b32 v{R[0] + 4}, v34 offset:{3072 * h + 16}")
    a(f"{l2}:")
    if between:
        between()
    a(f"s_cmp_eq_u32 {WF_}, 1\ns_cbranch_scc1 {l3}\nv_lshl_add_u32 v32, {LANE}, 5, {CHB}\ns_waitcnt lgkmcnt(0)")

    def add3(s):
        a(f"v_pk_add_f32 {vr(E[s], 2)}, {vr(E[s], 2)}, {vr(F[s], 2)}\nv_add_f32 v{E[s] + 2}, v{E[s] + 2}, v{F[s] + 2}")

    def pack(s, l0, Bn, step, sh, t):
        val = lambda x: E[s] + (bf16_round_int(l0 + 64 + x) - (l0 + 64)) // step
        for m in range(Bn // 2):
            a(f"v_cvt_pk_bf16_f32 v{t + m}, v{val(Bn - sh - 2 * m)}, v{val(Bn - sh - 1 - 2 * m)}")

    add3(3)
    for sh, base in ((0, L_KE), (1, L_KO)):
        t = 192 + 8 * sh
        pack(3, 1024, 16, 8, sh, t)
        a(f"ds_write_b128 v32, {vr(t, 4)} offset:{base}\nds_write_b128 v32, {vr(t + 4, 4)} offset:{base + 16}")
    a(f"""
    s_branch {l4}
    {l3}:
    v_lshl_add_u32 v33, {LANE}, 4, {CHB}
    v_lshl_add_u32 v34, {LANE}, 3, {CHB}
    v_lshl_add_u32 v35, v32, 2, {CHB}
    v_cmp_eq_u32 vcc, 63, {LANE}
    s_waitcnt lgkmcnt(0)
    """)
    add3(2)
    add3(1)
    a(f"v_pk_add_f32 {vr(E[0], 2)}, {vr(E[0], 2)}, {vr(F[0], 2)}\nv_pk_add_f32 {vr(E[0] + 2, 2)}, {vr(E[0] + 2, 2)}, {vr(F[0] + 2, 2)}\nv_add_f32 v{E[0] + 4}, v{E[0] + 4}, v{F[0] + 4}")
    for sh, base in ((0, L_KE), (1, L_KO)):
        t = 192 + 8 * sh
        pack(2, 512, 8, 4, sh, t)
        pack(1, 256, 4, 2, sh, t + 4)
        pack(0, 0, 4, 1, sh, t + 6)
        a(f"ds_write_b128 v33, {vr(t, 4)} offset:{base + 2048}\nds_write_b64 v34, {vr(t + 4, 2)} offset:{base + 3072}\nds_write_b64 v34, {vr(t + 6, 2)} offset:{base + 3584}")
    a(f"""
    v_cvt_pk_bf16_f32 v208, v{E[0]}, {ZERO}
    v_cndmask_b32 v208, 0, v208, vcc
    ds_write_b32 v35, {ZERO} offset:{L_KO + 4096}
    ds_write_b32 v35, v208 offset:{L_KE + 4096}
    {l4}:
    """)


WSLOT = [vr(4 * i, 4, "a") for i in range(64)] + [vr(224 + 4 * i, 4) for i in range(6)]


def wload_ops():
    L = []
    for i in range(14):
        for dt in range(5):
            post = f"s_add_u32 {WSO}, {WSO}, 40960" if dt == 4 else None
            L.append((f"buffer_load_dwordx4 {WSLOT[5 * i + dt]}, {'v4' if dt == 4 else 'v2'}, {SRDC}, {WSO} offen offset:{1024 * (dt & 3)} sc1", f"W{i}", post))
    return L


def emit_op(vm, op):
    vm.issue(op[1], op[0])
    if op[2]:
        a(op[2])


def uload_ops():
    return [(f"buffer_load_dwordx4 {vr(24 + 4 * n, 4)}, {VUG}, {WSRD}, {ULO} offen sc1", "u",
             f"s_add_u32 {ULO}, {ULO}, {32 * 40960}" if n == 0 else None) for n in range(2)]


def opt_int(name, default):
    for x in OPT:
        if x.startswith(name + "="):
            return int(x.split("=")[1])
    return default


NEARLY = opt_int("nearly", 26)
NGAP = opt_int("ngap", 70 - NEARLY)
WTAIL = opt_int("wtail", 0)
LOOKAT, CHECKAT = 11, 13
HP = opt_int('hp', 0)

def prep_block(vm):
    a("s_lshr_b32 s10, s2, 6\ns_cmp_eq_u32 s10, 2\ns_cbranch_scc1 L_a_gate2")
    for aa in range(5):
        a(f"ds_read_b64_tr_b16 {vr(100 + 4 * aa, 2)}, v234 offset:{128 * aa}\nds_read_b64_tr_b16 {vr(102 + 4 * aa, 2)}, v234 offset:{128 * aa + 10240}")
    for aa in range(5):
        a(f"s_waitcnt lgkmcnt({8 - 2 * aa})\ns_mov_b32 s10, {OOB if ('now2' in OPT or 'now2st' in OPT) else 4096 * aa}")
        a(f"buffer_store_dwordx4 {vr(100 + 4 * aa, 4)}, {VPS}, {WSRD}, s10 offen sc1")
    a("s_branch L_a_join2\nL_a_gate2:")
    gate_finish(vm)
    a("L_a_join2:")


vmA = VM(a)
a(f"""
s_mov_b32 {CP}, s2
s_mov_b32 {CPB}, {CB}
s_lshl_b32 s10, {CP}, 9
v_lshl_add_u32 v68, v0, 1, s10
s_lshl_b32 s69, {CP}, 2
""")
g1_setup_a()
a("s_waitcnt lgkmcnt(0)" + WSHIFT)
param_loads(vmA)
a(f"s_load_dword s66, {LDT}, s69\ns_load_dword s69, {DSK}, s69")
g1_setup_b()
a(f"""
s_mov_b32 s44, s42
s_mov_b32 s45, s43
s_mov_b32 s30, s16
s_mov_b32 s31, s17
s_lshl_b32 s{XS}, {D0}, 7
s_mul_i32 s{WSS}, {D0}, {64 * 3456}
""")
emit_dma(vmA, dmax(0))
tlb_touch()
stamp(7)
srd(56, 34, 35, None, 0 if "now2" in OPT else 1728 * 1280)
a("s_lshr_b32 s10, s2, 6\ns_cmp_eq_u32 s10, 2\ns_cbranch_scc1 L_a_gate")
a(f"""
s_cmp_lg_u32 {J}, 15
s_cbranch_scc1 L_a_notag
s_cmp_lg_u32 {WAVE}, 0
s_cbranch_scc1 L_a_notag
s_memrealtime s[12:13]
s_waitcnt lgkmcnt(0)
{"s_mov_b32 s12, s100" if "entryclk" in OPT else ""}
s_or_b32 s12, s12, 1
v_mov_b32 v40, s12
v_mov_b32 v41, 0
s_mov_b64 exec, 1
global_atomic_cmpswap {ZERO}, v[40:41], {DBG} sc1
s_mov_b64 exec, -1
L_a_notag:
""")
a(f"""
s_lshr_b32 s9, s2, 1
s_mul_i32 s9, s9, 40960
s_and_b32 s12, s2, 1
s_mul_i32 s13, s12, 640
s_add_u32 s13, s13, s9
s_mul_i32 s10, {WAVE}, 10240
s_add_u32 s13, s13, s10
v_lshrrev_b32 v7, 3, {LANE}
""")
for m in range(5):
    a(f"""
    v_add_u32 v42, {8 * m}, v7
    v_mul_u32_u24 v42, 13, v42
    v_lshrrev_b32 v42, 6, v42
    v_and_b32 v43, 6, v42
    v_xor_b32 v43, v43, {LANE}
    v_mul_u32_u24 v42, 640, v42
    v_lshl_add_u32 v42, v43, 4, v42
    v_add_u32 v{92 + m}, s13, v42
    """)
a(f"""
v_add_u32 v96, 4096, v96
s_mul_i32 s10, {WAVE}, 5120
s_add_u32 s10, s10, {L_W2}
""")
q0 = list(vmA.q)
for m in range(5):
    a(f"s_add_u32 m0, s10, {4096 if m == 4 else 0}")
    vmA.issue("pre", f"buffer_load_dwordx4 v{92 + m}, {SRDC}, 0 offen offset:{1024 * (m & 3)} nt lds")
a(f"""
s_mul_i32 s12, s12, 20480
s_add_u32 s12, s12, s9
s_add_u32 s12, s12, {W2F}
s_lshl_b32 s10, {WAVE}, 10
s_add_u32 s12, s12, s10
s_cmp_lt_u32 s2, 108
s_cselect_b32 s10, 0, {OOB}
v_mov_b32 {VPF}, s10
s_add_u32 s12, s12, s10
v_add_u32 {VPS}, s12, {L16}
s_lshl_b32 {PF2}, s2, 4
s_lshl_b32 s10, {WAVE}, 2
s_add_u32 {PF2}, {PF2}, s10
s_add_u32 {PF2}, {PF2}, {WFLAG}
v_lshrrev_b32 v40, 2, {LANE}
v_mul_u32_u24 v234, 640, v40
v_bfe_u32 v40, {LANE}, 3, 2
v_xor_b32 v40, {WAVE}, v40
v_lshl_add_u32 v234, v40, 5, v234
v_and_b32 v40, 3, {LANE}
v_lshl_add_u32 v234, v40, 3, v234
v_add_u32 v234, {L_W2}, v234
s_branch L_a_join
L_a_gate:
""")
gate_addr()
vmA.q = q0
gate_loads(vmA)
a("L_a_join:")
a(f"s_mov_b32 {KCB}, {L_KC}\ns_mul_i32 {CHB}, {WT}, {CHP}\ns_add_u32 {CHB}, {CHB}, {CPB}")
for l in kgen_addr():
    a(l)
for D in range(1, 10):
    for l in soff(D):
        a(l)
g1_setup_c()
for l in late_addr():
    a(l)
a(f"""
s_lshl_b32 s10, {WT}, 4
s_waitcnt lgkmcnt(0)
s_lshr_b32 s66, s66, s10
s_lshl_b32 s66, s66, 16
s_lshr_b32 s69, s69, s10
s_lshl_b32 s69, s69, 16
""")
KS = kgen_sections()
vmA.wait("par")
stamp(8)
pend = dmaw(0) + dmaw(1) + dmax(1) + dmaw(2) + dmaw(3) + dmax(2) + dmaw(4) + dmaw(5)
for n, sec in enumerate(KS):
    for l in sec:
        a(l)
    emit_dma(vmA, pend[:4])
    pend = pend[4:]
    if n == 1:
        ut_step(vmA, 72)
    if n == 3:
        vmA.wait("pre", "ut")
        a("s_barrier")
        get_tag()
        flag_store(vmA, UFO, VUT)
        prep_block(vmA)
assert not pend
srd(56, 42, 43, W2F, 54 * 40960); k_order()
pair_addr()
if "expre" in OPT:
    a("s_waitcnt lgkmcnt(0)\ns_barrier")
    expansion()
stamp(9)


def gemm1(vm):
    a("L_g1_loop:")
    ACC = 64
    WF, XF = [128, 160], [144, 176]

    def reads(ks):
        s = ks & 1
        L = []
        for i in range(4):
            L.append(f"ds_read_b128 {vr(XF[s] + 4 * i, 4)}, v{VXR[s]} offset:{XB + ((ks >> 1) % 3) * 16384 + 2048 * i}")
            L.append(f"ds_read_b64_tr_b16 {vr(WF[s] + 4 * i, 2)}, v{VWR[i]} offset:{(ks % NWS) * 8192}")
            L.append(f"ds_read_b64_tr_b16 {vr(WF[s] + 4 * i + 2, 2)}, v{VWR[i]} offset:{(ks % NWS) * 8192 + 1024}")
        return L

    vm.wait("x0", "w0", "pre", "ut", extra="lgkmcnt(0)")
    a("s_barrier")
    stamp(1)
    for l in reads(0):
        a(l)
    misc = []
    ops = uload_ops() + wload_ops()[:NEARLY]
    for ks in range(20):
        s = ks & 1
        B2 = "bar2" in OPT
        if B2 and ks % 2 == 0 and ks > 0:
            vm.wait(*(["look"] if ks == CHECKAT else []), extra="lgkmcnt(0)")
        elif ks < 19:
            vm.wait(f"x{(ks + 1) >> 1}", f"w{ks + 1}", *([f"w{ks + 2}"] if B2 and ks else []), *(["look"] if ks == CHECKAT else []), *(["pst"] if ks == 0 else []), extra="lgkmcnt(0)")
            a("s_barrier")
        else:
            a("s_waitcnt lgkmcnt(0)")
        if ks in (5, 10, 15) and "g2st" not in OPT and "cvst" not in OPT:
            stamp(9 + ks // 5)
        if ks == 0:
            flag_store(vm, PF2, VPF)
        if ks == CHECKAT:
            poll(VWFL, LOOK1, first_issued=True)
            poll(VUFL, LOOK2, first_issued=True)
        rd_ = reads(ks + 1) if ks < 19 else []
        dm = []
        kw = ks + NWS - (1 if B2 else 0)
        if kw < 20 and kw >= NWS:
            dm += dmaw(kw)
        if ks >= 1:
            D = (ks - 1) // 2 + 3
            if D < 10:
                dm += dmax(D, (0, 1) if ks & 1 else (2, 3))
        n = 0
        for ft in range(4):
            for tt in range(4):
                d = vr(ACC + 16 * ft + 4 * tt, 4)
                slot = n % 4 == 1 if ks < 15 else n % 3 == 1
                g = dm.pop(0) if (dm and slot) else None
                if g:
                    a(g[0])
                a(f"v_mfma_f32_16x16x32_bf16 {d}, {vr(WF[s] + 4 * ft, 4)}, {vr(XF[s] + 4 * tt, 4)}, {'0' if ks == 0 else d}")
                if g:
                    vm.issue(g[2], g[1])
                elif ks >= CHECKAT and ops and (slot or ks == 19):
                    emit_op(vm, ops.pop(0))
                elif rd_:
                    a(rd_.pop(0))
                    if rd_ and n % 4 == 2:
                        a(rd_.pop(0))
                elif misc:
                    for _ in range(2):
                        if misc:
                            a(misc.pop(0))
                if ks == LOOKAT and n == 15:
                    assert not misc
                    vm.issue("look", f"buffer_load_dword {LOOK1}, {VWFL}, {WSRD}, 0 offen sc1")
                    vm.issue("look", f"buffer_load_dword {LOOK2}, {VUFL}, {WSRD}, 0 offen sc1")
                n += 1
        assert not dm and not rd_
    assert not ops
    stamp(2)


def h_publish(vm=vmA, ACC=64):
    a(f"""
    s_lshl_b32 {RB}, {RB}, 1
    s_add_u32 {RB}, {RB}, {WT}
    s_lshl_b32 {CT}, {CT}, 1
    s_add_u32 {CT}, {CT}, {WF_}
    s_mul_i32 s16, {RB}, {54 * 4096}
    s_lshl_b32 s10, {CT}, 13
    s_add_u32 s16, s16, s10
    s_add_u32 s16, s16, {HF}
    s_add_u32 s17, s16, 4096
    s_lshl_b32 {HFO}, {RB}, 7
    s_lshl_b32 s10, {CT}, 2
    s_add_u32 {HFO}, {HFO}, s10
    s_cmp_lt_u32 {CT}, 27
    s_cselect_b32 s10, 0, {OOB}
    v_add_u32 {VUT}, s10, {L16}
    """)
    t = 160
    for m in range(2):
        for tt in range(4):
            for h in range(2):
                r = ACC + 16 * (2 * m + h) + 4 * tt
                a(f"v_cvt_pk_bf16_f32 v{t + 2 * h}, v{r}, v{r + 1}\nv_cvt_pk_bf16_f32 v{t + 2 * h + 1}, v{r + 2}, v{r + 3}")
            for k in range(4):
                a(f"v_pk_max_i16 v{t + k}, v{t + k}, 0")
            vm.issue("hst", f"buffer_store_dwordx4 {vr(t, 4)}, {VUT}, {WSRD}, s{16 + m} offen offset:{1024 * tt} sc1")
            t += 4


gemm1(vmA)
gops = wload_ops()[NEARLY:NEARLY + NGAP]
if "expre" in OPT:
    h_publish()
else:
    expansion(h_publish)
for _ in range(6):
    emit_op(vmA, gops.pop(0))

HSLOT = [192, 208, 88, 104, 120, 136]
NH = 6


def hload(vm, i, k):
    vm.issue(f"h{i}_{k}", f"buffer_load_dwordx4 {vr(HSLOT[i % NH] + 4 * k, 4)}, {HV[k]}, {SRDB}, s{22 + i} offen sc1")


ROWS = [[(i, k) for k in range(4)] for i in range(11)]
g_ = [(i, k) for k in (1, 2, 3, 0) for i in range(11, 14)]
ROWS += [g_[0:4], g_[4:8], g_[8:12]]
HORDER = [x for r in ROWS for x in r]


def conv(vm, ops, rounds):
    main = rounds == 1
    if main:
        a(f"v_add_u32 v17, {CPB}, {VUL}")
        vm.wait("u")
        for n in range(2):
            a(f"ds_write_b128 v17, {vr(24 + 4 * n, 4)} offset:{L_U + 512 + 2048 * n}")
    a(f"""
    s_lshl_b32 s10, {WF_}, 6
    s_sub_u32 s10, {CHB}, s10
    v_and_b32 v19, 1, {L15}
    v_mul_u32_u24 v19, {L_KO - 2 - L_KE}, v19
    v_lshl_add_u32 v19, {G4}, 4, v19
    v_lshlrev_b32 v18, 1, {L15}
    v_sub_u32 v19, v19, v18
    v_add_u32 v19, s10, v19
    v_add_u32 v20, {L_KE + 4064 - 512}, v19
    v_add_u32 v21, {L_KE + 4064 - 512 * 3}, v19
    v_add_u32 v22, {L_KE + 4064 - 512 * 5}, v19
    v_add_u32 v23, {L_KE + 4064 - 512 * 7}, v19
    v_lshlrev_b32 v19, 5, {L15}
    v_lshl_add_u32 v19, {G4}, 4, v19
    v_add_u32 v19, s10, v19
    v_add_u32 v19, {L_U + 480}, v19
    s_waitcnt lgkmcnt(0)
    s_barrier
    """)
    stamp(3)
    ACCS = [32, 192]
    AS, BS = [64, 128], [96, 160]

    def loads(g):
        s = g & 1
        L = []
        for m in range(8):
            L.append(f"ds_read_b128 {vr(BS[s] + 4 * m, 4)}, v19 offset:{512 * m}")
        for q in range(8):
            o = 128 if q % 2 == 0 else 0
            r = AS[s] + 4 * q
            L.append(f"ds_read2_b32 {vr(r, 2)}, v{20 + q // 2} offset0:{o} offset1:{o + 1}")
            L.append(f"ds_read2_b32 {vr(r + 2, 2)}, v{20 + q // 2} offset0:{o + 2} offset1:{o + 3}")
        for r in range(19, 24):
            L.append(f"v_add_u32 v{r}, {2 * CHP + 384}, v{r}" if g % 4 == 3 else f"v_subrev_u32 v{r}, 128, v{r}")
        return L

    def send(ACC):
        l1, l2 = a.newlabel("Lx"), a.newlabel("Lx")
        a(f"s_cmp_eq_u32 {WF_}, 1\ns_cbranch_scc1 {l1}\ns_nop 5")
        for j in range(4):
            a(f"ds_write_b128 v17, {vr(ACC + 16 + 4 * j, 4)} offset:{1024 * j}")
        a(f"s_branch {l2}\n{l1}:\ns_nop 5")
        for j in range(4):
            a(f"ds_write_b128 v17, {vr(ACC + 4 * j, 4)} offset:{1024 * j}")
        a(f"{l2}:")

    def recv(ACC):
        l1, l2 = a.newlabel("Lx"), a.newlabel("Lx")
        a(f"s_cmp_eq_u32 {WF_}, 1\ns_cbranch_scc1 {l1}")
        for j in range(4):
            a(f"ds_read_b128 {vr(ACC + 16 + 4 * j, 4)}, v18 offset:{1024 * j}")
        a(f"s_branch {l2}\n{l1}:")
        for j in range(4):
            a(f"ds_read_b128 {vr(ACC + 4 * j, 4)}, v18 offset:{1024 * j}")
        a(f"{l2}:")

    def out_lines(ACC):
        L = []
        for j in range(4):
            L += [f"v_pk_add_f32 {vr(ACC + 4 * j, 2)}, {vr(ACC + 4 * j, 2)}, {vr(ACC + 16 + 4 * j, 2)}",
                  f"v_pk_add_f32 {vr(ACC + 4 * j + 2, 2)}, {vr(ACC + 4 * j + 2, 2)}, {vr(ACC + 18 + 4 * j, 2)}",
                  f"v_cvt_pk_bf16_f32 v{24 + 2 * j}, v{ACC + 4 * j}, v{ACC + 4 * j + 1}", f"v_cvt_pk_bf16_f32 v{25 + 2 * j}, v{ACC + 4 * j + 2}, v{ACC + 4 * j + 3}"]
        for jp in range(2):
            L += [f"v_permlane16_swap_b32 v{24 + 4 * jp}, v{26 + 4 * jp}", f"v_permlane16_swap_b32 v{25 + 4 * jp}, v{27 + 4 * jp}"]
        return L

    def out_store():
        for jp in range(2):
            vm.issue("ast", f"buffer_store_dwordx4 {vr(24 + 4 * jp, 4)}, {VPS}, {WSRD}, s16 offen offset:{1024 * jp} sc1")

    for l in loads(0):
        a(l)
    misc = f"""
    s_lshl_b32 s10, {WAVE}, 12
    s_add_u32 s10, s10, {L_W2}
    v_add_u32 v17, s10, {L16}
    s_xor_b32 s10, {WAVE}, 1
    s_lshl_b32 s10, s10, 12
    s_add_u32 s10, s10, {L_W2}
    v_add_u32 v18, s10, {L16}
    v_lshlrev_b32 {VPS}, 5, {L15}
    v_lshrrev_b32 {VPF}, 1, {G4}
    v_lshl_add_u32 {VPS}, {VPF}, 4, {VPS}
    v_and_b32 {VPF}, 1, {G4}
    v_lshl_add_u32 {VPS}, {VPF}, 9, {VPS}
    s_lshl_b32 s16, {CP}, 13
    s_add_u32 s16, s16, {W2K}
    s_add_u32 s16, s16, {AG}
    s_mul_i32 {PFO}, {WF_}, 2560
    s_lshl_b32 s10, {CP}, 3
    s_add_u32 {PFO}, {PFO}, s10
    s_lshl_b32 s10, {WT}, 2
    s_add_u32 {PFO}, {PFO}, s10
    s_add_u32 {PFO}, {PFO}, {AFLAG}
    """.strip().split("\n")
    tail_ops = [ops.pop() for _ in range(WTAIL if main else 0)][::-1]
    every = max(3, 130 // max(1, len(ops))) if main else 4
    for g in range(4 * rounds):
        r, p, s = g // 4, g % 4, g & 1
        ACC = ACCS[r & 1]
        nxt = loads(g + 1) if g + 1 < 4 * rounds else []
        a("s_waitcnt lgkmcnt(0)")
        if "phases" in OPT:
            stamp(g + 1, True)
        extra = []
        if main and "cvst" in OPT and p == HP:
            stamp(10)
        if main and p == HP:
            vm.wait("hst")
            flag_store(vm, HFO, VUT)
        if main and "cvst" in OPT and p == HP:
            stamp(11)
        if main and "cvst" in OPT and p == 3:
            stamp(12)
        if not main and "cvst" in OPT and g in (4, 8):
            stamp(10 + g // 4)
        if r > 0 and p == 1:
            a("s_barrier")
            recv(ACCS[(r - 1) & 1])
        if r > 0 and p == 2:
            a("s_barrier")
            extra = out_lines(ACCS[(r - 1) & 1])
        if r > 0 and p == 3:
            out_store()
            a("s_add_u32 s16, s16, 8192")
        if r > 1 and p == 1:
            vm.wait("ast")
            flag_store(vm, PFO, ZERO)
            a(f"s_add_u32 {PFO}, {PFO}, 8")
        if not main and g == 3:
            vm.wait("look")
            poll(VWFL, LOOK1, first_issued=True, nap=8)
        n = 0
        for q in range(8):
            for j in range(q, 8):
                c = "0" if (p == 0 and q == 0) else vr(ACC + 4 * j, 4)
                a(f"v_mfma_f32_16x16x32_bf16 {vr(ACC + 4 * j, 4)}, {vr(AS[s] + 4 * q, 4)}, {vr(BS[s] + 4 * (j - q), 4)}, {c}")
                isop = ops and n % every == every - 1 and (main or g >= 3)
                if isop:
                    emit_op(vm, ops.pop(0))
                if "share" in OPT:
                    if nxt:
                        a(nxt.pop(0))
                    if not isop:
                        if extra:
                            a(extra.pop(0))
                        elif misc:
                            a(misc.pop(0))
                elif not isop:
                    if nxt:
                        a(nxt.pop(0))
                        if nxt and len(nxt) > (35 - n) * (every - 1) // every - 1:
                            a(nxt.pop(0))
                        elif extra:
                            a(extra.pop(0))
                    else:
                        for _ in range(2):
                            if extra:
                                a(extra.pop(0))
                            elif misc:
                                a(misc.pop(0))
                if not main and g == 1 and n == 30:
                    vm.issue("look", f"buffer_load_dword {LOOK1}, {VWFL}, {WSRD}, 0 offen sc1")
                if g == 4 * rounds - 1 and n == 30:
                    vm.issue("look", f"buffer_load_dword {LOOK1}, {VHFL}, {WSRD}, 0 offen sc1")
                n += 1
        for l in nxt + extra + (misc if p == 2 else []):
            a(l)
        if p == 2:
            misc = []
        if p == 3:
            if g == 4 * rounds - 1:
                stamp(4)
            send(ACC)
            if g == 4 * rounds - 1:
                for op in tail_ops:
                    emit_op(vm, op)
    assert not misc and not ops
    if not main:
        vm.wait("ast")
        flag_store(vm, PFO, ZERO)
        a(f"s_add_u32 {PFO}, {PFO}, 8")
    a("s_waitcnt lgkmcnt(0)\ns_barrier")
    recv(ACCS[0])
    a("s_waitcnt lgkmcnt(0)")
    for l in out_lines(ACCS[0]):
        a(l)
    out_store()


conv(vmA, gops, 1)
q_g2 = list(vmA.q)
a("L_gemm2:")


def gemm2(vm):
    a(f"s_mul_i32 s10, {TB}, {54 * 4096}\ns_add_u32 s10, s10, {HF}")
    srd(52, 42, 43, "s10", 54 * 4096)
    for i in range(3):
        a(f"s_add_u32 s{22 + i}, {HSO}, {4096 * i}")
    vm.wait("look")
    poll(VHFL, LOOK1, first_issued=True)
    stamp(5)
    hq = list(HORDER)
    LEAD = opt_int("lead", 12)
    for n in range(LEAD):
        hload(vm, *hq.pop(0))
    wrest = wload_ops()[NEARLY + NGAP:]
    ACC = 8
    X, Y = 152, 172
    XW = Y + 12
    GA, AR, PR = 192, X + 8, 88
    for i in range(3, 14):
        a(f"s_add_u32 s{22 + i}, {HSO}, {4096 * i}")
    a(f"""
    s_mul_i32 s18, {WAVE}, 20480
    v_add_u32 v{XW}, s18, {L16}
    """)
    for k in range(1, 4):
        a(f"s_sub_u32 s10, {WAVE}, {k}\ns_and_b32 s10, s10, 3\ns_mul_i32 s10, s10, 20480\nv_add_u32 v{XW + k}, s10, {L16}")
    a(f"""
    s_lshr_b32 s10, {TB}, 4
    s_mul_i32 s10, s10, 2560
    s_mul_i32 s16, {CS}, 320
    s_add_u32 s10, s10, s16
    s_add_u32 s10, s10, {AFLAG}
    v_lshl_add_u32 v{X + 5}, {LANE}, 3, s10
    s_lshl_b32 s10, {TB}, 2
    s_add_u32 s10, s10, {WAVE}
    s_lshl_b32 s10, s10, 3
    s_add_u32 s10, s10, {GFLAG}
    v_mov_b32 v{X + 6}, s10
    v_cmp_gt_u32 vcc, 40, {LANE}
    v_lshrrev_b32 v{X + 2}, 5, {LANE}
    v_bfe_u32 v{X + 3}, {LANE}, 3, 2
    v_cndmask_b32 v{X + 5}, v{X + 6}, v{X + 5}, vcc
    v_lshl_add_u32 v{X + 2}, v{X + 2}, 4, v{X + 3}
    v_and_b32 v{X + 3}, 7, {LANE}
    v_lshlrev_b32 v{X + 2}, 12, v{X + 2}
    v_lshl_add_u32 v{X + 2}, v{X + 3}, 4, v{X + 2}
    s_mul_i32 s16, {CS}, {80 * 4096}
    s_lshl_b32 s10, {TB}, 7
    s_add_u32 s16, s16, s10
    s_add_u32 s16, s16, {AG}
    s_lshl_b32 s17, {TB}, 8
    s_lshl_b32 s10, {WAVE}, 6
    s_add_u32 s17, s17, s10
    s_add_u32 s17, s17, {G_OFF}
    v_lshlrev_b32 v{X + 3}, 2, {L15}
    s_lshl_b32 s20, {WAVE}, 14
    s_lshl_b32 s19, {TB}, 6
    s_lshl_b32 s10, {WAVE}, 4
    s_add_u32 s19, s19, s10
    s_mul_i32 s19, s19, 1280
    s_mul_i32 s10, {CS}, 160
    s_add_u32 s19, s19, s10
    s_mov_b32 s48, s38
    s_mov_b32 s49, s39
    s_mov_b32 s50, {2048 * 1280}
    s_mov_b32 s51, 0x20000
    s_add_u32 s21, s18, 17920
    v_mul_u32_u24 v{Y + 4}, 160, {L15}
    v_lshl_add_u32 v{Y + 4}, {G4}, 3, v{Y + 4}
    v_add_u32 v{Y + 4}, s21, v{Y + 4}
    v_mul_u32_u24 v{Y + 5}, 20480, {G4}
    v_bfe_u32 v{Y + 6}, {LANE}, 2, 2
    v_lshl_add_u32 v{Y + 5}, v{Y + 6}, 7, v{Y + 5}
    v_and_b32 v{Y + 6}, 3, {LANE}
    v_lshl_add_u32 v{Y + 5}, v{Y + 6}, 3, v{Y + 5}
    s_lshl_b32 s10, {WAVE}, 5
    s_add_u32 s10, s10, 15360
    v_add_u32 v{Y + 5}, s10, v{Y + 5}
    """)
    for n in range(3):
        q, r_, ga = Y + 6, Y + 7, Y + 8 + n
        a(f"v_add_u32 v{q}, {64 * n}, {LANE}\nv_mul_u32_u24 v{r_}, 205, v{q}\nv_lshrrev_b32 v{r_}, 11, v{r_}\nv_mul_u32_u24 v{r_}, 1120, v{r_}\nv_lshl_add_u32 v{ga}, v{q}, 4, v{r_}")
    vm.wait("ast")
    flag_store(vm, PFO, ZERO)
    done = set()
    wq = []
    ALOOK, ACHK = opt_int("alook", 8), opt_int("achk", 11)
    for i, rw in enumerate(ROWS):
        if 1 <= i <= 12 and 'phases' not in OPT:
            stamp(i, True)
        if i == ALOOK:
            vm.issue("look", f"buffer_load_dwordx2 {vr(X + 6, 2)}, v{X + 5}, {WSRD}, 0 offen sc1")
        if i == ACHK:
            assert not wrest
            vm.wait("look")
            lab = a.newlabel("La")
            a(f"v_cmp_ne_u32 vcc, {TAG}, v{X + 6}\nv_cmp_ne_u32 s[12:13], {TAG}, v{X + 7}\ns_or_b64 vcc, vcc, s[12:13]\ns_cbranch_scc0 {lab}")
            poll(f"v{X + 5}", f"v{X + 6}")
            a(f"v_add_u32 v{X + 5}, 4, v{X + 5}")
            poll(f"v{X + 5}", f"v{X + 6}")
            a(f"{lab}:\ns_add_u32 s56, s42, s16\ns_addc_u32 s57, s43, 0\ns_mov_b32 s58, {80 * 4096 - 3968}")
            wrest = [(f"s_add_u32 m0, s18, {15360 + 1024 * m}\ns_nop 0\nbuffer_load_dwordx4 v{X + 2}, {SRDC}, s20 offen sc1 lds", "ag", f"s_add_u32 s20, s20, {32 * 4096}") for m in range(3)]
            wrest += [(f"buffer_load_dword v{X + 4}, v{X + 3}, {WSRD}, s17 offen sc1", "ag", None)]
        n = 0
        for (x, k) in rw:
            vm.wait(f"h{x}_{k}", f"W{x}")
            for dt in range(5):
                d = vr(ACC + 20 * k + 4 * dt, 4)
                a(f"v_mfma_f32_16x16x32_bf16 {d}, {WSLOT[5 * x + dt]}, {vr(HSLOT[x % NH] + 4 * k, 4)}, {'0' if x == 0 else d}")
                if wq and wq[0][0] <= 20 * i + n:
                    a(wq.pop(0)[1])
                if dt == 4:
                    done.add((x, k))
                if dt == 2 and hq and (hq[0][0] < NH or (hq[0][0] - NH, hq[0][1]) in done):
                    hload(vm, *hq.pop(0))
                elif dt == 0 and wrest:
                    emit_op(vm, wrest.pop(0))
                n += 1
            if x == 13 and k:
                wq += [(20 * i + n + 1 + 3 * dt, f"ds_write_b128 v{XW}, {vr(ACC + 20 * k + 4 * dt, 4)} offset:{5120 * (k - 1) + 1024 * dt}") for dt in range(5)]
    for _, w in wq:
        a(w)
    assert not hq and not wrest
    stamp(6)
    a(f"""
    s_waitcnt vmcnt(0) lgkmcnt(0)
    s_barrier
    """)
    for dt in range(5):
        a(f"ds_read_b64_tr_b16 {vr(AR + 2 * dt, 2)}, v{Y + 5} offset:{512 * dt}")
    for k in range(1, 4):
        for dt in range(5):
            a(f"ds_read_b128 {vr(PR + 20 * (k - 1) + 4 * dt, 4)}, v{XW + k} offset:{5120 * (k - 1) + 1024 * dt}")
    a(f"""
    v_sub_f32 v{X + 6}, 1.0, v{X + 4}
    v_cvt_pk_bf16_f32 v{X + 6}, v{X + 6}, v{X + 6}
    v_and_b32 v{X + 6}, 0xffff0000, v{X + 6}
    s_waitcnt lgkmcnt(15)
    """)
    for i in range(10):
        a(f"v_lshlrev_b32 v{GA + 2 * i}, 16, v{AR + i}\nv_and_b32 v{GA + 2 * i + 1}, 0xffff0000, v{AR + i}")
    for i in range(10):
        a(f"v_pk_mul_f32 {vr(GA + 2 * i, 2)}, {vr(GA + 2 * i, 2)}, {vr(X + 4, 2)} op_sel_hi:[1,0]")
    for k in range(2):
        a(f"s_waitcnt lgkmcnt({10 - 5 * k})")
        for i in range(10):
            a(f"v_pk_add_f32 {vr(ACC + 2 * i, 2)}, {vr(ACC + 2 * i, 2)}, {vr(PR + 20 * k + 2 * i, 2)}")
    a("s_waitcnt lgkmcnt(0)")
    for dt in range(5):
        for x in (2 * dt, 2 * dt + 1):
            a(f"v_pk_add_f32 {vr(ACC + 2 * x, 2)}, {vr(ACC + 2 * x, 2)}, {vr(PR + 40 + 2 * x, 2)}")
        for x in (2 * dt, 2 * dt + 1):
            a(f"v_pk_fma_f32 {vr(GA + 2 * x, 2)}, {vr(ACC + 2 * x, 2)}, {vr(X + 6, 2)}, {vr(GA + 2 * x, 2)} op_sel_hi:[1,0,1]")
        a(f"v_cvt_pk_bf16_f32 v{AR + 2 * dt}, v{GA + 4 * dt}, v{GA + 4 * dt + 1}\nv_cvt_pk_bf16_f32 v{AR + 2 * dt + 1}, v{GA + 4 * dt + 2}, v{GA + 4 * dt + 3}")
        a(f"ds_write_b64 v{Y + 4}, {vr(AR + 2 * dt, 2)} offset:{32 * dt}")
    for n in range(3):
        a(f"ds_read_b128 {vr(PR + 4 * n, 4)}, v{XW} offset:{17920 + 1024 * n}")
    for n in range(3):
        a(f"s_waitcnt lgkmcnt({2 - n})")
        if n == 2:
            a("s_mov_b32 exec_hi, 0")
        a(f"buffer_store_dwordx4 {vr(PR + 4 * n, 4)}, v{Y + 8 + n}, {SRDA}, s19 offen nt")
    if DIAG:
        a("s_mov_b64 exec, -1\ns_waitcnt vmcnt(0)")
        stamp(13)
        a(f"""
        s_lshl_b32 s10, s2, 8
        s_lshl_b32 s11, {WAVE}, 6
        s_add_u32 s10, s10, s11
        s_add_u32 s10, s10, {STAMP}
        s_mov_b64 exec, 1
        """)
        for i in range(14):
            a(f"v_mov_b32 v{8 + i}, s{74 + 2 * i}")
        for i in range(4):
            a(f"buffer_store_dwordx4 v[{8 + 4 * i}:{11 + 4 * i}], {ZERO}, {WSRD}, s10 offen offset:{16 * i}")
        if "dbgspan" in OPT:
            a(f"v_not_b32 v30, v8\nglobal_atomic_umax {ZERO}, v30, {DBG} offset:4 sc1")
            for k, i in enumerate((0, 1, 2, 3, 4, 5, 6, 13)):
                a(f"global_atomic_umax {ZERO}, v{8 + i}, {DBG} offset:{8 + 4 * k} sc1")
    if opt_int("holdus", 0):
        a(f"L_hold:\ns_memrealtime s[12:13]\ns_waitcnt lgkmcnt(0)\ns_sub_u32 s12, s12, {TAG}\ns_cmp_lt_u32 s12, {100 * opt_int('holdus', 0)}\ns_cbranch_scc1 L_hold")
    a("L_end:\ns_endpgm")


gemm2(vmA)


def typeC():
    vm = VM(a)
    a(f"""
    L_typeC:
    s_sub_u32 {CP}, s2, 224
    s_mul_i32 {CP}, {CP}, 3
    s_add_u32 {CP}, {CP}, 224
    s_mov_b32 {CPB}, 0
    s_mov_b32 {KCB}, {CB}
    s_lshl_b32 {W2K}, {WAVE}, 11
    s_mul_i32 {CHB}, {WT}, {CHP}
    s_lshl_b32 s10, {CP}, 9
    v_lshl_add_u32 v68, v0, 1, s10
    s_lshl_b32 s69, {CP}, 2
    s_waitcnt lgkmcnt(0)
    {WSHIFT}
    """)
    param_loads(vm, 3)
    for r in range(3):
        a(f"s_load_dword s{48 + r}, {LDT}, s69\ns_load_dword s{52 + r}, {DSK}, s69\ns_add_u32 s69, s69, 4")
    a("s_mov_b32 s44, s42\ns_mov_b32 s45, s43\ns_mov_b32 s30, s16\ns_mov_b32 s31, s17")
    for l in kgen_addr() + late_addr():
        a(l)
    srd(56, 42, 43, W2F, 54 * 40960); k_order()
    a(f"s_lshl_b32 s10, {WF_}, 8\ns_add_u32 s10, s10, {CHB}\nv_lshl_add_u32 v70, {LANE}, 2, s10")
    a(f"ds_write_b32 v70, {ZERO} offset:{2 * CHP}\nds_write_b32 v70, {ZERO} offset:{4 * CHP}")
    a(f"s_lshl_b32 s10, {WT}, 4\ns_waitcnt lgkmcnt(0)")
    for r in range(3):
        for b, d in ((48, SDT), (52, SDS)):
            a(f"s_lshr_b32 s{d + r}, s{b + r}, s10\ns_lshl_b32 s{d + r}, s{d + r}, 16")
    a("s_waitcnt vmcnt(8)")
    stamp(8)
    K = [kgen_sections(CPAR[r], f"s{SDT + r}", f"s{SDS + r}") for r in range(3)]
    for l in K[0][0]:
        a(l)
    for r in range(3):
        for sec in K[r][1:5]:
            for l in sec:
                a(l)
        if r == 0:
            a("s_waitcnt vmcnt(0)")
            tlb_touch()
        if r == 1:
            a(f"global_load_dword {VTAG}, {ZERO}, {DBG} sc1")
        if r < 2:
            for l in K[r + 1][0]:
                a(l)
        else:
            a(f"""
            s_lshr_b32 s10, {CP}, 5
            s_lshl_b32 s10, s10, 8
            s_add_u32 s10, s10, {UFLAG}
            v_lshl_add_u32 v17, {LANE}, 2, s10
            s_add_u32 s10, {CP}, 2
            s_lshr_b32 s10, s10, 5
            s_lshl_b32 s10, s10, 8
            s_add_u32 s10, s10, {UFLAG}
            v_lshl_add_u32 {VUFL}, {LANE}, 2, s10
            s_waitcnt vmcnt(0)
            buffer_load_dword {LOOK2}, {VUFL}, {WSRD}, 0 offen sc1
            buffer_load_dword v18, v17, {WSRD}, 0 offen sc1
            """)
            get_tag()
        for l in K[r][5]:
            a(l)
        if r < 2:
            for x in range(TW, TR + 1):
                a(f"v_add_u32 v{x}, {2 * CHP}, v{x}")
            for x in range(228, 232):
                a(f"v_add_u32 v{x}, 12288, v{x}")
    stamp(1)
    a("s_waitcnt lgkmcnt(0)\ns_barrier")
    for r in range(3):
        expansion()
        a(f"s_add_u32 {CHB}, {CHB}, {2 * CHP}\ns_add_u32 {KCB}, {KCB}, 12288")
        if r == 0:
            stamp(9)
            a("s_waitcnt vmcnt(0)")
            poll(VUFL, LOOK2, first_issued=True, nap=8)
            poll("v17", "v18", first_issued=True, nap=8)
            stamp(10)
            a(f"s_lshl_b32 {ULO}, {CP}, 7\ns_add_u32 {ULO}, {ULO}, {UT}\ns_add_u32 s10, {ULO}, {32 * 40960}")
            for q in range(3):
                a(f"buffer_load_dwordx4 {vr(64 + 8 * q, 4)}, {VUG}, {WSRD}, {ULO} offen offset:{128 * q} sc1")
                a(f"buffer_load_dwordx4 {vr(68 + 8 * q, 4)}, {VUG}, {WSRD}, s10 offen offset:{128 * q} sc1")
    a(f"s_mul_i32 {CHB}, {WT}, {CHP}\ns_waitcnt vmcnt(0)")
    for r in range(3):
        for n in range(2):
            a(f"ds_write_b128 {VUL}, {vr(64 + 8 * r + 4 * n, 4)} offset:{2 * CHP * r + L_U + 512 + 2048 * n}")
    stamp(2)
    vm.q = []
    conv(vm, wload_ops()[:NEARLY + NGAP], 3)
    vm.wait("look")
    assert q_g2[-2:] == ["ast", "ast"] and vm.q[-2:] == ["ast", "ast"]
    a("s_branch L_gemm2\nL_code1:")


typeC()

body = a.render()
head = open(f"cdna_kernels/{NAME}.s.ref").read().split("; Override launch")[0]
text = head + f"""; Generated by the author's own generator script; single fused kernel, one workgroup per CU.
; @launch grid=(256,1,1) block=(256,1,1) lds=163840
.amdgcn_target "amdgcn-amd-amdhsa--gfx950"
.text
.globl {NAME}_kernel
.p2align 8
.type {NAME}_kernel,@function
{NAME}_kernel:
{body}.section .rodata,"a"
.p2align 6
.amdhsa_kernel {NAME}_kernel
  .amdhsa_next_free_vgpr 512
  .amdhsa_next_free_sgpr 102
  .amdhsa_accum_offset 256
  .amdhsa_group_segment_fixed_size 0
  .amdhsa_kernarg_size 112
  .amdhsa_user_sgpr_count 2
  .amdhsa_user_sgpr_kernarg_segment_ptr 1
  .amdhsa_system_sgpr_workgroup_id_x 1
.end_amdhsa_kernel
"""
open(OUT, "w").write(text)
print("wrote", OUT, "lines", text.count("\n"), "auto nops", a.nops)
```

```python
import sys, struct
from asmlib import Asm, VM

NAME = "gated_mix__ssm_conv_s4d__dense_activation_relu__prompt"
DIAG = "--diag" in sys.argv
OPT = set(x[2:] for x in sys.argv if x.startswith("--"))
OUT = [x for x in sys.argv[1:] if not x.startswith("--")]
OUT = OUT[0] if OUT else f"cdna_kernels/{NAME}.s"

HFLAG, UFLAG, G_OFF, WFLAG, GFLAG, AFLAG = 0x0, 0x1000, 0x2000, 0x5000, 0x5800, 0x6000
UT = 0x10000
W2F = UT + 64 * 40960
HF = W2F + 54 * 40960
AG = HF + 32 * 54 * 4096
STAMP = AG + 160 * 16384
WS_END = STAMP + 512 * 4 * 64
SPIN_LIMIT = 400000
OOB = 0x40000000
WSHIFT = "\ns_add_u32 s42, s42, 0xF000000\ns_addc_u32 s43, s43, 0" if "wsend" in OPT else ""

XB, WB, CB = 0, 49152, 98304
NWS = 6
L_U, L_KE, L_KO, CHP = 0, 4608, 9280, 13952
L_KC = CB + 2 * CHP
L_W2 = L_KC + 4 * 3072
L_AT = 81920
TP = 288


def f32(x):
    return "0x%08x" % struct.unpack("<I", struct.pack("<f", x))[0]


def vr(b, n=1, f="v"):
    return f"{f}{b}" if n == 1 else f"{f}[{b}:{b + n - 1}]"


a = Asm()
LOGA, AIM, CR, CI, LDT, DSK = "s[18:19]", "s[20:21]", "s[22:23]", "s[24:25]", "s[26:27]", "s[28:29]"
DBG, WSRD = "s[40:41]", "s[44:47]"
SRDA, SRDB, SRDC = "s[48:51]", "s[52:55]", "s[56:59]"
WAVE, TAG, XCD, J = "s3", "s4", "s5", "s6"
RB, CT = "s7", "s8"
W2K, WT, WF_ = "s11", "s14", "s15"
XS, WSS = 16, 26
HFO, W4K, D0, UTO, UFO = "s60", "s62", "s63", "s64", "s65"
CP, CPB, CHB, PFO, PF2 = "s67", "s70", "s61", "s71", "s68"
ULO = "s69"
TB, CS = "s72", "s73"
WSO, HSO = "s36", "s37"
LANE, ZERO = "v1", "v3"
VXS, VWS, VXR, VWR = [236, 237, 238, 239], [240, 241, 242, 243], [244, 245], [246, 247, 248, 249]
L16, VUT, VTAG = "v250", "v251", "v252"
L15, G4 = "v254", "v255"


def stamp(i, rowst=False):
    if DIAG and (('rows' in OPT) == rowst or i in (0, 13)):
        a(f"s_memrealtime s[{74 + 2 * i}:{75 + 2 * i}]\ns_waitcnt lgkmcnt(0)")


def srd(dst, lo, hi, off_s, size):
    if off_s is None:
        a(f"s_mov_b32 s{dst}, s{lo}\ns_mov_b32 s{dst + 1}, s{hi}")
    else:
        a(f"s_add_u32 s{dst}, s{lo}, {off_s}\ns_addc_u32 s{dst + 1}, s{hi}, 0")
    a(f"s_mov_b32 s{dst + 2}, {size}\ns_mov_b32 s{dst + 3}, 0x20000")


def poll(voff, vf, first_issued=False, nap=4):
    lp, chk, done = (a.newlabel(x) for x in ("Lp", "Lc", "Ld"))
    if first_issued:
        a(f"v_cmp_ne_u32 vcc, {TAG}, {vf}\ns_cmp_eq_u64 vcc, 0\ns_cbranch_scc1 {done}")
    a(f"""
    s_mov_b32 s66, 0
    {lp}:
    buffer_load_dword {vf}, {voff}, {WSRD}, 0 offen sc1
    s_waitcnt vmcnt(0)
    v_cmp_ne_u32 vcc, {TAG}, {vf}
    s_cmp_eq_u64 vcc, 0
    s_cbranch_scc1 {done}
    s_sleep {nap}
    s_add_u32 s66, s66, 1
    s_cmp_lt_u32 s66, {SPIN_LIMIT}
    s_cbranch_scc1 {lp}
    {done}:
    """)


def get_tag():
    lp, done = a.newlabel("Lt"), a.newlabel("Ld")
    a(f"""
    v_readfirstlane_b32 {TAG}, {VTAG}
    s_cmp_lg_u32 {TAG}, 0
    s_cbranch_scc1 {done}
    s_mov_b32 s66, 0
    {lp}:
    global_load_dword {VTAG}, {ZERO}, {DBG} sc1
    s_waitcnt vmcnt(0)
    v_readfirstlane_b32 {TAG}, {VTAG}
    s_cmp_lg_u32 {TAG}, 0
    s_cbranch_scc1 {done}
    s_sleep 2
    s_add_u32 s66, s66, 1
    s_cmp_lt_u32 s66, {SPIN_LIMIT}
    s_cbranch_scc1 {lp}
    {done}:
    """)


def flag_store(vm, soff, voff):
    a("s_mov_b64 exec, 1")
    vm.issue("fl", f"buffer_store_dword {VTAG}, {voff}, {WSRD}, {soff} offen sc1")
    a("s_mov_b64 exec, -1")


def dmax(D, ms=range(4)):
    return [(f"s_add_u32 m0, {W4K}, {XB + (D % 3) * 16384 + 1024 * m}",
             f"buffer_load_dwordx4 v{VXS[m]}, {SRDA}, s{XS + D} offen lds", f"x{D}") for m in ms]


def dmaw(ks):
    return [(f"s_add_u32 m0, {W2K}, {WB + (ks % NWS) * 8192 + 1024 * m}",
             f"buffer_load_dwordx4 v{VWS[2 * (ks & 1) + m]}, {SRDB}, s{WSS + (ks >> 1)} offen lds", f"w{ks}") for m in range(2)]


def emit_dma(vm, gs):
    for g in gs:
        a(g[0])
        vm.issue(g[2], g[1])


def soff(D):
    return [f"s_add_u32 s{XS + D}, s{XS + D - 1}, 128\ns_add_u32 s{WSS + D}, s{WSS + D - 1}, {64 * 3456}",
            f"s_cmp_eq_u32 s{XS + D}, 1280\ns_cselect_b32 s{XS + D}, 0, s{XS + D}\ns_cselect_b32 s{WSS + D}, 0, s{WSS + D}"]


def g1_setup_a():
    a(f"""
    s_mul_i32 {RB}, {J}, 37
    s_lshr_b32 {RB}, {RB}, 8
    s_mul_i32 {CT}, {RB}, 7
    s_sub_u32 {CT}, {J}, {CT}
    s_lshr_b32 s9, {XCD}, 1
    s_lshl_b32 s9, s9, 2
    s_add_u32 {RB}, {RB}, s9
    s_and_b32 s9, {XCD}, 1
    s_mul_i32 s9, s9, 7
    s_add_u32 {CT}, {CT}, s9
    v_lshrrev_b32 v4, 3, {LANE}
    s_lshl_b32 s10, {WAVE}, 5
    v_add_u32 v4, s10, v4
    v_mul_u32_u24 v4, 1280, v4
    v_and_b32 v6, 7, {LANE}
    v_xor_b32 v6, v6, {G4}
    v_lshl_add_u32 v{VXS[0]}, v6, 4, v4
    v_xor_b32 v{VXS[1]}, 64, v{VXS[0]}
    v_add_u32 v{VXS[1]}, 10240, v{VXS[1]}
    v_add_u32 v{VXS[2]}, 20480, v{VXS[0]}
    v_add_u32 v{VXS[3]}, 20480, v{VXS[1]}
    s_lshl_b32 s10, {WAVE}, 3
    v_add_u32 v4, s10, {G4}
    v_mul_u32_u24 v4, 3456, v4
    s_lshl_b32 s10, {WF_}, 2
    v_or_b32 v6, s10, {G4}
    v_lshlrev_b32 v6, 1, v6
    v_xor_b32 v6, v6, {L15}
    v_lshl_add_u32 v{VWS[0]}, v6, 4, v4
    s_lshl_b32 s10, {CT}, 8
    v_add_u32 v{VWS[0]}, s10, v{VWS[0]}
    v_add_u32 v{VWS[1]}, 13824, v{VWS[0]}
    v_add_u32 v{VWS[2]}, {32 * 3456}, v{VWS[0]}
    v_add_u32 v{VWS[3]}, {32 * 3456}, v{VWS[1]}
    s_lshl_b32 {W2K}, {WAVE}, 11
    s_lshl_b32 {W4K}, {WAVE}, 12
    s_mul_i32 s12, {RB}, 3
    s_add_u32 s12, s12, {CT}
    s_mul_i32 s13, s12, 205
    s_lshr_b32 s13, s13, 11
    s_mul_i32 s13, s13, 10
    s_sub_u32 {D0}, s12, s13
    s_mul_i32 s9, {RB}, {128 * 1280}
    """)


def g1_setup_b():
    srd(48, 16, 17, "s9", 128 * 1280)
    srd(52, 32, 33, None, 640 * 3456)


def g1_setup_c():
    a(f"""
    s_lshl_b32 s10, {WT}, 13
    v_lshlrev_b32 v{VXR[0]}, 7, {L15}
    v_add_u32 v{VXR[0]}, s10, v{VXR[0]}
    v_bfe_u32 v4, {LANE}, 1, 3
    v_xor_b32 v4, v4, {G4}
    v_lshl_add_u32 v{VXR[0]}, v4, 4, v{VXR[0]}
    v_xor_b32 v{VXR[1]}, 64, v{VXR[0]}
    v_bfe_u32 v4, {LANE}, 2, 2
    v_lshl_add_u32 v6, {G4}, 3, v4
    v_lshlrev_b32 v{VWR[0]}, 8, v6
    v_and_b32 v6, 1, {G4}
    v_lshl_or_b32 v6, v6, 2, v4
    s_lshl_b32 s10, {WF_}, 2
    v_xor_b32 v6, s10, v6
    v_lshl_add_u32 v{VWR[0]}, v6, 5, v{VWR[0]}
    v_and_b32 v7, 3, {LANE}
    v_lshl_add_u32 v{VWR[0]}, v7, 3, v{VWR[0]}
    v_add_u32 v{VWR[0]}, {WB}, v{VWR[0]}
    v_xor_b32 v{VWR[1]}, 32, v{VWR[0]}
    v_xor_b32 v{VWR[2]}, 64, v{VWR[0]}
    v_xor_b32 v{VWR[3]}, 0x60, v{VWR[0]}
    v_lshl_add_u32 v6, v7, 3, v4
    v_lshlrev_b32 v253, 7, v6
    v_add_u32 v253, {W4K}, v253
    v_bfe_u32 v6, v6, 1, 3
    v_lshrrev_b32 v7, 5, {LANE}
    v_xor_b32 v6, v6, v7
    v_lshl_add_u32 v253, v6, 4, v253
    v_and_b32 v6, 1, {G4}
    v_lshl_add_u32 v253, v6, 3, v253
    s_lshl_b32 s10, {RB}, 2
    s_add_u32 s10, s10, {WAVE}
    s_mul_i32 {UTO}, s10, 40960
    s_lshl_b32 {UFO}, {D0}, 12
    s_add_u32 {UTO}, {UTO}, {UFO}
    s_add_u32 {UTO}, {UTO}, {UT}
    s_lshl_b32 {UFO}, {D0}, 8
    s_lshl_b32 s10, s10, 2
    s_add_u32 {UFO}, {UFO}, s10
    s_add_u32 {UFO}, {UFO}, {UFLAG}
    s_cmp_lt_u32 {CT}, 10
    s_cselect_b32 s10, 0, {OOB}
    v_lshlrev_b32 {VUT}, 8, {G4}
    v_lshl_add_u32 {VUT}, v4, 5, {VUT}
    v_bfe_u32 v6, {LANE}, 1, 1
    v_lshl_add_u32 {VUT}, v6, 7, {VUT}
    v_and_b32 v6, 1, {LANE}
    v_lshl_add_u32 {VUT}, v6, 4, {VUT}
    v_add_u32 {VUT}, s10, {VUT}
    """)


def ut_step(vm, t):
    vm.wait("x0")
    vm.issue("tag", f"global_load_dword {VTAG}, {ZERO}, {DBG} sc1")
    a(f"v_mov_b32 v{t + 16}, v253\nv_xor_b32 v{t + 17}, 32, v253\nv_xor_b32 v{t + 18}, 64, v253\nv_xor_b32 v{t + 19}, 0x60, v253")
    for dt in range(4):
        a(f"ds_read_b64_tr_b16 {vr(t + 4 * dt, 2)}, v{t + 16 + dt}\nds_read_b64_tr_b16 {vr(t + 2 + 4 * dt, 2)}, v{t + 16 + (dt ^ 1)} offset:512")
    for dt in range(4):
        a(f"s_waitcnt lgkmcnt({6 - 2 * dt})")
        vm.issue("ut", f"buffer_store_dwordx4 {vr(t + 4 * dt, 4)}, {VUT}, {WSRD}, {'s46' if 'nout' in OPT else UTO} offen offset:{1024 * dt} sc1")


def ut_flag(vm):
    vm.wait("ut")
    get_tag()
    flag_store(vm, UFO, VUT)


def opt_int(name, default):
    for x in OPT:
        if x.startswith(name + "="):
            return int(x.split("=")[1])
    return default


VWFL, VUFL, VHFL, VUG, VUL, LOOK1, LOOK2, VPS, VPF = "v8", "v9", "v10", "v11", "v12", "v13", "v14", "v15", "v16"
HV = ["v0", "v5", "v6", "v7"]
JUNK = "v233"
KCB, HFM = "s9", "s[30:31]"

a("L_code0:")
CODEPF = f"""
s_getpc_b64 s[12:13]
L_pc0:
s_lshr_b32 s10, s2, 3
s_lshl_b32 s10, s10, 11
v_lshl_add_u32 v40, v0, 7, s10
v_min_u32 v40, L_code1-L_pc0-4, v40
v_cmp_gt_u32 vcc, 16, v0
s_and_saveexec_b64 s[8:9], vcc
s_cbranch_execz L_nopf
global_load_dword {JUNK}, v40, s[12:13]
L_nopf:
s_mov_b64 exec, -1
""" if "nopf" not in OPT else ""
stamp(0)
if "entryclk" in OPT:
    a("s_memrealtime s[100:101]")
a(f"""
s_cmp_ge_u32 s2, 256
s_cbranch_scc1 L_end
s_load_dwordx16 s[16:31], s[0:1], 0
s_load_dwordx8 s[32:39], s[0:1], 64
s_load_dwordx4 s[40:43], s[0:1], 96
{CODEPF}
v_lshrrev_b32 v2, 6, v0
v_and_b32 {LANE}, 63, v0
v_mov_b32 {ZERO}, 0
v_readfirstlane_b32 {WAVE}, v2
s_and_b32 {XCD}, s2, 7
s_lshr_b32 {J}, s2, 3
s_mov_b32 s46, {WS_END}
s_mov_b32 s47, 0x20000
v_and_b32 {L15}, 15, v0
v_bfe_u32 {G4}, v0, 4, 2
v_lshlrev_b32 {L16}, 4, {LANE}
s_lshr_b32 {WT}, {WAVE}, 1
s_and_b32 {WF_}, {WAVE}, 1
s_cmp_ge_u32 {J}, 28
s_cbranch_scc1 L_typeC
""")


def tlb_touch(who="A"):
    mode = opt_int("tlb", 0)
    if mode == 3 or (mode == 1 and who != "C0") or (mode != 1 and who == "C0"):
        return
    lab = a.newlabel("Ltl")
    sh = 20 if mode == 2 else 18
    a(f"""
    s_cmp_lg_u32 {WAVE}, 1
    s_cbranch_scc1 {lab}
    v_lshlrev_b32 v99, {sh}, {LANE}
    v_add_u32 v99, 0xff80, v99
    buffer_load_dword {JUNK}, v99, {WSRD}, 0 offen sc1
    v_lshlrev_b32 v99, {sh if mode == 2 else 16}, {LANE}
    v_min_u32 v99, {2048 * 1280 - 4}, v99
    global_load_dword {JUNK}, v99, s[38:39] sc1
    {lab}:
    """)


def bf16_round_int(l):
    if l < 256:
        return l
    e = l.bit_length() - 8
    q, r = l >> e, l & ((1 << e) - 1)
    h = 1 << (e - 1)
    if r > h or (r == h and (q & 1)):
        q += 1
    return q << e


PAR = 208
SDT, SDS = 20, 23


def param_loads(vm, n=1):
    for r in range(n):
        for k, ptr in enumerate((LOGA, AIM, CR, CI)):
            vm.issue("par", f"global_load_ushort v{CPAR[r] + k}, v68, {ptr} offset:{512 * r} nt")


CPAR = [208, 212, 240]
GX, GW, GX2 = 152, 172, 100


def gate_addr():
    a(f"""
    s_lshl_b32 s10, {XCD}, 3
    s_and_b32 s13, {J}, 7
    s_add_u32 s13, s13, s10
    s_lshl_b32 s10, s13, 5
    s_lshl_b32 s12, {WAVE}, 3
    s_add_u32 s10, s10, s12
    v_add_u32 v65, s10, {G4}
    v_lshlrev_b32 v93, 4, {L15}
    v_mul_u32_u24 v92, 1280, v65
    v_add_u32 v92, v92, v93
    v_add_u32 v94, 5120, v92
    v_and_b32 v64, 1, {LANE}
    v_lshl_add_u32 v65, v64, 2, v65
    v_lshlrev_b32 {VPS}, 2, v65
    v_mov_b32 {VPF}, 0
    s_lshl_b32 {PF2}, s13, 4
    s_lshl_b32 s10, {WAVE}, 2
    s_add_u32 {PF2}, {PF2}, s10
    s_add_u32 {PF2}, {PF2}, {GFLAG}
    """)


def gate_loads(vm):
    for k in range(5):
        a(f"global_load_dwordx4 {vr(GW + 4 * k, 4)}, v93, s[36:37] offset:{256 * k}")
        a(f"global_load_dwordx4 {vr(GX2 + 4 * k, 4)}, v94, s[30:31] offset:{256 * k}")
    for k in range(5):
        vm.issue("pre", f"global_load_dwordx4 {vr(GX + 4 * k, 4)}, v92, s[30:31] offset:{256 * k}")


def gate_finish(vm):
    a("v_mov_b32 v64, 0\nv_mov_b32 v65, 0")
    for k in range(20):
        a(f"v_dot2_f32_bf16 v64, v{GX + k}, v{GW + k}, v64\nv_dot2_f32_bf16 v65, v{GX2 + k}, v{GW + k}, v65")
    a(f"v_and_b32 v66, 1, {LANE}\nv_cmp_eq_u32 vcc, 1, v66\ns_nop 0")
    for sh in (8, 4, 2, 1):
        a(f"v_add_f32_dpp v64, v64, v64 row_ror:{sh} row_mask:0xf bank_mask:0xf")
        a(f"v_add_f32_dpp v65, v65, v65 row_ror:{sh} row_mask:0xf bank_mask:0xf")
    a(f"""
    v_cndmask_b32 v64, v64, v65, vcc
    v_cvt_pk_bf16_f32 v64, v64, v64
    v_and_b32 v64, 0xffff0000, v64
    v_mul_f32 v64, {f32(-1.4426950408889634)}, v64
    v_exp_f32 v64, v64
    v_add_f32 v64, 1.0, v64
    v_rcp_f32 v64, v64
    v_cvt_pk_bf16_f32 v64, v64, v64
    v_and_b32 v64, 0xffff0000, v64
    s_mov_b32 s10, {G_OFF}
    s_mov_b32 s12, 0x30003
    s_mov_b32 s13, 0x30003
    s_mov_b64 exec, s[12:13]
    """)
    vm.issue("pst", f"buffer_store_dword v64, {VPS}, {WSRD}, s10 offen sc1")
    a("s_mov_b64 exec, -1")


def late_addr():
    L = f"""
    s_lshr_b32 {TB}, {XCD}, 1
    s_lshl_b32 {TB}, {TB}, 3
    s_lshr_b32 s10, {J}, 2
    s_add_u32 {TB}, {TB}, s10
    s_and_b32 {CS}, {XCD}, 1
    s_lshl_b32 {CS}, {CS}, 2
    s_and_b32 s10, {J}, 3
    s_add_u32 {CS}, {CS}, s10
    s_mul_i32 s10, {CS}, 5120
    v_add_u32 v2, s10, {L16}
    v_add_u32 v4, 4096, v2
    s_mul_i32 s10, {WAVE}, 14
    v_lshrrev_b32 {VWFL}, 2, {LANE}
    v_min_u32 {VWFL}, 13, {VWFL}
    v_add_u32 {VWFL}, s10, {VWFL}
    v_min_u32 {VWFL}, 53, {VWFL}
    v_lshlrev_b32 {VWFL}, 5, {VWFL}
    v_and_b32 v6, 3, {LANE}
    v_lshl_add_u32 {VWFL}, v6, 2, {VWFL}
    s_and_b32 s10, {XCD}, 1
    s_lshl_b32 s10, s10, 4
    s_add_u32 s10, s10, {WFLAG}
    v_add_u32 {VWFL}, s10, {VWFL}
    s_mul_i32 s10, {WAVE}, 7
    v_min_u32 {VHFL}, 6, {LANE}
    v_add_u32 {VHFL}, s10, {VHFL}
    v_min_u32 {VHFL}, 26, {VHFL}
    v_lshlrev_b32 {VHFL}, 2, {VHFL}
    s_lshl_b32 s10, {TB}, 7
    v_add_u32 {VHFL}, s10, {VHFL}
    v_lshrrev_b32 v6, 3, v0
    v_mul_u32_u24 {VUG}, 40960, v6
    v_and_b32 v7, 7, {LANE}
    v_lshl_add_u32 {VUG}, v7, 4, {VUG}
    v_and_b32 v5, 1, {LANE}
    v_mul_u32_u24 {VUL}, {CHP}, v5
    v_lshl_add_u32 {VUL}, v6, 6, {VUL}
    v_lshrrev_b32 v7, 1, v7
    v_lshl_add_u32 {VUL}, v7, 4, {VUL}
    """.strip().replace("\n", "|").replace("@", "\n").split("|")
    for k in range(4):
        L += [f"s_add_u32 s10, {WAVE}, {k}", "s_and_b32 s10, s10, 3", "s_lshl_b32 s10, s10, 10", f"v_add_u32 {HV[k]}, s10, {L16}"]
    return L


def k_order():
    a(f"s_mul_i32 {WSO}, {WAVE}, {14 * 40960}\ns_mul_i32 {HSO}, {WAVE}, {14 * 4096}")


def pair_addr():
    a(f"""
    s_lshr_b32 s10, {CP}, 5
    s_lshl_b32 s10, s10, 8
    s_add_u32 s10, s10, {UFLAG}
    v_lshl_add_u32 {VUFL}, {LANE}, 2, s10
    s_lshl_b32 {ULO}, {CP}, 7
    s_add_u32 {ULO}, {ULO}, {UT}
    s_mul_i32 {CHB}, {WT}, {CHP}
    s_add_u32 {CHB}, {CHB}, {CPB}
    """)


TW, TR = 58, 62


def kgen_addr():
    return f"""
    s_mul_i32 s10, {WF_}, {L_KO - L_KE}
    s_add_u32 s10, s10, {CHB}
    s_add_u32 s10, s10, {L_KE}
    s_mov_b32 s60, s10
    v_lshl_add_u32 v{TW}, {LANE}, 2, s10
    v_add_u32 v{TW + 1}, {4 * TP}, v{TW}
    v_add_u32 v{TW + 2}, {8 * TP}, v{TW}
    v_add_u32 v{TW + 3}, {12 * TP}, v{TW}
    v_mul_u32_u24 v{TR}, {TP}, {L15}
    v_lshl_add_u32 v{TR}, {G4}, 4, v{TR}
    v_add_u32 v{TR}, s10, v{TR}
    s_lshl_b32 s10, {WF_}, 8
    s_add_u32 s10, s10, {CHB}
    v_lshl_add_u32 v70, {LANE}, 2, s10
    ds_write_b32 v70, {ZERO} offset:{L_U}
    s_mul_i32 s10, {WAVE}, 3072
    s_add_u32 s10, s10, {KCB}
    v_lshrrev_b32 v70, 1, {G4}
    v_and_b32 v71, 1, {G4}
    v_lshlrev_b32 v228, 9, v70
    v_lshl_add_u32 v228, v71, 4, v228
    v_lshl_add_u32 v228, {L15}, 5, v228
    v_add_u32 v228, s10, v228
    v_lshlrev_b32 v73, 8, {G4}
    v_lshlrev_b32 v229, 4, {L15}
    v_lshlrev_b32 v230, 3, {L15}
    v_cmp_gt_u32 vcc, 2, {G4}
    v_add_u32 v231, s10, v73
    v_mov_b32 v78, 0x80
    v_cndmask_b32 v229, v230, v229, vcc
    v_cndmask_b32 v78, v78, 8, vcc
    v_add_u32 v229, v231, v229
    v_add_u32 v230, v229, v78
    v_lshl_add_u32 v231, {L15}, 2, v231
    v_or_b32 v70, {WF_}, {LANE}
    v_cmp_eq_u32 vcc, 0, v70
    v_cndmask_b32 v232, 0, 1.0, vcc
    """.strip().split("\n")


ADDTID = 'addtid' in OPT
TBM = 's60'


def kgen_sections(PAR=208, sdt='s66', sds='s69', tid_off=60000):
    L2E_HI = struct.unpack("<f", struct.pack("<f", 1.4426950408889634))[0]
    L2E_LO = 1.4426950408889634 - L2E_HI
    S = [[]]

    def e(t):
        S[-1].extend(x.strip() for x in t.strip().split("\n"))

    R_, Z8, G1, GC, T1, O1 = 32, 34, 36, 38, 40, 42
    P = lambda k: 44 + 2 * (k - 1)
    RBF, QA, D = 192, [120, 136], [216, 220, 224]
    e(f"s_mov_b32 s12, {f32(L2E_HI)}\ns_mov_b32 s13, {f32(L2E_LO)}")
    e(f"v_mov_b32 v70, {sdt}\nv_lshlrev_b32 v71, 16, v{PAR}")
    for t in ("v_mul_f32 v{a}, s12, v{x}", "v_fma_f32 v{b}, v{x}, s12, -v{a}", "v_exp_f32 v{a}, v{a}", "v_fma_f32 v{b}, v{x}, s13, v{b}",
              "v_mul_f32 v{b}, " + f32(0.6931471805599453) + ", v{b}", "v_fma_f32 v{a}, v{a}, v{b}, v{a}"):
        for i in range(2):
            e(t.format(a=72 + i, b=74 + i, x=70 + i))
    e(f"""
    v_cvt_pk_bf16_f32 v71, v72, v73
    v_lshlrev_b32 v70, 16, v71
    v_and_b32 v71, 0xffff0000, v71
    v_mul_f32 v71, v71, v70
    v_mul_f32 v71, {f32(-1.4426950408889634)}, v71
    v_lshlrev_b32 v72, 16, v{PAR + 1}
    v_mul_f32 v72, v72, v70
    v_mul_f32 v72, 0.15915494, v72
    v_add_f32 v73, v70, v70
    v_lshlrev_b32 v74, 16, v{PAR + 2}
    v_lshlrev_b32 v75, 16, v{PAR + 3}
    v_mul_f32 v{R_}, v74, v73
    v_mul_f32 v{R_ + 1}, -v75, v73
    v_mul_f32 v76, {f32(8.0)}, v71
    v_mul_f32 v77, {f32(128.0)}, v71
    v_mul_f32 v79, {f32(8.0)}, v72
    v_mul_f32 v80, {f32(128.0)}, v72
    v_exp_f32 v76, v76
    v_exp_f32 v77, v77
    v_exp_f32 v78, v71
    v_fract_f32 v79, v79
    v_fract_f32 v80, v80
    v_fract_f32 v81, v72
    v_cos_f32 v82, v79
    v_sin_f32 v83, v79
    v_cos_f32 v84, v80
    v_sin_f32 v85, v80
    v_cos_f32 v86, v81
    v_sin_f32 v87, v81
    v_mul_f32 v{Z8}, v76, v82
    v_mul_f32 v{Z8 + 1}, -v76, v83
    v_mul_f32 v{G1}, v77, v84
    v_mul_f32 v{G1 + 1}, v77, v85
    v_mul_f32 v{P(1)}, v78, v86
    v_mul_f32 v{P(1) + 1}, v78, v87
    """)
    st = {"n": 0}

    def put(row, reg, last=False):
        t = 88 + (st["n"] & 3)
        st["n"] += 1
        e(f"v_mov_b32 v{t}, 0x3f80" if reg is None else f"v_cvt_pk_bf16_f32 v{t}, v{reg}, v{reg + 1}")
        if ADDTID:
            e(f"ds_write_addtid_b32 v{t} offset:{tid_off + row * TP}")
        elif row & 1:
            e(f"ds_write2_b32 v{TW + row // 4}, v{t - 1}, v{t} offset0:{((row - 1) % 4) * TP // 4} offset1:{(row % 4) * TP // 4}")
        elif last:
            e(f"ds_write_b32 v{TW + row // 4}, v{t} offset:{(row % 4) * TP}")
            st["n"] += 1

    def cm(out, x, y):
        e(f"v_pk_mul_f32 {vr(T1, 2)}, {vr(x, 2)}, {vr(y, 2)} op_sel:[0,0] op_sel_hi:[1,0]")
        e(f"v_pk_fma_f32 {vr(out, 2)}, {vr(x, 2)}, {vr(y, 2)}, {vr(T1, 2)} op_sel:[1,1,0] op_sel_hi:[0,1,1] neg_lo:[1,0,0]")

    def rd(base):
        for ks in range(4):
            e(f"ds_read_b128 {vr(base + 4 * ks, 4)}, v{TR} offset:{64 * ks}")

    def mm(d, q, zero):
        for ks in range(4):
            e(f"v_mfma_f32_16x16x32_bf16 {vr(d, 4)}, {vr(q + 4 * ks, 4)}, {vr(RBF + 4 * ks, 4)}, {'0' if (zero and ks == 0) else vr(d, 4)}")

    def sec():
        S.append([f"s_mov_b32 m0, {TBM}"] if ADDTID else [])

    sec()
    for x in range(16):
        put(x, R_)
        if x < 15:
            cm(R_, R_, Z8)
    rd(RBF)
    sec()
    put(0, None)
    for k in range(1, 8):
        put(k, P(k))
        if k < 7:
            cm(P(k + 1), P(k), P(1))
    put(8, G1)
    cm(GC, G1, G1)
    for k in range(1, 8):
        cm(O1, G1, P(k))
        put(8 + k, O1)
    sec()
    rd(QA[0])
    row = 0
    for i in range(2, 8):
        put(row, GC)
        row += 1
        for k in ((2, 4, 6) if i < 4 else (4,)):
            cm(O1, GC, P(k))
            put(row, O1)
            row += 1
        cm(GC, GC, G1)
        if i == 3:
            e(f"v_mul_f32 v{D[0]}, {sds}, v232\nv_mov_b32 v{D[0] + 1}, 0\nv_mov_b32 v{D[0] + 2}, 0\nv_mov_b32 v{D[0] + 3}, 0\ns_waitcnt lgkmcnt({8 if ADDTID else 4})")
            mm(D[0], QA[0], False)
    sec()
    rd(QA[1])
    for i in range(8, 17):
        put(i - 8, GC, last=(i == 16))
        if i < 16:
            cm(GC, GC, G1)
    rd(QA[0])
    e(f"ds_write_b128 v228, {vr(D[0], 4)}\ns_waitcnt lgkmcnt({14 if ADDTID else 10})")
    mm(D[1], QA[1], True)
    S.append([])
    e("s_waitcnt lgkmcnt(0)")
    mm(D[2], QA[0], True)
    e(f"ds_write_b64 v229, {vr(D[1], 2)} offset:1024\nds_write_b64 v230, {vr(D[1] + 2, 2)} offset:1024")
    for j in range(4):
        e(f"ds_write_b32 v231, v{D[2] + j} offset:{2048 + 64 * j}")
    return S


def emit_mixed(vm, lines, ops, every):
    for n, l in enumerate(lines):
        a(l)
        if ops and n % every == every - 1:
            emit_op(vm, ops.pop(0))


def expansion(between=None):
    E = {3: 36, 2: 36, 1: 40, 0: 44}
    F = {3: 52, 2: 52, 1: 56, 0: 192}
    l1, l2, l3, l4 = (a.newlabel("Le") for _ in range(4))
    a(f"""
    s_mul_i32 s10, {WT}, 6144
    s_add_u32 s10, s10, {KCB}
    v_sub_u32 v32, 63, {LANE}
    v_lshl_add_u32 v33, v32, 3, s10
    s_cmp_eq_u32 {WF_}, 1
    s_cbranch_scc1 {l1}
    """)

    def rd3(s, idx):
        for h, R in enumerate((E, F)):
            a(f"ds_read_b64 {vr(R[s], 2)}, v33 offset:{3072 * h + 4 * idx}\nds_read_b32 v{R[s] + 2}, v33 offset:{3072 * h + 4 * idx + 8}")

    rd3(3, 512)
    a(f"s_branch {l2}\n{l1}:\nv_lshl_add_u32 v34, v32, 4, s10")
    rd3(2, 384)
    rd3(1, 256)
    for h, R in enumerate((E, F)):
        a(f"ds_read_b128 {vr(R[0], 4)}, v34 offset:{3072 * h}\nds_read_b32 v{R[0] + 4}, v34 offset:{3072 * h + 16}")
    a(f"{l2}:")
    if between:
        between()
    a(f"s_cmp_eq_u32 {WF_}, 1\ns_cbranch_scc1 {l3}\nv_lshl_add_u32 v32, {LANE}, 5, {CHB}\ns_waitcnt lgkmcnt(0)")

    def add3(s):
        a(f"v_pk_add_f32 {vr(E[s], 2)}, {vr(E[s], 2)}, {vr(F[s], 2)}\nv_add_f32 v{E[s] + 2}, v{E[s] + 2}, v{F[s] + 2}")

    def pack(s, l0, Bn, step, sh, t):
        val = lambda x: E[s] + (bf16_round_int(l0 + 64 + x) - (l0 + 64)) // step
        for m in range(Bn // 2):
            a(f"v_cvt_pk_bf16_f32 v{t + m}, v{val(Bn - sh - 2 * m)}, v{val(Bn - sh - 1 - 2 * m)}")

    add3(3)
    for sh, base in ((0, L_KE), (1, L_KO)):
        t = 192 + 8 * sh
        pack(3, 1024, 16, 8, sh, t)
        a(f"ds_write_b128 v32, {vr(t, 4)} offset:{base}\nds_write_b128 v32, {vr(t + 4, 4)} offset:{base + 16}")
    a(f"""
    s_branch {l4}
    {l3}:
    v_lshl_add_u32 v33, {LANE}, 4, {CHB}
    v_lshl_add_u32 v34, {LANE}, 3, {CHB}
    v_lshl_add_u32 v35, v32, 2, {CHB}
    v_cmp_eq_u32 vcc, 63, {LANE}
    s_waitcnt lgkmcnt(0)
    """)
    add3(2)
    add3(1)
    a(f"v_pk_add_f32 {vr(E[0], 2)}, {vr(E[0], 2)}, {vr(F[0], 2)}\nv_pk_add_f32 {vr(E[0] + 2, 2)}, {vr(E[0] + 2, 2)}, {vr(F[0] + 2, 2)}\nv_add_f32 v{E[0] + 4}, v{E[0] + 4}, v{F[0] + 4}")
    for sh, base in ((0, L_KE), (1, L_KO)):
        t = 192 + 8 * sh
        pack(2, 512, 8, 4, sh, t)
        pack(1, 256, 4, 2, sh, t + 4)
        pack(0, 0, 4, 1, sh, t + 6)
        a(f"ds_write_b128 v33, {vr(t, 4)} offset:{base + 2048}\nds_write_b64 v34, {vr(t + 4, 2)} offset:{base + 3072}\nds_write_b64 v34, {vr(t + 6, 2)} offset:{base + 3584}")
    a(f"""
    v_cvt_pk_bf16_f32 v208, v{E[0]}, {ZERO}
    v_cndmask_b32 v208, 0, v208, vcc
    ds_write_b32 v35, {ZERO} offset:{L_KO + 4096}
    ds_write_b32 v35, v208 offset:{L_KE + 4096}
    {l4}:
    """)


WSLOT = [vr(4 * i, 4, "a") for i in range(64)] + [vr(224 + 4 * i, 4) for i in range(6)]


def wload_ops():
    L = []
    for i in range(14):
        for dt in range(5):
            post = f"s_add_u32 {WSO}, {WSO}, 40960" if dt == 4 else None
            L.append((f"buffer_load_dwordx4 {WSLOT[5 * i + dt]}, {'v4' if dt == 4 else 'v2'}, {SRDC}, {WSO} offen offset:{1024 * (dt & 3)} sc1", f"W{i}", post))
    return L


def emit_op(vm, op):
    vm.issue(op[1], op[0])
    if op[2]:
        a(op[2])


def uload_ops():
    return [(f"buffer_load_dwordx4 {vr(24 + 4 * n, 4)}, {VUG}, {WSRD}, {ULO} offen sc1", "u",
             f"s_add_u32 {ULO}, {ULO}, {32 * 40960}" if n == 0 else None) for n in range(2)]


NEARLY = opt_int("nearly", 22)
NGAP = opt_int("ngap", 70 - NEARLY)
WTAIL = opt_int("wtail", 10)
LOOKAT, CHECKAT = 11, 13
HP = opt_int('hp', 0)

def prep_block(vm):
    a("s_lshr_b32 s10, s2, 6\ns_cmp_eq_u32 s10, 2\ns_cbranch_scc1 L_a_gate2")
    for aa in range(5):
        a(f"ds_read_b64_tr_b16 {vr(100 + 4 * aa, 2)}, v234 offset:{128 * aa}\nds_read_b64_tr_b16 {vr(102 + 4 * aa, 2)}, v234 offset:{128 * aa + 10240}")
    for aa in range(5):
        a(f"s_waitcnt lgkmcnt({8 - 2 * aa})\ns_mov_b32 s10, {OOB if ('now2' in OPT or 'now2st' in OPT) else 4096 * aa}")
        a(f"buffer_store_dwordx4 {vr(100 + 4 * aa, 4)}, {VPS}, {WSRD}, s10 offen sc1")
    a("s_branch L_a_join2\nL_a_gate2:")
    gate_finish(vm)
    a("L_a_join2:")


vmA = VM(a)
a(f"""
s_mov_b32 {CP}, s2
s_mov_b32 {CPB}, {CB}
s_lshl_b32 s10, {CP}, 9
v_lshl_add_u32 v68, v0, 1, s10
s_lshl_b32 s69, {CP}, 2
""")
g1_setup_a()
a("s_waitcnt lgkmcnt(0)" + WSHIFT)
param_loads(vmA)
a(f"s_load_dword s66, {LDT}, s69\ns_load_dword s69, {DSK}, s69")
g1_setup_b()
a(f"""
s_mov_b32 s44, s42
s_mov_b32 s45, s43
s_mov_b32 s30, s16
s_mov_b32 s31, s17
s_lshl_b32 s{XS}, {D0}, 7
s_mul_i32 s{WSS}, {D0}, {64 * 3456}
""")
emit_dma(vmA, dmax(0))
tlb_touch()
stamp(7)
srd(56, 34, 35, None, 0 if "now2" in OPT else 1728 * 1280)
a("s_lshr_b32 s10, s2, 6\ns_cmp_eq_u32 s10, 2\ns_cbranch_scc1 L_a_gate")
a(f"""
s_cmp_lg_u32 {J}, 15
s_cbranch_scc1 L_a_notag
s_cmp_lg_u32 {WAVE}, 0
s_cbranch_scc1 L_a_notag
s_memrealtime s[12:13]
s_waitcnt lgkmcnt(0)
{"s_mov_b32 s12, s100" if "entryclk" in OPT else ""}
s_or_b32 s12, s12, 1
v_mov_b32 v40, s12
v_mov_b32 v41, 0
s_mov_b64 exec, 1
global_atomic_cmpswap {ZERO}, v[40:41], {DBG} sc1
s_mov_b64 exec, -1
L_a_notag:
""")
a(f"""
s_lshr_b32 s9, s2, 1
s_mul_i32 s9, s9, 40960
s_and_b32 s12, s2, 1
s_mul_i32 s13, s12, 640
s_add_u32 s13, s13, s9
s_mul_i32 s10, {WAVE}, 10240
s_add_u32 s13, s13, s10
v_lshrrev_b32 v7, 3, {LANE}
""")
for m in range(5):
    a(f"""
    v_add_u32 v42, {8 * m}, v7
    v_mul_u32_u24 v42, 13, v42
    v_lshrrev_b32 v42, 6, v42
    v_and_b32 v43, 6, v42
    v_xor_b32 v43, v43, {LANE}
    v_mul_u32_u24 v42, 640, v42
    v_lshl_add_u32 v42, v43, 4, v42
    v_add_u32 v{92 + m}, s13, v42
    """)
a(f"""
v_add_u32 v96, 4096, v96
s_mul_i32 s10, {WAVE}, 5120
s_add_u32 s10, s10, {L_W2}
""")
q0 = list(vmA.q)
for m in range(5):
    a(f"s_add_u32 m0, s10, {4096 if m == 4 else 0}")
    vmA.issue("pre", f"buffer_load_dwordx4 v{92 + m}, {SRDC}, 0 offen offset:{1024 * (m & 3)} nt lds")
a(f"""
s_mul_i32 s12, s12, 20480
s_add_u32 s12, s12, s9
s_add_u32 s12, s12, {W2F}
s_lshl_b32 s10, {WAVE}, 10
s_add_u32 s12, s12, s10
s_cmp_lt_u32 s2, 108
s_cselect_b32 s10, 0, {OOB}
v_mov_b32 {VPF}, s10
s_add_u32 s12, s12, s10
v_add_u32 {VPS}, s12, {L16}
s_lshl_b32 {PF2}, s2, 4
s_lshl_b32 s10, {WAVE}, 2
s_add_u32 {PF2}, {PF2}, s10
s_add_u32 {PF2}, {PF2}, {WFLAG}
v_lshrrev_b32 v40, 2, {LANE}
v_mul_u32_u24 v234, 640, v40
v_bfe_u32 v40, {LANE}, 3, 2
v_xor_b32 v40, {WAVE}, v40
v_lshl_add_u32 v234, v40, 5, v234
v_and_b32 v40, 3, {LANE}
v_lshl_add_u32 v234, v40, 3, v234
v_add_u32 v234, {L_W2}, v234
s_branch L_a_join
L_a_gate:
""")
gate_addr()
vmA.q = q0
gate_loads(vmA)
a("L_a_join:")
a(f"s_mov_b32 {KCB}, {L_KC}\ns_mul_i32 {CHB}, {WT}, {CHP}\ns_add_u32 {CHB}, {CHB}, {CPB}")
for l in kgen_addr():
    a(l)
for D in range(1, 10):
    for l in soff(D):
        a(l)
g1_setup_c()
for l in late_addr():
    a(l)
a(f"""
s_lshl_b32 s10, {WT}, 4
s_waitcnt lgkmcnt(0)
s_lshr_b32 s66, s66, s10
s_lshl_b32 s66, s66, 16
s_lshr_b32 s69, s69, s10
s_lshl_b32 s69, s69, 16
""")
KS = kgen_sections()
a("s_sub_u32 s60, s60, 60000")
vmA.wait("par")
stamp(8)
pend = dmaw(0) + dmaw(1) + dmax(1) + dmaw(2) + dmaw(3) + dmax(2) + dmaw(4) + dmaw(5)
for n, sec in enumerate(KS):
    for l in sec:
        a(l)
    emit_dma(vmA, pend[:4])
    pend = pend[4:]
    if n == 1:
        ut_step(vmA, 72)
    if n == 3:
        vmA.wait("pre", "ut")
        a("s_barrier")
        get_tag()
        flag_store(vmA, UFO, VUT)
        prep_block(vmA)
assert not pend
srd(56, 42, 43, W2F, 54 * 40960); k_order()
pair_addr()
if "expre" in OPT:
    a("s_waitcnt lgkmcnt(0)\ns_barrier")
    expansion()
stamp(9)


def gemm1(vm):
    a("L_g1_loop:")
    ACC = 64
    WF, XF = [128, 160], [144, 176]

    def reads(ks):
        s = ks & 1
        L = []
        for i in range(4):
            L.append(f"ds_read_b128 {vr(XF[s] + 4 * i, 4)}, v{VXR[s]} offset:{XB + ((ks >> 1) % 3) * 16384 + 2048 * i}")
            L.append(f"ds_read_b64_tr_b16 {vr(WF[s] + 4 * i, 2)}, v{VWR[i]} offset:{(ks % NWS) * 8192}")
            L.append(f"ds_read_b64_tr_b16 {vr(WF[s] + 4 * i + 2, 2)}, v{VWR[i]} offset:{(ks % NWS) * 8192 + 1024}")
        return L

    vm.wait("x0", "w0", "pre", "ut", extra="lgkmcnt(0)")
    a("s_barrier")
    stamp(1)
    for l in reads(0):
        a(l)
    misc = []
    ops = uload_ops() + wload_ops()[:NEARLY]
    for ks in range(20):
        s = ks & 1
        B2 = "bar1" not in OPT
        if B2 and ks % 2 == 0 and ks > 0:
            vm.wait(*(["look"] if ks == CHECKAT else []), extra="lgkmcnt(0)")
        elif ks < 19:
            vm.wait(f"x{(ks + 1) >> 1}", f"w{ks + 1}", *([f"w{ks + 2}"] if B2 and ks else []), *(["look"] if ks == CHECKAT else []), *(["pst"] if ks == 0 else []), extra="lgkmcnt(0)")
            a("s_barrier")
        else:
            a("s_waitcnt lgkmcnt(0)")
        if ks in (5, 10, 15) and "g2st" not in OPT and "cvst" not in OPT:
            stamp(9 + ks // 5)
        if ks == 0:
            flag_store(vm, PF2, VPF)
        if ks == CHECKAT:
            poll(VWFL, LOOK1, first_issued=True)
            poll(VUFL, LOOK2, first_issued=True)
        rd_ = reads(ks + 1) if ks < 19 else []
        dm = []
        kw = ks + NWS - (1 if B2 else 0)
        if kw < 20 and kw >= NWS:
            dm += dmaw(kw)
        if ks >= 1:
            D = (ks - 1) // 2 + 3
            if D < 10:
                dm += dmax(D, (0, 1) if ks & 1 else (2, 3))
        n = 0
        for ft in range(4):
            for tt in range(4):
                d = vr(ACC + 16 * ft + 4 * tt, 4)
                slot = n % 4 == 1 if ks < 15 else n % 3 == 1
                g = dm.pop(0) if (dm and slot) else None
                if g:
                    a(g[0])
                a(f"v_mfma_f32_16x16x32_bf16 {d}, {vr(WF[s] + 4 * ft, 4)}, {vr(XF[s] + 4 * tt, 4)}, {'0' if ks == 0 else d}")
                if g:
                    vm.issue(g[2], g[1])
                elif ks >= CHECKAT and ops and (slot or ks == 19):
                    emit_op(vm, ops.pop(0))
                elif rd_:
                    a(rd_.pop(0))
                    if rd_ and n % 4 == 2:
                        a(rd_.pop(0))
                elif misc:
                    for _ in range(2):
                        if misc:
                            a(misc.pop(0))
                if ks == LOOKAT and n == 15:
                    assert not misc
                    vm.issue("look", f"buffer_load_dword {LOOK1}, {VWFL}, {WSRD}, 0 offen sc1")
                    vm.issue("look", f"buffer_load_dword {LOOK2}, {VUFL}, {WSRD}, 0 offen sc1")
                n += 1
        assert not dm and not rd_
    assert not ops
    stamp(2)


def h_publish(vm=vmA, ACC=64):
    a(f"""
    s_lshl_b32 {RB}, {RB}, 1
    s_add_u32 {RB}, {RB}, {WT}
    s_lshl_b32 {CT}, {CT}, 1
    s_add_u32 {CT}, {CT}, {WF_}
    s_mul_i32 s16, {RB}, {54 * 4096}
    s_lshl_b32 s10, {CT}, 13
    s_add_u32 s16, s16, s10
    s_add_u32 s16, s16, {HF}
    s_add_u32 s17, s16, 4096
    s_lshl_b32 {HFO}, {RB}, 7
    s_lshl_b32 s10, {CT}, 2
    s_add_u32 {HFO}, {HFO}, s10
    s_cmp_lt_u32 {CT}, 27
    s_cselect_b32 s10, 0, {OOB}
    v_add_u32 {VUT}, s10, {L16}
    """)
    t = 160
    for m in range(2):
        for tt in range(4):
            for h in range(2):
                r = ACC + 16 * (2 * m + h) + 4 * tt
                a(f"v_cvt_pk_bf16_f32 v{t + 2 * h}, v{r}, v{r + 1}\nv_cvt_pk_bf16_f32 v{t + 2 * h + 1}, v{r + 2}, v{r + 3}")
            for k in range(4):
                a(f"v_pk_max_i16 v{t + k}, v{t + k}, 0")
            vm.issue("hst", f"buffer_store_dwordx4 {vr(t, 4)}, {VUT}, {WSRD}, s{16 + m} offen offset:{1024 * tt} sc1")
            t += 4


gemm1(vmA)
gops = wload_ops()[NEARLY:NEARLY + NGAP]
if "expre" in OPT:
    h_publish()
else:
    expansion(h_publish)
for _ in range(6):
    emit_op(vmA, gops.pop(0))

HSLOT = [192, 208, 88, 104, 120, 136]
NH = 6


def hload(vm, i, k):
    vm.issue(f"h{i}_{k}", f"buffer_load_dwordx4 {vr(HSLOT[i % NH] + 4 * k, 4)}, {HV[k]}, {SRDB}, s{22 + i} offen sc1")


ROWS = [[(i, k) for k in range(4)] for i in range(11)]
g_ = [(i, k) for k in (1, 2, 3, 0) for i in range(11, 14)]
ROWS += [g_[0:4], g_[4:8], g_[8:12]]
HORDER = [x for r in ROWS for x in r]


def conv(vm, ops, rounds):
    main = rounds == 1
    if main:
        a(f"v_add_u32 v17, {CPB}, {VUL}")
        vm.wait("u")
        for n in range(2):
            a(f"ds_write_b128 v17, {vr(24 + 4 * n, 4)} offset:{L_U + 512 + 2048 * n}")
    a(f"""
    s_lshl_b32 s10, {WF_}, 6
    s_sub_u32 s10, {CHB}, s10
    v_and_b32 v19, 1, {L15}
    v_mul_u32_u24 v19, {L_KO - 2 - L_KE}, v19
    v_lshl_add_u32 v19, {G4}, 4, v19
    v_lshlrev_b32 v18, 1, {L15}
    v_sub_u32 v19, v19, v18
    v_add_u32 v19, s10, v19
    v_add_u32 v20, {L_KE + 4064 - 512}, v19
    v_add_u32 v21, {L_KE + 4064 - 512 * 3}, v19
    v_add_u32 v22, {L_KE + 4064 - 512 * 5}, v19
    v_add_u32 v23, {L_KE + 4064 - 512 * 7}, v19
    v_lshlrev_b32 v19, 5, {L15}
    v_lshl_add_u32 v19, {G4}, 4, v19
    v_add_u32 v19, s10, v19
    v_add_u32 v19, {L_U + 480}, v19
    s_waitcnt lgkmcnt(0)
    s_barrier
    """)
    stamp(3)
    ACCS = [32, 192]
    AS, BS = [64, 128], [96, 160]

    def loads(g):
        s = g & 1
        L = []
        for m in range(8):
            L.append(f"ds_read_b128 {vr(BS[s] + 4 * m, 4)}, v19 offset:{512 * m}")
        for q in range(8):
            o = 128 if q % 2 == 0 else 0
            r = AS[s] + 4 * q
            L.append(f"ds_read2_b32 {vr(r, 2)}, v{20 + q // 2} offset0:{o} offset1:{o + 1}")
            L.append(f"ds_read2_b32 {vr(r + 2, 2)}, v{20 + q // 2} offset0:{o + 2} offset1:{o + 3}")
        for r in range(19, 24):
            L.append(f"v_add_u32 v{r}, {2 * CHP + 384}, v{r}" if g % 4 == 3 else f"v_subrev_u32 v{r}, 128, v{r}")
        return L

    def send(ACC):
        l1, l2 = a.newlabel("Lx"), a.newlabel("Lx")
        a(f"s_cmp_eq_u32 {WF_}, 1\ns_cbranch_scc1 {l1}\ns_nop 5")
        for j in range(4):
            a(f"ds_write_b128 v17, {vr(ACC + 16 + 4 * j, 4)} offset:{1024 * j}")
        a(f"s_branch {l2}\n{l1}:\ns_nop 5")
        for j in range(4):
            a(f"ds_write_b128 v17, {vr(ACC + 4 * j, 4)} offset:{1024 * j}")
        a(f"{l2}:")

    def recv(ACC):
        l1, l2 = a.newlabel("Lx"), a.newlabel("Lx")
        a(f"s_cmp_eq_u32 {WF_}, 1\ns_cbranch_scc1 {l1}")
        for j in range(4):
            a(f"ds_read_b128 {vr(ACC + 16 + 4 * j, 4)}, v18 offset:{1024 * j}")
        a(f"s_branch {l2}\n{l1}:")
        for j in range(4):
            a(f"ds_read_b128 {vr(ACC + 4 * j, 4)}, v18 offset:{1024 * j}")
        a(f"{l2}:")

    def out_lines(ACC):
        L = []
        for j in range(4):
            L += [f"v_pk_add_f32 {vr(ACC + 4 * j, 2)}, {vr(ACC + 4 * j, 2)}, {vr(ACC + 16 + 4 * j, 2)}",
                  f"v_pk_add_f32 {vr(ACC + 4 * j + 2, 2)}, {vr(ACC + 4 * j + 2, 2)}, {vr(ACC + 18 + 4 * j, 2)}",
                  f"v_cvt_pk_bf16_f32 v{24 + 2 * j}, v{ACC + 4 * j}, v{ACC + 4 * j + 1}", f"v_cvt_pk_bf16_f32 v{25 + 2 * j}, v{ACC + 4 * j + 2}, v{ACC + 4 * j + 3}"]
        for jp in range(2):
            L += [f"v_permlane16_swap_b32 v{24 + 4 * jp}, v{26 + 4 * jp}", f"v_permlane16_swap_b32 v{25 + 4 * jp}, v{27 + 4 * jp}"]
        return L

    def out_store():
        for jp in range(2):
            vm.issue("ast", f"buffer_store_dwordx4 {vr(24 + 4 * jp, 4)}, {VPS}, {WSRD}, s16 offen offset:{1024 * jp} sc1")

    for l in loads(0):
        a(l)
    misc = f"""
    s_lshl_b32 s10, {WAVE}, 12
    s_add_u32 s10, s10, {L_W2}
    v_add_u32 v17, s10, {L16}
    s_xor_b32 s10, {WAVE}, 1
    s_lshl_b32 s10, s10, 12
    s_add_u32 s10, s10, {L_W2}
    v_add_u32 v18, s10, {L16}
    v_lshlrev_b32 {VPS}, 5, {L15}
    v_lshrrev_b32 {VPF}, 1, {G4}
    v_lshl_add_u32 {VPS}, {VPF}, 4, {VPS}
    v_and_b32 {VPF}, 1, {G4}
    v_lshl_add_u32 {VPS}, {VPF}, 9, {VPS}
    s_lshl_b32 s16, {CP}, 13
    s_add_u32 s16, s16, {W2K}
    s_add_u32 s16, s16, {AG}
    s_mul_i32 {PFO}, {WF_}, 2560
    s_lshl_b32 s10, {CP}, 3
    s_add_u32 {PFO}, {PFO}, s10
    s_lshl_b32 s10, {WT}, 2
    s_add_u32 {PFO}, {PFO}, s10
    s_add_u32 {PFO}, {PFO}, {AFLAG}
    """.strip().split("\n")
    tail_ops = [ops.pop() for _ in range(WTAIL if main else 0)][::-1]
    every = max(3, 130 // max(1, len(ops))) if main else 4
    for g in range(4 * rounds):
        r, p, s = g // 4, g % 4, g & 1
        ACC = ACCS[r & 1]
        nxt = loads(g + 1) if g + 1 < 4 * rounds else []
        a("s_waitcnt lgkmcnt(0)")
        if "phases" in OPT:
            stamp(g + 1, True)
        extra = []
        if main and "cvst" in OPT and p == HP:
            stamp(10)
        if main and p == HP:
            vm.wait("hst")
            flag_store(vm, HFO, VUT)
        if main and "cvst" in OPT and p == HP:
            stamp(11)
        if main and "cvst" in OPT and p == 3:
            stamp(12)
        if not main and "cvst" in OPT and g in (4, 8):
            stamp(10 + g // 4)
        if r > 0 and p == 1:
            a("s_barrier")
            recv(ACCS[(r - 1) & 1])
        if r > 0 and p == 2:
            a("s_barrier")
            extra = out_lines(ACCS[(r - 1) & 1])
        if r > 0 and p == 3:
            out_store()
            a("s_add_u32 s16, s16, 8192")
        if r > 1 and p == 1:
            vm.wait("ast")
            flag_store(vm, PFO, ZERO)
            a(f"s_add_u32 {PFO}, {PFO}, 8")
        if not main and g == 3:
            vm.wait("look")
            poll(VWFL, LOOK1, first_issued=True, nap=8)
        n = 0
        for q in range(8):
            for j in range(q, 8):
                c = "0" if (p == 0 and q == 0) else vr(ACC + 4 * j, 4)
                a(f"v_mfma_f32_16x16x32_bf16 {vr(ACC + 4 * j, 4)}, {vr(AS[s] + 4 * q, 4)}, {vr(BS[s] + 4 * (j - q), 4)}, {c}")
                isop = ops and n % every == every - 1 and (main or g >= 3)
                if isop:
                    emit_op(vm, ops.pop(0))
                if "share" in OPT:
                    if nxt:
                        a(nxt.pop(0))
                    if not isop:
                        if extra:
                            a(extra.pop(0))
                        elif misc:
                            a(misc.pop(0))
                elif not isop:
                    if nxt:
                        a(nxt.pop(0))
                        if nxt and len(nxt) > (35 - n) * (every - 1) // every - 1:
                            a(nxt.pop(0))
                        elif extra:
                            a(extra.pop(0))
                    else:
                        for _ in range(2):
                            if extra:
                                a(extra.pop(0))
                            elif misc:
                                a(misc.pop(0))
                if not main and g == 1 and n == 30:
                    vm.issue("look", f"buffer_load_dword {LOOK1}, {VWFL}, {WSRD}, 0 offen sc1")
                if g == 4 * rounds - 1 and n == 30:
                    vm.issue("look", f"buffer_load_dword {LOOK1}, {VHFL}, {WSRD}, 0 offen sc1")
                n += 1
        for l in nxt + extra + (misc if p == 2 else []):
            a(l)
        if p == 2:
            misc = []
        if p == 3:
            if g == 4 * rounds - 1:
                stamp(4)
            send(ACC)
            if g == 4 * rounds - 1:
                for op in tail_ops:
                    emit_op(vm, op)
    assert not misc and not ops
    if not main:
        vm.wait("ast")
        flag_store(vm, PFO, ZERO)
        a(f"s_add_u32 {PFO}, {PFO}, 8")
    a("s_waitcnt lgkmcnt(0)\ns_barrier")
    recv(ACCS[0])
    a("s_waitcnt lgkmcnt(0)")
    for l in out_lines(ACCS[0]):
        a(l)
    out_store()


conv(vmA, gops, 1)
q_g2 = list(vmA.q)
a("L_gemm2:")


def gemm2(vm):
    a(f"s_mul_i32 s10, {TB}, {54 * 4096}\ns_add_u32 s10, s10, {HF}")
    srd(52, 42, 43, "s10", 54 * 4096)
    for i in range(3):
        a(f"s_add_u32 s{22 + i}, {HSO}, {4096 * i}")
    vm.wait("look")
    poll(VHFL, LOOK1, first_issued=True)
    stamp(5)
    hq = list(HORDER)
    LEAD = opt_int("lead", 12)
    for n in range(LEAD):
        hload(vm, *hq.pop(0))
    wrest = wload_ops()[NEARLY + NGAP:]
    ACC = 8
    X, Y = 152, 172
    XW = Y + 12
    GA, AR, PR = 192, X + 8, 88
    for i in range(3, 14):
        a(f"s_add_u32 s{22 + i}, {HSO}, {4096 * i}")
    a(f"""
    s_mul_i32 s18, {WAVE}, 20480
    v_add_u32 v{XW}, s18, {L16}
    """)
    for k in range(1, 4):
        a(f"s_sub_u32 s10, {WAVE}, {k}\ns_and_b32 s10, s10, 3\ns_mul_i32 s10, s10, 20480\nv_add_u32 v{XW + k}, s10, {L16}")
    a(f"""
    s_lshr_b32 s10, {TB}, 4
    s_mul_i32 s10, s10, 2560
    s_mul_i32 s16, {CS}, 320
    s_add_u32 s10, s10, s16
    s_add_u32 s10, s10, {AFLAG}
    v_lshl_add_u32 v{X + 5}, {LANE}, 3, s10
    s_lshl_b32 s10, {TB}, 2
    s_add_u32 s10, s10, {WAVE}
    s_lshl_b32 s10, s10, 3
    s_add_u32 s10, s10, {GFLAG}
    v_mov_b32 v{X + 6}, s10
    v_cmp_gt_u32 vcc, 40, {LANE}
    v_lshrrev_b32 v{X + 2}, 5, {LANE}
    v_bfe_u32 v{X + 3}, {LANE}, 3, 2
    v_cndmask_b32 v{X + 5}, v{X + 6}, v{X + 5}, vcc
    v_lshl_add_u32 v{X + 2}, v{X + 2}, 4, v{X + 3}
    v_and_b32 v{X + 3}, 7, {LANE}
    v_lshlrev_b32 v{X + 2}, 12, v{X + 2}
    v_lshl_add_u32 v{X + 2}, v{X + 3}, 4, v{X + 2}
    s_mul_i32 s16, {CS}, {80 * 4096}
    s_lshl_b32 s10, {TB}, 7
    s_add_u32 s16, s16, s10
    s_add_u32 s16, s16, {AG}
    s_lshl_b32 s17, {TB}, 8
    s_lshl_b32 s10, {WAVE}, 6
    s_add_u32 s17, s17, s10
    s_add_u32 s17, s17, {G_OFF}
    v_lshlrev_b32 v{X + 3}, 2, {L15}
    s_lshl_b32 s20, {WAVE}, 14
    s_lshl_b32 s19, {TB}, 6
    s_lshl_b32 s10, {WAVE}, 4
    s_add_u32 s19, s19, s10
    s_mul_i32 s19, s19, 1280
    s_mul_i32 s10, {CS}, 160
    s_add_u32 s19, s19, s10
    s_mov_b32 s48, s38
    s_mov_b32 s49, s39
    s_mov_b32 s50, {2048 * 1280}
    s_mov_b32 s51, 0x20000
    s_add_u32 s21, s18, 17920
    v_mul_u32_u24 v{Y + 4}, 160, {L15}
    v_lshl_add_u32 v{Y + 4}, {G4}, 3, v{Y + 4}
    v_add_u32 v{Y + 4}, s21, v{Y + 4}
    v_mul_u32_u24 v{Y + 5}, 20480, {G4}
    v_bfe_u32 v{Y + 6}, {LANE}, 2, 2
    v_lshl_add_u32 v{Y + 5}, v{Y + 6}, 7, v{Y + 5}
    v_and_b32 v{Y + 6}, 3, {LANE}
    v_lshl_add_u32 v{Y + 5}, v{Y + 6}, 3, v{Y + 5}
    s_lshl_b32 s10, {WAVE}, 5
    s_add_u32 s10, s10, 15360
    v_add_u32 v{Y + 5}, s10, v{Y + 5}
    """)
    for n in range(3):
        q, r_, ga = Y + 6, Y + 7, Y + 8 + n
        a(f"v_add_u32 v{q}, {64 * n}, {LANE}\nv_mul_u32_u24 v{r_}, 205, v{q}\nv_lshrrev_b32 v{r_}, 11, v{r_}\nv_mul_u32_u24 v{r_}, 1120, v{r_}\nv_lshl_add_u32 v{ga}, v{q}, 4, v{r_}")
    vm.wait("ast")
    flag_store(vm, PFO, ZERO)
    done = set()
    wq = []
    ALOOK, ACHK = opt_int("alook", 8), opt_int("achk", 11)
    for i, rw in enumerate(ROWS):
        if 1 <= i <= 12 and 'phases' not in OPT:
            stamp(i, True)
        if i == ALOOK:
            vm.issue("look", f"buffer_load_dwordx2 {vr(X + 6, 2)}, v{X + 5}, {WSRD}, 0 offen sc1")
        if i == ACHK:
            assert not wrest
            vm.wait("look")
            lab = a.newlabel("La")
            a(f"v_cmp_ne_u32 vcc, {TAG}, v{X + 6}\nv_cmp_ne_u32 s[12:13], {TAG}, v{X + 7}\ns_or_b64 vcc, vcc, s[12:13]\ns_cbranch_scc0 {lab}")
            poll(f"v{X + 5}", f"v{X + 6}")
            a(f"v_add_u32 v{X + 5}, 4, v{X + 5}")
            poll(f"v{X + 5}", f"v{X + 6}")
            a(f"{lab}:\ns_add_u32 s56, s42, s16\ns_addc_u32 s57, s43, 0\ns_mov_b32 s58, {80 * 4096 - 3968}")
            wrest = [(f"s_add_u32 m0, s18, {15360 + 1024 * m}\ns_nop 0\nbuffer_load_dwordx4 v{X + 2}, {SRDC}, s20 offen sc1 lds", "ag", f"s_add_u32 s20, s20, {32 * 4096}") for m in range(3)]
            wrest += [(f"buffer_load_dword v{X + 4}, v{X + 3}, {WSRD}, s17 offen sc1", "ag", None)]
        n = 0
        for (x, k) in rw:
            vm.wait(f"h{x}_{k}", f"W{x}")
            for dt in range(5):
                d = vr(ACC + 20 * k + 4 * dt, 4)
                a(f"v_mfma_f32_16x16x32_bf16 {d}, {WSLOT[5 * x + dt]}, {vr(HSLOT[x % NH] + 4 * k, 4)}, {'0' if x == 0 else d}")
                if wq and wq[0][0] <= 20 * i + n:
                    a(wq.pop(0)[1])
                if dt == 4:
                    done.add((x, k))
                if dt == 2 and hq and (hq[0][0] < NH or (hq[0][0] - NH, hq[0][1]) in done):
                    hload(vm, *hq.pop(0))
                elif dt == 0 and wrest:
                    emit_op(vm, wrest.pop(0))
                n += 1
            if x == 13 and k:
                wq += [(20 * i + n + 1 + 3 * dt, f"ds_write_b128 v{XW}, {vr(ACC + 20 * k + 4 * dt, 4)} offset:{5120 * (k - 1) + 1024 * dt}") for dt in range(5)]
    for _, w in wq:
        a(w)
    assert not hq and not wrest
    stamp(6)
    a(f"""
    s_waitcnt vmcnt(0) lgkmcnt(0)
    s_barrier
    """)
    for dt in range(5):
        a(f"ds_read_b64_tr_b16 {vr(AR + 2 * dt, 2)}, v{Y + 5} offset:{512 * dt}")
    for k in range(1, 4):
        for dt in range(5):
            a(f"ds_read_b128 {vr(PR + 20 * (k - 1) + 4 * dt, 4)}, v{XW + k} offset:{5120 * (k - 1) + 1024 * dt}")
    a(f"""
    v_sub_f32 v{X + 6}, 1.0, v{X + 4}
    v_cvt_pk_bf16_f32 v{X + 6}, v{X + 6}, v{X + 6}
    v_and_b32 v{X + 6}, 0xffff0000, v{X + 6}
    s_waitcnt lgkmcnt(15)
    """)
    for i in range(10):
        a(f"v_lshlrev_b32 v{GA + 2 * i}, 16, v{AR + i}\nv_and_b32 v{GA + 2 * i + 1}, 0xffff0000, v{AR + i}")
    for i in range(10):
        a(f"v_pk_mul_f32 {vr(GA + 2 * i, 2)}, {vr(GA + 2 * i, 2)}, {vr(X + 4, 2)} op_sel_hi:[1,0]")
    for k in range(2):
        a(f"s_waitcnt lgkmcnt({10 - 5 * k})")
        for i in range(10):
            a(f"v_pk_add_f32 {vr(ACC + 2 * i, 2)}, {vr(ACC + 2 * i, 2)}, {vr(PR + 20 * k + 2 * i, 2)}")
    a("s_waitcnt lgkmcnt(0)")
    for dt in range(5):
        for x in (2 * dt, 2 * dt + 1):
            a(f"v_pk_add_f32 {vr(ACC + 2 * x, 2)}, {vr(ACC + 2 * x, 2)}, {vr(PR + 40 + 2 * x, 2)}")
        for x in (2 * dt, 2 * dt + 1):
            a(f"v_pk_fma_f32 {vr(GA + 2 * x, 2)}, {vr(ACC + 2 * x, 2)}, {vr(X + 6, 2)}, {vr(GA + 2 * x, 2)} op_sel_hi:[1,0,1]")
        a(f"v_cvt_pk_bf16_f32 v{AR + 2 * dt}, v{GA + 4 * dt}, v{GA + 4 * dt + 1}\nv_cvt_pk_bf16_f32 v{AR + 2 * dt + 1}, v{GA + 4 * dt + 2}, v{GA + 4 * dt + 3}")
        a(f"ds_write_b64 v{Y + 4}, {vr(AR + 2 * dt, 2)} offset:{32 * dt}")
    for n in range(3):
        a(f"ds_read_b128 {vr(PR + 4 * n, 4)}, v{XW} offset:{17920 + 1024 * n}")
    for n in range(3):
        a(f"s_waitcnt lgkmcnt({2 - n})")
        if n == 2:
            a("s_mov_b32 exec_hi, 0")
        a(f"buffer_store_dwordx4 {vr(PR + 4 * n, 4)}, v{Y + 8 + n}, {SRDA}, s19 offen nt")
    if DIAG:
        a("s_mov_b64 exec, -1\ns_waitcnt vmcnt(0)")
        stamp(13)
        a(f"""
        s_lshl_b32 s10, s2, 8
        s_lshl_b32 s11, {WAVE}, 6
        s_add_u32 s10, s10, s11
        s_add_u32 s10, s10, {STAMP}
        s_mov_b64 exec, 1
        """)
        for i in range(14):
            a(f"v_mov_b32 v{8 + i}, s{74 + 2 * i}")
        for i in range(4):
            a(f"buffer_store_dwordx4 v[{8 + 4 * i}:{11 + 4 * i}], {ZERO}, {WSRD}, s10 offen offset:{16 * i}")
        if "dbgspan" in OPT:
            a(f"v_not_b32 v30, v8\nglobal_atomic_umax {ZERO}, v30, {DBG} offset:4 sc1")
            for k, i in enumerate((0, 1, 2, 3, 4, 5, 6, 13)):
                a(f"global_atomic_umax {ZERO}, v{8 + i}, {DBG} offset:{8 + 4 * k} sc1")
    if opt_int("holdus", 0):
        a(f"L_hold:\ns_memrealtime s[12:13]\ns_waitcnt lgkmcnt(0)\ns_sub_u32 s12, s12, {TAG}\ns_cmp_lt_u32 s12, {100 * opt_int('holdus', 0)}\ns_cbranch_scc1 L_hold")
    a("L_end:\ns_endpgm")


gemm2(vmA)


def typeC():
    vm = VM(a)
    a(f"""
    L_typeC:
    s_sub_u32 {CP}, s2, 224
    s_mul_i32 {CP}, {CP}, 3
    s_add_u32 {CP}, {CP}, 224
    s_mov_b32 {CPB}, 0
    s_mov_b32 {KCB}, {CB}
    s_lshl_b32 {W2K}, {WAVE}, 11
    s_mul_i32 {CHB}, {WT}, {CHP}
    s_lshl_b32 s10, {CP}, 9
    v_lshl_add_u32 v68, v0, 1, s10
    s_lshl_b32 s69, {CP}, 2
    s_waitcnt lgkmcnt(0)
    {WSHIFT}
    """)
    param_loads(vm, 3)
    for r in range(3):
        a(f"s_load_dword s{48 + r}, {LDT}, s69\ns_load_dword s{52 + r}, {DSK}, s69\ns_add_u32 s69, s69, 4")
    a("s_mov_b32 s44, s42\ns_mov_b32 s45, s43\ns_mov_b32 s30, s16\ns_mov_b32 s31, s17")
    tlb_touch("C0")
    for l in kgen_addr() + late_addr():
        a(l)
    srd(56, 42, 43, W2F, 54 * 40960); k_order()
    a(f"s_lshl_b32 s10, {WF_}, 8\ns_add_u32 s10, s10, {CHB}\nv_lshl_add_u32 v70, {LANE}, 2, s10")
    a(f"ds_write_b32 v70, {ZERO} offset:{2 * CHP}\nds_write_b32 v70, {ZERO} offset:{4 * CHP}")
    a(f"s_lshl_b32 s10, {WT}, 4\ns_waitcnt lgkmcnt(0)")
    for r in range(3):
        for b, d in ((48, SDT), (52, SDS)):
            a(f"s_lshr_b32 s{d + r}, s{b + r}, s10\ns_lshl_b32 s{d + r}, s{d + r}, 16")
    a("s_waitcnt vmcnt(8)")
    stamp(8)
    K = [kgen_sections(CPAR[r], f"s{SDT + r}", f"s{SDS + r}", 2 * CHP * r) for r in range(3)]
    for l in K[0][0]:
        a(l)
    for r in range(3):
        for sec in K[r][1:5]:
            for l in sec:
                a(l)
        if r == 0:
            a("s_waitcnt vmcnt(0)")
            tlb_touch()
        if r == 1:
            a(f"global_load_dword {VTAG}, {ZERO}, {DBG} sc1")
        if r < 2:
            for l in K[r + 1][0]:
                a(l)
        else:
            a(f"""
            s_lshr_b32 s10, {CP}, 5
            s_lshl_b32 s10, s10, 8
            s_add_u32 s10, s10, {UFLAG}
            v_lshl_add_u32 v17, {LANE}, 2, s10
            s_add_u32 s10, {CP}, 2
            s_lshr_b32 s10, s10, 5
            s_lshl_b32 s10, s10, 8
            s_add_u32 s10, s10, {UFLAG}
            v_lshl_add_u32 {VUFL}, {LANE}, 2, s10
            s_waitcnt vmcnt(0)
            buffer_load_dword {LOOK2}, {VUFL}, {WSRD}, 0 offen sc1
            buffer_load_dword v18, v17, {WSRD}, 0 offen sc1
            """)
            get_tag()
        for l in K[r][5]:
            a(l)
        if r < 2:
            for x in range(TW, TR + 1):
                a(f"v_add_u32 v{x}, {2 * CHP}, v{x}")
            for x in range(228, 232):
                a(f"v_add_u32 v{x}, 12288, v{x}")
    stamp(1)
    a("s_waitcnt lgkmcnt(0)\ns_barrier")
    for r in range(3):
        expansion()
        a(f"s_add_u32 {CHB}, {CHB}, {2 * CHP}\ns_add_u32 {KCB}, {KCB}, 12288")
        if r == 0:
            stamp(9)
            a("s_waitcnt vmcnt(0)")
            poll(VUFL, LOOK2, first_issued=True, nap=8)
            poll("v17", "v18", first_issued=True, nap=8)
            stamp(10)
            a(f"s_lshl_b32 {ULO}, {CP}, 7\ns_add_u32 {ULO}, {ULO}, {UT}\ns_add_u32 s10, {ULO}, {32 * 40960}")
            for q in range(3):
                a(f"buffer_load_dwordx4 {vr(64 + 8 * q, 4)}, {VUG}, {WSRD}, {ULO} offen offset:{128 * q} sc1")
                a(f"buffer_load_dwordx4 {vr(68 + 8 * q, 4)}, {VUG}, {WSRD}, s10 offen offset:{128 * q} sc1")
    a(f"s_mul_i32 {CHB}, {WT}, {CHP}\ns_waitcnt vmcnt(0)")
    for r in range(3):
        for n in range(2):
            a(f"ds_write_b128 {VUL}, {vr(64 + 8 * r + 4 * n, 4)} offset:{2 * CHP * r + L_U + 512 + 2048 * n}")
    stamp(2)
    vm.q = []
    conv(vm, wload_ops()[:NEARLY + NGAP], 3)
    vm.wait("look")
    assert q_g2[-2:] == ["ast", "ast"] and vm.q[-2:] == ["ast", "ast"]
    a("s_branch L_gemm2\nL_code1:")


typeC()

body = a.render()
head = open(f"cdna_kernels/{NAME}.s.ref").read().split("; Override launch")[0]
text = head + f"""; Generated by the author's own generator script; single fused kernel, one workgroup per CU.
; @launch grid=(256,1,1) block=(256,1,1) lds=163840
.amdgcn_target "amdgcn-amd-amdhsa--gfx950"
.text
.globl {NAME}_kernel
.p2align 8
.type {NAME}_kernel,@function
{NAME}_kernel:
{body}.section .rodata,"a"
.p2align 6
.amdhsa_kernel {NAME}_kernel
  .amdhsa_next_free_vgpr 512
  .amdhsa_next_free_sgpr 102
  .amdhsa_accum_offset 256
  .amdhsa_group_segment_fixed_size 0
  .amdhsa_kernarg_size 112
  .amdhsa_user_sgpr_count 2
  .amdhsa_user_sgpr_kernarg_segment_ptr 1
  .amdhsa_system_sgpr_workgroup_id_x 1
.end_amdhsa_kernel
"""
open(OUT, "w").write(text)
print("wrote", OUT, "lines", text.count("\n"), "auto nops", a.nops)
```

```python
import sys, struct
from asmlib import Asm, VM

NAME = "gated_mix__ssm_conv_s4d__dense_activation_relu__prompt"
DIAG = "--diag" in sys.argv
OPT = set(x[2:] for x in sys.argv if x.startswith("--"))
OUT = [x for x in sys.argv[1:] if not x.startswith("--")]
OUT = OUT[0] if OUT else f"cdna_kernels/{NAME}.s"

HFLAG, UFLAG, G_OFF, WFLAG, GFLAG, AFLAG = 0x0, 0x1000, 0x2000, 0x5000, 0x5800, 0x6000
UT = 0x10000
W2F = UT + 64 * 40960
HF = W2F + 54 * 40960
AG = HF + 32 * 54 * 4096
STAMP = AG + 160 * 16384
WS_END = STAMP + 512 * 4 * 64
SPIN_LIMIT = 400000
OOB = 0x40000000
WSHIFT = "\ns_add_u32 s42, s42, 0xF000000\ns_addc_u32 s43, s43, 0" if "wsend" in OPT else ""

XB, WB, CB = 0, 49152, 98304
NWS = 6
L_U, L_KE, L_KO, CHP = 0, 4608, 9280, 13952
L_KC = CB + 2 * CHP
L_W2 = L_KC + 4 * 3072
L_AT = 81920
TP = 288


def f32(x):
    return "0x%08x" % struct.unpack("<I", struct.pack("<f", x))[0]


def vr(b, n=1, f="v"):
    return f"{f}{b}" if n == 1 else f"{f}[{b}:{b + n - 1}]"


a = Asm()
LOGA, AIM, CR, CI, LDT, DSK = "s[18:19]", "s[20:21]", "s[22:23]", "s[24:25]", "s[26:27]", "s[28:29]"
DBG, WSRD = "s[40:41]", "s[44:47]"
SRDA, SRDB, SRDC = "s[48:51]", "s[52:55]", "s[56:59]"
WAVE, TAG, XCD, J = "s3", "s4", "s5", "s6"
RB, CT = "s7", "s8"
W2K, WT, WF_ = "s11", "s14", "s15"
XS, WSS = 16, 26
HFO, W4K, D0, UTO, UFO = "s60", "s62", "s63", "s64", "s65"
CP, CPB, CHB, PFO, PF2 = "s67", "s70", "s61", "s71", "s68"
ULO = "s69"
TB, CS = "s72", "s73"
WSO, HSO = "s36", "s37"
LANE, ZERO = "v1", "v3"
VXS, VWS, VXR, VWR = [236, 237, 238, 239], [240, 241, 242, 243], [244, 245], [246, 247, 248, 249]
L16, VUT, VTAG = "v250", "v251", "v252"
L15, G4 = "v254", "v255"


def stamp(i, rowst=False):
    if DIAG and (('rows' in OPT) == rowst or i in (0, 13)):
        a(f"s_memrealtime s[{74 + 2 * i}:{75 + 2 * i}]\ns_waitcnt lgkmcnt(0)")


def srd(dst, lo, hi, off_s, size):
    if off_s is None:
        a(f"s_mov_b32 s{dst}, s{lo}\ns_mov_b32 s{dst + 1}, s{hi}")
    else:
        a(f"s_add_u32 s{dst}, s{lo}, {off_s}\ns_addc_u32 s{dst + 1}, s{hi}, 0")
    a(f"s_mov_b32 s{dst + 2}, {size}\ns_mov_b32 s{dst + 3}, 0x20000")


def poll(voff, vf, first_issued=False, nap=4):
    lp, chk, done = (a.newlabel(x) for x in ("Lp", "Lc", "Ld"))
    if first_issued:
        a(f"v_cmp_ne_u32 vcc, {TAG}, {vf}\ns_cmp_eq_u64 vcc, 0\ns_cbranch_scc1 {done}")
    a(f"""
    s_mov_b32 s66, 0
    {lp}:
    buffer_load_dword {vf}, {voff}, {WSRD}, 0 offen sc1
    s_waitcnt vmcnt(0)
    v_cmp_ne_u32 vcc, {TAG}, {vf}
    s_cmp_eq_u64 vcc, 0
    s_cbranch_scc1 {done}
    s_sleep {nap}
    s_add_u32 s66, s66, 1
    s_cmp_lt_u32 s66, {SPIN_LIMIT}
    s_cbranch_scc1 {lp}
    {done}:
    """)


def get_tag():
    lp, done = a.newlabel("Lt"), a.newlabel("Ld")
    a(f"""
    v_readfirstlane_b32 {TAG}, {VTAG}
    s_cmp_lg_u32 {TAG}, 0
    s_cbranch_scc1 {done}
    s_mov_b32 s66, 0
    {lp}:
    global_load_dword {VTAG}, {ZERO}, {DBG} sc1
    s_waitcnt vmcnt(0)
    v_readfirstlane_b32 {TAG}, {VTAG}
    s_cmp_lg_u32 {TAG}, 0
    s_cbranch_scc1 {done}
    s_sleep 2
    s_add_u32 s66, s66, 1
    s_cmp_lt_u32 s66, {SPIN_LIMIT}
    s_cbranch_scc1 {lp}
    {done}:
    """)


def flag_store(vm, soff, voff):
    a("s_mov_b64 exec, 1")
    vm.issue("fl", f"buffer_store_dword {VTAG}, {voff}, {WSRD}, {soff} offen sc1")
    a("s_mov_b64 exec, -1")


def dmax(D, ms=range(4)):
    return [(f"s_add_u32 m0, {W4K}, {XB + (D % 3) * 16384 + 1024 * m}",
             f"buffer_load_dwordx4 v{VXS[m]}, {SRDA}, s{XS + D} offen lds", f"x{D}") for m in ms]


def dmaw(ks):
    return [(f"s_add_u32 m0, {W2K}, {WB + (ks % NWS) * 8192 + 1024 * m}",
             f"buffer_load_dwordx4 v{VWS[2 * (ks & 1) + m]}, {SRDB}, s{WSS + (ks >> 1)} offen lds", f"w{ks}") for m in range(2)]


def emit_dma(vm, gs):
    for g in gs:
        a(g[0])
        vm.issue(g[2], g[1])


def soff(D):
    return [f"s_add_u32 s{XS + D}, s{XS + D - 1}, 128\ns_add_u32 s{WSS + D}, s{WSS + D - 1}, {64 * 3456}",
            f"s_cmp_eq_u32 s{XS + D}, 1280\ns_cselect_b32 s{XS + D}, 0, s{XS + D}\ns_cselect_b32 s{WSS + D}, 0, s{WSS + D}"]


def g1_setup_a():
    a(f"""
    s_mul_i32 {RB}, {J}, 37
    s_lshr_b32 {RB}, {RB}, 8
    s_mul_i32 {CT}, {RB}, 7
    s_sub_u32 {CT}, {J}, {CT}
    s_lshr_b32 s9, {XCD}, 1
    s_lshl_b32 s9, s9, 2
    s_add_u32 {RB}, {RB}, s9
    s_and_b32 s9, {XCD}, 1
    s_mul_i32 s9, s9, 7
    s_add_u32 {CT}, {CT}, s9
    v_lshrrev_b32 v4, 3, {LANE}
    s_lshl_b32 s10, {WAVE}, 5
    v_add_u32 v4, s10, v4
    v_mul_u32_u24 v4, 1280, v4
    v_and_b32 v6, 7, {LANE}
    v_xor_b32 v6, v6, {G4}
    v_lshl_add_u32 v{VXS[0]}, v6, 4, v4
    v_xor_b32 v{VXS[1]}, 64, v{VXS[0]}
    v_add_u32 v{VXS[1]}, 10240, v{VXS[1]}
    v_add_u32 v{VXS[2]}, 20480, v{VXS[0]}
    v_add_u32 v{VXS[3]}, 20480, v{VXS[1]}
    s_lshl_b32 s10, {WAVE}, 3
    v_add_u32 v4, s10, {G4}
    v_mul_u32_u24 v4, 3456, v4
    s_lshl_b32 s10, {WF_}, 2
    v_or_b32 v6, s10, {G4}
    v_lshlrev_b32 v6, 1, v6
    v_xor_b32 v6, v6, {L15}
    v_lshl_add_u32 v{VWS[0]}, v6, 4, v4
    s_lshl_b32 s10, {CT}, 8
    v_add_u32 v{VWS[0]}, s10, v{VWS[0]}
    v_add_u32 v{VWS[1]}, 13824, v{VWS[0]}
    v_add_u32 v{VWS[2]}, {32 * 3456}, v{VWS[0]}
    v_add_u32 v{VWS[3]}, {32 * 3456}, v{VWS[1]}
    s_lshl_b32 {W2K}, {WAVE}, 11
    s_lshl_b32 {W4K}, {WAVE}, 12
    s_mul_i32 s12, {RB}, 3
    s_add_u32 s12, s12, {CT}
    s_mul_i32 s13, s12, 205
    s_lshr_b32 s13, s13, 11
    s_mul_i32 s13, s13, 10
    s_sub_u32 {D0}, s12, s13
    s_mul_i32 s9, {RB}, {128 * 1280}
    """)


def g1_setup_b():
    srd(48, 16, 17, "s9", 128 * 1280)
    srd(52, 32, 33, None, 640 * 3456)


def g1_setup_c():
    a(f"""
    s_lshl_b32 s10, {WT}, 13
    v_lshlrev_b32 v{VXR[0]}, 7, {L15}
    v_add_u32 v{VXR[0]}, s10, v{VXR[0]}
    v_bfe_u32 v4, {LANE}, 1, 3
    v_xor_b32 v4, v4, {G4}
    v_lshl_add_u32 v{VXR[0]}, v4, 4, v{VXR[0]}
    v_xor_b32 v{VXR[1]}, 64, v{VXR[0]}
    v_bfe_u32 v4, {LANE}, 2, 2
    v_lshl_add_u32 v6, {G4}, 3, v4
    v_lshlrev_b32 v{VWR[0]}, 8, v6
    v_and_b32 v6, 1, {G4}
    v_lshl_or_b32 v6, v6, 2, v4
    s_lshl_b32 s10, {WF_}, 2
    v_xor_b32 v6, s10, v6
    v_lshl_add_u32 v{VWR[0]}, v6, 5, v{VWR[0]}
    v_and_b32 v7, 3, {LANE}
    v_lshl_add_u32 v{VWR[0]}, v7, 3, v{VWR[0]}
    v_add_u32 v{VWR[0]}, {WB}, v{VWR[0]}
    v_xor_b32 v{VWR[1]}, 32, v{VWR[0]}
    v_xor_b32 v{VWR[2]}, 64, v{VWR[0]}
    v_xor_b32 v{VWR[3]}, 0x60, v{VWR[0]}
    v_lshl_add_u32 v6, v7, 3, v4
    v_lshlrev_b32 v253, 7, v6
    v_add_u32 v253, {W4K}, v253
    v_bfe_u32 v6, v6, 1, 3
    v_lshrrev_b32 v7, 5, {LANE}
    v_xor_b32 v6, v6, v7
    v_lshl_add_u32 v253, v6, 4, v253
    v_and_b32 v6, 1, {G4}
    v_lshl_add_u32 v253, v6, 3, v253
    s_lshl_b32 s10, {RB}, 2
    s_add_u32 s10, s10, {WAVE}
    s_mul_i32 {UTO}, s10, 40960
    s_lshl_b32 {UFO}, {D0}, 12
    s_add_u32 {UTO}, {UTO}, {UFO}
    s_add_u32 {UTO}, {UTO}, {UT}
    s_lshl_b32 {UFO}, {D0}, 8
    s_lshl_b32 s10, s10, 2
    s_add_u32 {UFO}, {UFO}, s10
    s_add_u32 {UFO}, {UFO}, {UFLAG}
    s_cmp_lt_u32 {CT}, 10
    s_cselect_b32 s10, 0, {OOB}
    v_lshlrev_b32 {VUT}, 8, {G4}
    v_lshl_add_u32 {VUT}, v4, 5, {VUT}
    v_bfe_u32 v6, {LANE}, 1, 1
    v_lshl_add_u32 {VUT}, v6, 7, {VUT}
    v_and_b32 v6, 1, {LANE}
    v_lshl_add_u32 {VUT}, v6, 4, {VUT}
    v_add_u32 {VUT}, s10, {VUT}
    """)


def ut_step(vm, t):
    vm.wait("x0")
    vm.issue("tag", f"global_load_dword {VTAG}, {ZERO}, {DBG} sc1")
    a(f"v_mov_b32 v{t + 16}, v253\nv_xor_b32 v{t + 17}, 32, v253\nv_xor_b32 v{t + 18}, 64, v253\nv_xor_b32 v{t + 19}, 0x60, v253")
    for dt in range(4):
        a(f"ds_read_b64_tr_b16 {vr(t + 4 * dt, 2)}, v{t + 16 + dt}\nds_read_b64_tr_b16 {vr(t + 2 + 4 * dt, 2)}, v{t + 16 + (dt ^ 1)} offset:512")
    for dt in range(4):
        a(f"s_waitcnt lgkmcnt({6 - 2 * dt})")
        vm.issue("ut", f"buffer_store_dwordx4 {vr(t + 4 * dt, 4)}, {VUT}, {WSRD}, {'s46' if 'nout' in OPT else UTO} offen offset:{1024 * dt} sc1")


def ut_flag(vm):
    vm.wait("ut")
    get_tag()
    flag_store(vm, UFO, VUT)


def opt_int(name, default):
    for x in OPT:
        if x.startswith(name + "="):
            return int(x.split("=")[1])
    return default


VWFL, VUFL, VHFL, VUG, VUL, LOOK1, LOOK2, VPS, VPF = "v8", "v9", "v10", "v11", "v12", "v13", "v14", "v15", "v16"
HV = ["v0", "v5", "v6", "v7"]
JUNK = "v233"
KCB, HFM = "s9", "s[30:31]"

a("L_code0:")
CODEPF = f"""
s_getpc_b64 s[12:13]
L_pc0:
s_lshr_b32 s10, s2, 3
s_lshl_b32 s10, s10, 11
v_lshl_add_u32 v40, v0, 7, s10
v_min_u32 v40, L_code1-L_pc0-4, v40
v_cmp_gt_u32 vcc, 16, v0
s_and_saveexec_b64 s[8:9], vcc
s_cbranch_execz L_nopf
global_load_dword {JUNK}, v40, s[12:13]
L_nopf:
s_mov_b64 exec, -1
""" if "nopf" not in OPT else ""
stamp(0)
if "entryclk" in OPT:
    a("s_memrealtime s[100:101]")
a(f"""
s_cmp_ge_u32 s2, 256
s_cbranch_scc1 L_end
s_load_dwordx16 s[16:31], s[0:1], 0
s_load_dwordx8 s[32:39], s[0:1], 64
s_load_dwordx4 s[40:43], s[0:1], 96
{CODEPF}
v_lshrrev_b32 v2, 6, v0
v_and_b32 {LANE}, 63, v0
v_mov_b32 {ZERO}, 0
v_readfirstlane_b32 {WAVE}, v2
s_and_b32 {XCD}, s2, 7
s_lshr_b32 {J}, s2, 3
s_mov_b32 s46, {WS_END}
s_mov_b32 s47, 0x20000
v_and_b32 {L15}, 15, v0
v_bfe_u32 {G4}, v0, 4, 2
v_lshlrev_b32 {L16}, 4, {LANE}
s_lshr_b32 {WT}, {WAVE}, 1
s_and_b32 {WF_}, {WAVE}, 1
s_cmp_ge_u32 {J}, 28
s_cbranch_scc1 L_typeC
""")


def tlb_touch(who="A"):
    mode = opt_int("tlb", 2)
    if mode == 3 or (mode == 1 and who != "C0") or (mode != 1 and who == "C0"):
        return
    lab = a.newlabel("Ltl")
    sh = 20 if mode == 2 else 18
    a(f"""
    s_cmp_lg_u32 {WAVE}, 1
    s_cbranch_scc1 {lab}
    v_lshlrev_b32 v99, {sh}, {LANE}
    v_add_u32 v99, 0xff80, v99
    buffer_load_dword {JUNK}, v99, {WSRD}, 0 offen sc1
    v_lshlrev_b32 v99, {sh if mode == 2 else 16}, {LANE}
    v_min_u32 v99, {2048 * 1280 - 4}, v99
    global_load_dword {JUNK}, v99, s[38:39] sc1
    {lab}:
    """)


def bf16_round_int(l):
    if l < 256:
        return l
    e = l.bit_length() - 8
    q, r = l >> e, l & ((1 << e) - 1)
    h = 1 << (e - 1)
    if r > h or (r == h and (q & 1)):
        q += 1
    return q << e


PAR = 208
SDT, SDS = 20, 23


def param_loads(vm, n=1):
    for r in range(n):
        for k, ptr in enumerate((LOGA, AIM, CR, CI)):
            vm.issue("par", f"global_load_ushort v{CPAR[r] + k}, v68, {ptr} offset:{512 * r} nt")


CPAR = [208, 212, 240]
def late_addr():
    L = f"""
    s_lshr_b32 {TB}, {XCD}, 1
    s_lshl_b32 {TB}, {TB}, 3
    s_lshr_b32 s10, {J}, 2
    s_add_u32 {TB}, {TB}, s10
    s_and_b32 {CS}, {XCD}, 1
    s_lshl_b32 {CS}, {CS}, 2
    s_and_b32 s10, {J}, 3
    s_add_u32 {CS}, {CS}, s10
    s_mul_i32 s10, {CS}, 5120
    v_add_u32 v2, s10, {L16}
    v_add_u32 v4, 4096, v2
    s_mul_i32 s10, {WAVE}, 14
    v_lshrrev_b32 {VWFL}, 2, {LANE}
    v_min_u32 {VWFL}, 13, {VWFL}
    v_add_u32 {VWFL}, s10, {VWFL}
    v_min_u32 {VWFL}, 53, {VWFL}
    v_lshlrev_b32 {VWFL}, 5, {VWFL}
    v_and_b32 v6, 3, {LANE}
    v_lshl_add_u32 {VWFL}, v6, 2, {VWFL}
    s_and_b32 s10, {XCD}, 1
    s_lshl_b32 s10, s10, 4
    s_add_u32 s10, s10, {WFLAG}
    v_add_u32 {VWFL}, s10, {VWFL}
    v_lshrrev_b32 v6, 3, v0
    v_mul_u32_u24 {VUG}, 40960, v6
    v_and_b32 v7, 7, {LANE}
    v_lshl_add_u32 {VUG}, v7, 4, {VUG}
    v_and_b32 v5, 1, {LANE}
    v_mul_u32_u24 {VUL}, {CHP}, v5
    v_lshl_add_u32 {VUL}, v6, 6, {VUL}
    v_lshrrev_b32 v7, 1, v7
    v_lshl_add_u32 {VUL}, v7, 4, {VUL}
    """.strip().replace("\n", "|").replace("@", "\n").split("|")
    return L


def h_addr():
    L = f"""
    s_mul_i32 s10, {WAVE}, 7
    v_min_u32 {VHFL}, 6, {LANE}
    v_add_u32 {VHFL}, s10, {VHFL}
    v_min_u32 {VHFL}, 26, {VHFL}
    v_lshlrev_b32 {VHFL}, 2, {VHFL}
    s_lshl_b32 s10, {TB}, 7
    v_add_u32 {VHFL}, s10, {VHFL}
    """.strip().split("\n")
    for k in range(4):
        L += [f"s_add_u32 s10, {WAVE}, {k}", "s_and_b32 s10, s10, 3", "s_lshl_b32 s10, s10, 10", f"v_add_u32 {HV[k]}, s10, {L16}"]
    return L


def k_order():
    a(f"s_mul_i32 {WSO}, {WAVE}, {14 * 40960}\ns_mul_i32 {HSO}, {WAVE}, {14 * 4096}")


def pair_addr():
    a(f"""
    s_lshr_b32 s10, {CP}, 5
    s_lshl_b32 s10, s10, 8
    s_add_u32 s10, s10, {UFLAG}
    v_lshl_add_u32 {VUFL}, {LANE}, 2, s10
    s_lshl_b32 {ULO}, {CP}, 7
    s_add_u32 {ULO}, {ULO}, {UT}
    s_mul_i32 {CHB}, {WT}, {CHP}
    s_add_u32 {CHB}, {CHB}, {CPB}
    """)


TW, TR = 58, 62


def kgen_addr():
    return f"""
    s_mul_i32 s10, {WF_}, {L_KO - L_KE}
    s_add_u32 s10, s10, {CHB}
    s_add_u32 s10, s10, {L_KE}
    s_mov_b32 s60, s10
    v_lshl_add_u32 v{TW}, {LANE}, 2, s10
    v_add_u32 v{TW + 1}, {4 * TP}, v{TW}
    v_add_u32 v{TW + 2}, {8 * TP}, v{TW}
    v_add_u32 v{TW + 3}, {12 * TP}, v{TW}
    v_mul_u32_u24 v{TR}, {TP}, {L15}
    v_lshl_add_u32 v{TR}, {G4}, 4, v{TR}
    v_add_u32 v{TR}, s10, v{TR}
    s_lshl_b32 s10, {WF_}, 8
    s_add_u32 s10, s10, {CHB}
    v_lshl_add_u32 v70, {LANE}, 2, s10
    ds_write_b32 v70, {ZERO} offset:{L_U}
    s_mul_i32 s10, {WAVE}, 3072
    s_add_u32 s10, s10, {KCB}
    v_lshrrev_b32 v70, 1, {G4}
    v_and_b32 v71, 1, {G4}
    v_lshlrev_b32 v228, 9, v70
    v_lshl_add_u32 v228, v71, 4, v228
    v_lshl_add_u32 v228, {L15}, 5, v228
    v_add_u32 v228, s10, v228
    v_lshlrev_b32 v73, 8, {G4}
    v_lshlrev_b32 v229, 4, {L15}
    v_lshlrev_b32 v230, 3, {L15}
    v_cmp_gt_u32 vcc, 2, {G4}
    v_add_u32 v231, s10, v73
    v_mov_b32 v78, 0x80
    v_cndmask_b32 v229, v230, v229, vcc
    v_cndmask_b32 v78, v78, 8, vcc
    v_add_u32 v229, v231, v229
    v_add_u32 v230, v229, v78
    v_lshl_add_u32 v231, {L15}, 2, v231
    v_or_b32 v70, {WF_}, {LANE}
    v_cmp_eq_u32 vcc, 0, v70
    v_cndmask_b32 v232, 0, 1.0, vcc
    """.strip().split("\n")


ADDTID = 'addtid' in OPT
TBM = 's60'


def kgen_sections(PAR=208, sdt='s66', sds='s69', tid_off=60000):
    L2E_HI = struct.unpack("<f", struct.pack("<f", 1.4426950408889634))[0]
    L2E_LO = 1.4426950408889634 - L2E_HI
    S = [[]]

    def e(t):
        S[-1].extend(x.strip() for x in t.strip().split("\n"))

    R_, Z8, G1, GC, T1, O1 = 32, 34, 36, 38, 40, 42
    P = lambda k: 44 + 2 * (k - 1)
    RBF, QA, D = 192, [120, 136], [216, 220, 224]
    e(f"s_mov_b32 s12, {f32(L2E_HI)}\ns_mov_b32 s13, {f32(L2E_LO)}")
    e(f"v_mov_b32 v70, {sdt}\nv_lshlrev_b32 v71, 16, v{PAR}")
    for t in ("v_mul_f32 v{a}, s12, v{x}", "v_fma_f32 v{b}, v{x}, s12, -v{a}", "v_exp_f32 v{a}, v{a}", "v_fma_f32 v{b}, v{x}, s13, v{b}",
              "v_mul_f32 v{b}, " + f32(0.6931471805599453) + ", v{b}", "v_fma_f32 v{a}, v{a}, v{b}, v{a}"):
        for i in range(2):
            e(t.format(a=72 + i, b=74 + i, x=70 + i))
    e(f"""
    v_cvt_pk_bf16_f32 v71, v72, v73
    v_lshlrev_b32 v70, 16, v71
    v_and_b32 v71, 0xffff0000, v71
    v_mul_f32 v71, v71, v70
    v_mul_f32 v71, {f32(-1.4426950408889634)}, v71
    v_lshlrev_b32 v72, 16, v{PAR + 1}
    v_mul_f32 v72, v72, v70
    v_mul_f32 v72, 0.15915494, v72
    v_add_f32 v73, v70, v70
    v_lshlrev_b32 v74, 16, v{PAR + 2}
    v_lshlrev_b32 v75, 16, v{PAR + 3}
    v_mul_f32 v{R_}, v74, v73
    v_mul_f32 v{R_ + 1}, -v75, v73
    v_mul_f32 v76, {f32(8.0)}, v71
    v_mul_f32 v77, {f32(128.0)}, v71
    v_mul_f32 v79, {f32(8.0)}, v72
    v_mul_f32 v80, {f32(128.0)}, v72
    v_exp_f32 v76, v76
    v_exp_f32 v77, v77
    v_exp_f32 v78, v71
    v_fract_f32 v79, v79
    v_fract_f32 v80, v80
    v_fract_f32 v81, v72
    v_cos_f32 v82, v79
    v_sin_f32 v83, v79
    v_cos_f32 v84, v80
    v_sin_f32 v85, v80
    v_cos_f32 v86, v81
    v_sin_f32 v87, v81
    v_mul_f32 v{Z8}, v76, v82
    v_mul_f32 v{Z8 + 1}, -v76, v83
    v_mul_f32 v{G1}, v77, v84
    v_mul_f32 v{G1 + 1}, v77, v85
    v_mul_f32 v{P(1)}, v78, v86
    v_mul_f32 v{P(1) + 1}, v78, v87
    """)
    st = {"n": 0}

    def put(row, reg, last=False):
        t = 88 + (st["n"] & 3)
        st["n"] += 1
        e(f"v_mov_b32 v{t}, 0x3f80" if reg is None else f"v_cvt_pk_bf16_f32 v{t}, v{reg}, v{reg + 1}")
        if ADDTID:
            e(f"ds_write_addtid_b32 v{t} offset:{tid_off + row * TP}")
        elif row & 1:
            e(f"ds_write2_b32 v{TW + row // 4}, v{t - 1}, v{t} offset0:{((row - 1) % 4) * TP // 4} offset1:{(row % 4) * TP // 4}")
        elif last:
            e(f"ds_write_b32 v{TW + row // 4}, v{t} offset:{(row % 4) * TP}")
            st["n"] += 1

    def cm(out, x, y):
        e(f"v_pk_mul_f32 {vr(T1, 2)}, {vr(x, 2)}, {vr(y, 2)} op_sel:[0,0] op_sel_hi:[1,0]")
        e(f"v_pk_fma_f32 {vr(out, 2)}, {vr(x, 2)}, {vr(y, 2)}, {vr(T1, 2)} op_sel:[1,1,0] op_sel_hi:[0,1,1] neg_lo:[1,0,0]")

    def rd(base):
        for ks in range(4):
            e(f"ds_read_b128 {vr(base + 4 * ks, 4)}, v{TR} offset:{64 * ks}")

    def mm(d, q, zero):
        for ks in range(4):
            e(f"v_mfma_f32_16x16x32_bf16 {vr(d, 4)}, {vr(q + 4 * ks, 4)}, {vr(RBF + 4 * ks, 4)}, {'0' if (zero and ks == 0) else vr(d, 4)}")

    def sec():
        S.append([f"s_mov_b32 m0, {TBM}"] if ADDTID else [])

    sec()
    for x in range(16):
        put(x, R_)
        if x < 15:
            cm(R_, R_, Z8)
    rd(RBF)
    sec()
    put(0, None)
    for k in range(1, 8):
        put(k, P(k))
        if k < 7:
            cm(P(k + 1), P(k), P(1))
    put(8, G1)
    cm(GC, G1, G1)
    for k in range(1, 8):
        cm(O1, G1, P(k))
        put(8 + k, O1)
    sec()
    rd(QA[0])
    row = 0
    for i in range(2, 8):
        put(row, GC)
        row += 1
        for k in ((2, 4, 6) if i < 4 else (4,)):
            cm(O1, GC, P(k))
            put(row, O1)
            row += 1
        cm(GC, GC, G1)
        if i == 3:
            e(f"v_mul_f32 v{D[0]}, {sds}, v232\nv_mov_b32 v{D[0] + 1}, 0\nv_mov_b32 v{D[0] + 2}, 0\nv_mov_b32 v{D[0] + 3}, 0\ns_waitcnt lgkmcnt({8 if ADDTID else 4})")
            mm(D[0], QA[0], False)
    sec()
    rd(QA[1])
    for i in range(8, 17):
        put(i - 8, GC, last=(i == 16))
        if i < 16:
            cm(GC, GC, G1)
    rd(QA[0])
    e(f"ds_write_b128 v228, {vr(D[0], 4)}\ns_waitcnt lgkmcnt({14 if ADDTID else 10})")
    mm(D[1], QA[1], True)
    S.append([])
    e("s_waitcnt lgkmcnt(0)")
    mm(D[2], QA[0], True)
    e(f"ds_write_b64 v229, {vr(D[1], 2)} offset:1024\nds_write_b64 v230, {vr(D[1] + 2, 2)} offset:1024")
    for j in range(4):
        e(f"ds_write_b32 v231, v{D[2] + j} offset:{2048 + 64 * j}")
    return S


def emit_mixed(vm, lines, ops, every):
    for n, l in enumerate(lines):
        a(l)
        if ops and n % every == every - 1:
            emit_op(vm, ops.pop(0))


def expansion(between=None):
    E = {3: 36, 2: 36, 1: 40, 0: 44}
    F = {3: 52, 2: 52, 1: 56, 0: 192}
    l1, l2, l3, l4 = (a.newlabel("Le") for _ in range(4))
    a(f"""
    s_mul_i32 s10, {WT}, 6144
    s_add_u32 s10, s10, {KCB}
    v_sub_u32 v32, 63, {LANE}
    v_lshl_add_u32 v33, v32, 3, s10
    s_cmp_eq_u32 {WF_}, 1
    s_cbranch_scc1 {l1}
    """)

    def rd3(s, idx):
        for h, R in enumerate((E, F)):
            a(f"ds_read_b64 {vr(R[s], 2)}, v33 offset:{3072 * h + 4 * idx}\nds_read_b32 v{R[s] + 2}, v33 offset:{3072 * h + 4 * idx + 8}")

    rd3(3, 512)
    a(f"s_branch {l2}\n{l1}:\nv_lshl_add_u32 v34, v32, 4, s10")
    rd3(2, 384)
    rd3(1, 256)
    for h, R in enumerate((E, F)):
        a(f"ds_read_b128 {vr(R[0], 4)}, v34 offset:{3072 * h}\nds_read_b32 v{R[0] + 4}, v34 offset:{3072 * h + 16}")
    a(f"{l2}:")
    if between:
        between()
    a(f"s_cmp_eq_u32 {WF_}, 1\ns_cbranch_scc1 {l3}\nv_lshl_add_u32 v32, {LANE}, 5, {CHB}\ns_waitcnt lgkmcnt(0)")

    def add3(s):
        a(f"v_pk_add_f32 {vr(E[s], 2)}, {vr(E[s], 2)}, {vr(F[s], 2)}\nv_add_f32 v{E[s] + 2}, v{E[s] + 2}, v{F[s] + 2}")

    def pack(s, l0, Bn, step, sh, t):
        val = lambda x: E[s] + (bf16_round_int(l0 + 64 + x) - (l0 + 64)) // step
        for m in range(Bn // 2):
            a(f"v_cvt_pk_bf16_f32 v{t + m}, v{val(Bn - sh - 2 * m)}, v{val(Bn - sh - 1 - 2 * m)}")

    add3(3)
    for sh, base in ((0, L_KE), (1, L_KO)):
        t = 192 + 8 * sh
        pack(3, 1024, 16, 8, sh, t)
        a(f"ds_write_b128 v32, {vr(t, 4)} offset:{base}\nds_write_b128 v32, {vr(t + 4, 4)} offset:{base + 16}")
    a(f"""
    s_branch {l4}
    {l3}:
    v_lshl_add_u32 v33, {LANE}, 4, {CHB}
    v_lshl_add_u32 v34, {LANE}, 3, {CHB}
    v_lshl_add_u32 v35, v32, 2, {CHB}
    v_cmp_eq_u32 vcc, 63, {LANE}
    s_waitcnt lgkmcnt(0)
    """)
    add3(2)
    add3(1)
    a(f"v_pk_add_f32 {vr(E[0], 2)}, {vr(E[0], 2)}, {vr(F[0], 2)}\nv_pk_add_f32 {vr(E[0] + 2, 2)}, {vr(E[0] + 2, 2)}, {vr(F[0] + 2, 2)}\nv_add_f32 v{E[0] + 4}, v{E[0] + 4}, v{F[0] + 4}")
    for sh, base in ((0, L_KE), (1, L_KO)):
        t = 192 + 8 * sh
        pack(2, 512, 8, 4, sh, t)
        pack(1, 256, 4, 2, sh, t + 4)
        pack(0, 0, 4, 1, sh, t + 6)
        a(f"ds_write_b128 v33, {vr(t, 4)} offset:{base + 2048}\nds_write_b64 v34, {vr(t + 4, 2)} offset:{base + 3072}\nds_write_b64 v34, {vr(t + 6, 2)} offset:{base + 3584}")
    a(f"""
    v_cvt_pk_bf16_f32 v208, v{E[0]}, {ZERO}
    v_cndmask_b32 v208, 0, v208, vcc
    ds_write_b32 v35, {ZERO} offset:{L_KO + 4096}
    ds_write_b32 v35, v208 offset:{L_KE + 4096}
    {l4}:
    """)


WSLOT = [vr(4 * i, 4, "a") for i in range(64)] + [vr(224 + 4 * i, 4) for i in range(6)]


def wload_ops():
    L = []
    for i in range(14):
        for dt in range(5):
            post = f"s_add_u32 {WSO}, {WSO}, 40960" if dt == 4 else None
            L.append((f"buffer_load_dwordx4 {WSLOT[5 * i + dt]}, {'v4' if dt == 4 else 'v2'}, {SRDC}, {WSO} offen offset:{1024 * (dt & 3)} sc1", f"W{i}", post))
    return L


def emit_op(vm, op):
    vm.issue(op[1], op[0])
    if op[2]:
        a(op[2])


def uload_ops():
    return [(f"buffer_load_dwordx4 {vr(24 + 4 * n, 4)}, {VUG}, {WSRD}, {ULO} offen sc1", "u",
             f"s_add_u32 {ULO}, {ULO}, {32 * 40960}" if n == 0 else None) for n in range(2)]


NEARLY = opt_int("nearly", 22)
NGAP = opt_int("ngap", 70 - NEARLY)
WTAIL = opt_int("wtail", 10)
LOOKAT, CHECKAT = opt_int('lookat', 11), opt_int('checkat', 13)
HP = opt_int('hp', 0)

def prep_block(vm, t=100):
    lab = a.newlabel("Lw")
    a(f"s_cmp_ge_u32 s2, 108\ns_cbranch_scc1 {lab}")
    for aa in range(5):
        a(f"ds_read_b64_tr_b16 {vr(t + 4 * aa, 2)}, v234 offset:{128 * aa}\nds_read_b64_tr_b16 {vr(t + 2 + 4 * aa, 2)}, v234 offset:{128 * aa + 10240}")
    for aa in range(5):
        a(f"s_waitcnt lgkmcnt({8 - 2 * aa})\ns_mov_b32 s10, {4096 * aa}")
        a(f"buffer_store_dwordx4 {vr(t + 4 * aa, 4)}, {VPS}, {WSRD}, s10 offen sc1")
    a(f"{lab}:")
    vm.issue("pst", f"buffer_load_dword {JUNK}, {ZERO}, {WSRD}, s46 offen")


vmA = VM(a)
a(f"""
s_mov_b32 {CP}, s2
s_mov_b32 {CPB}, {CB}
s_lshl_b32 s10, {CP}, 9
v_lshl_add_u32 v68, v0, 1, s10
s_lshl_b32 s69, {CP}, 2
""")
g1_setup_a()
a("s_waitcnt lgkmcnt(0)" + WSHIFT)
param_loads(vmA)
a(f"s_load_dword s66, {LDT}, s69\ns_load_dword s69, {DSK}, s69")
g1_setup_b()
a(f"""
s_mov_b32 s44, s42
s_mov_b32 s45, s43
s_lshl_b32 s{XS}, {D0}, 7
s_mul_i32 s{WSS}, {D0}, {64 * 3456}
""")
emit_dma(vmA, dmax(0))
tlb_touch()
stamp(7)
srd(56, 34, 35, None, 0 if "now2" in OPT else 1728 * 1280)
a(f"""
s_cmp_lg_u32 {J}, 15
s_cbranch_scc1 L_a_notag
s_cmp_lg_u32 {WAVE}, 0
s_cbranch_scc1 L_a_notag
s_memrealtime s[12:13]
s_waitcnt lgkmcnt(0)
{"s_mov_b32 s12, s100" if "entryclk" in OPT else ""}
s_or_b32 s12, s12, 1
v_mov_b32 v40, s12
v_mov_b32 v41, 0
s_mov_b64 exec, 1
global_atomic_cmpswap {ZERO}, v[40:41], {DBG} sc1
s_mov_b64 exec, -1
L_a_notag:
""")
a(f"""
s_lshr_b32 s9, s2, 1
s_mul_i32 s9, s9, 40960
s_and_b32 s12, s2, 1
s_mul_i32 s13, s12, 640
s_add_u32 s13, s13, s9
s_mul_i32 s10, {WAVE}, 10240
s_add_u32 s13, s13, s10
v_lshrrev_b32 v7, 3, {LANE}
""")
for m in range(5):
    a(f"""
    v_add_u32 v42, {8 * m}, v7
    v_mul_u32_u24 v42, 13, v42
    v_lshrrev_b32 v42, 6, v42
    v_and_b32 v43, 6, v42
    v_xor_b32 v43, v43, {LANE}
    v_mul_u32_u24 v42, 640, v42
    v_lshl_add_u32 v42, v43, 4, v42
    v_add_u32 v{92 + m}, s13, v42
    """)
a(f"""
v_add_u32 v96, 4096, v96
s_mul_i32 s10, {WAVE}, 5120
s_add_u32 s10, s10, {L_W2}
""")
LATEPRE = opt_int("latepre", 0)


def pre_dma():
    for m in range(5):
        a(f"s_add_u32 m0, s10, {4096 if m == 4 else 0}")
        vmA.issue("pre", f"buffer_load_dwordx4 v{92 + m}, {SRDC}, 0 offen offset:{1024 * (m & 3)} nt lds")


if not LATEPRE:
    pre_dma()
a(f"""
s_mul_i32 s12, s12, 20480
s_add_u32 s12, s12, s9
s_add_u32 s12, s12, {W2F}
s_lshl_b32 s10, {WAVE}, 10
s_add_u32 s12, s12, s10
s_cmp_lt_u32 s2, 108
s_cselect_b32 s10, 0, {OOB}
v_mov_b32 {VPF}, s10
s_add_u32 s12, s12, s10
v_add_u32 {VPS}, s12, {L16}
s_lshl_b32 {PF2}, s2, 4
s_lshl_b32 s10, {WAVE}, 2
s_add_u32 {PF2}, {PF2}, s10
s_add_u32 {PF2}, {PF2}, {WFLAG}
v_lshrrev_b32 v40, 2, {LANE}
v_mul_u32_u24 v234, 640, v40
v_bfe_u32 v40, {LANE}, 3, 2
v_xor_b32 v40, {WAVE}, v40
v_lshl_add_u32 v234, v40, 5, v234
v_and_b32 v40, 3, {LANE}
v_lshl_add_u32 v234, v40, 3, v234
v_add_u32 v234, {L_W2}, v234
""")
a(f"s_mov_b32 {KCB}, {L_KC}\ns_mul_i32 {CHB}, {WT}, {CHP}\ns_add_u32 {CHB}, {CHB}, {CPB}")
for l in kgen_addr():
    a(l)
for D in range(1, 10):
    for l in soff(D):
        a(l)
g1_setup_c()
for l in late_addr():
    a(l)
a(f"""
s_lshl_b32 s10, {WT}, 4
s_waitcnt lgkmcnt(0)
s_lshr_b32 s66, s66, s10
s_lshl_b32 s66, s66, 16
s_lshr_b32 s69, s69, s10
s_lshl_b32 s69, s69, 16
""")
KS = kgen_sections()
a("s_sub_u32 s60, s60, 60000")
vmA.wait("par")
stamp(8)
pend = dmaw(0) + dmaw(1) + dmax(1) + dmaw(2) + dmaw(3) + dmax(2) + dmaw(4) + dmaw(5)
for n, sec in enumerate(KS):
    for l in sec:
        a(l)
    if n == opt_int('gfat', 0):
        a(f"s_lshl_b32 s10, {CT}, 1\ns_add_u32 s10, s10, {WF_}\ns_cmp_lg_u32 s10, 27\ns_cbranch_scc1 L_a_nogf\nv_lshlrev_b32 v100, 4, {G4}")
        for D in range(10):
            a(f"v_add_u32 v101, s{XS + D}, v100\nglobal_load_dwordx4 {vr(176 + 8 * D, 4, 'a')}, v101, s[36:37]\nglobal_load_dwordx4 {vr(180 + 8 * D, 4, 'a')}, v101, s[36:37] offset:64")
        a("L_a_nogf:")
    if n < opt_int("pregrp", 5):
        emit_dma(vmA, pend[:4])
        pend = pend[4:]
    if n == 1:
        ut_step(vmA, 72)
    if n == opt_int('prepat', 3):
        if LATEPRE:
            vmA.wait("ut")
        else:
            vmA.wait("pre", "ut")
            a("s_barrier")
        get_tag()
        flag_store(vmA, UFO, VUT)
        if not LATEPRE:
            prep_block(vmA)
    if n == LATEPRE - 1:
        a(f"s_mul_i32 s10, {WAVE}, 5120\ns_add_u32 s10, s10, {L_W2}")
        pre_dma()
srd(56, 42, 43, W2F, 54 * 40960); k_order()
pair_addr()
if "expre" in OPT:
    a("s_waitcnt lgkmcnt(0)\ns_barrier")
    expansion()
stamp(9)


def gemm1(vm, gate=False):
    GF = lambda ks: vr(176 + 4 * ks, 4, "a")
    if gate:
        a("L_g1_gate:")
        if opt_int("gfat", 0):
            vm.wait("w5")
    else:
        a(f"s_lshl_b32 s10, {CT}, 1\ns_add_u32 s10, s10, {WF_}\ns_cmp_eq_u32 s10, 27\ns_cbranch_scc1 L_g1_gate")
    ACC = 64
    WF, XF = [128, 160], [144, 176]

    def reads(ks):
        s = ks & 1
        L = []
        for i in range(4):
            L.append(f"ds_read_b128 {vr(XF[s] + 4 * i, 4)}, v{VXR[s]} offset:{XB + ((ks >> 1) % 3) * 16384 + 2048 * i}")
            if not gate:
                L.append(f"ds_read_b64_tr_b16 {vr(WF[s] + 4 * i, 2)}, v{VWR[i]} offset:{(ks % NWS) * 8192}")
                L.append(f"ds_read_b64_tr_b16 {vr(WF[s] + 4 * i + 2, 2)}, v{VWR[i]} offset:{(ks % NWS) * 8192 + 1024}")
        return L

    vm.wait("x0", "w0", "ut", extra="lgkmcnt(0)")
    PSTEP = opt_int("pstep", 5) if LATEPRE else -4
    a("s_barrier")
    stamp(1)
    for l in reads(0):
        a(l)
    misc = []
    ops = uload_ops() + wload_ops()[:NEARLY]
    for ks in range(20):
        s = ks & 1
        B2 = "bar1" not in OPT
        if B2 and ks % 2 == 0 and ks > 0:
            vm.wait(*(["look"] if ks == CHECKAT else []), extra="lgkmcnt(0)")
        elif ks < 19:
            vm.wait(f"x{(ks + 1) >> 1}", f"w{ks + 1}", *([f"w{ks + 2}"] if B2 and ks else []), *(["look"] if ks == CHECKAT else []), *(["pst"] if ks == PSTEP + 4 else []), *(["pre"] if ks == PSTEP else []), extra="lgkmcnt(0)")
            a("s_barrier")
        else:
            a("s_waitcnt lgkmcnt(0)")
        if ks in (5, 10, 15) and "g2st" not in OPT and "cvst" not in OPT:
            stamp(9 + ks // 5)
        if ks == PSTEP:
            prep_block(vm, 32)
        if ks == PSTEP + 4:
            flag_store(vm, PF2, VPF)
        if ks == CHECKAT:
            poll(VWFL, LOOK1, first_issued=True)
            poll(VUFL, LOOK2, first_issued=True)
        rd_ = reads(ks + 1) if ks < 19 else []
        dm = []
        kw = ks + NWS - (1 if B2 else 0)
        if kw < 20 and kw >= NWS:
            dm += dmaw(kw)
        if ks >= 1:
            D = (ks - 1) // 2 + 3
            if D < 10:
                dm += dmax(D, (0, 1) if ks & 1 else (2, 3))
        if ks == 0:
            dm = list(pend) + dm
        many = len(dm) > 4
        n = 0
        for ft in range(4):
            for tt in range(4):
                d = vr(ACC + 16 * ft + 4 * tt, 4)
                slot = (n % 2 == 1 if many else n % 4 == 1) if ks < 15 else n % 3 == 1
                g = dm.pop(0) if (dm and slot) else None
                if g:
                    a(g[0])
                if not gate or ft == 0:
                    a(f"v_mfma_f32_16x16x32_bf16 {d}, {GF(ks) if gate else vr(WF[s] + 4 * ft, 4)}, {vr(XF[s] + 4 * tt, 4)}, {'0' if ks == 0 else d}")
                if g:
                    vm.issue(g[2], g[1])
                elif ks >= CHECKAT and ops and (slot or ks == 19):
                    emit_op(vm, ops.pop(0))
                elif rd_:
                    a(rd_.pop(0))
                    if rd_ and (n % 4 == 2 or many):
                        a(rd_.pop(0))
                elif misc:
                    for _ in range(2):
                        if misc:
                            a(misc.pop(0))
                if ks == LOOKAT and n == 15:
                    assert not misc
                    vm.issue("look", f"buffer_load_dword {LOOK1}, {VWFL}, {WSRD}, 0 offen sc1")
                    vm.issue("look", f"buffer_load_dword {LOOK2}, {VUFL}, {WSRD}, 0 offen sc1")
                n += 1
        assert not dm and not rd_
    assert not ops
    if gate:
        a(f"""
        s_nop 7
        v_cmp_eq_u32 vcc, 1, {G4}
        v_cmp_eq_u32 s[12:13], 2, {G4}
        s_lshl_b32 s10, {RB}, 1
        v_cndmask_b32 v64, v64, v68, vcc
        v_cmp_eq_u32 vcc, 3, {G4}
        v_cndmask_b32 v64, v64, v72, s[12:13]
        s_add_u32 s10, s10, {WT}
        v_cndmask_b32 v64, v64, v76, vcc
        v_cvt_pk_bf16_f32 v64, v64, v64
        v_and_b32 v64, 0xffff0000, v64
        v_mul_f32 v64, {f32(-1.4426950408889634)}, v64
        v_exp_f32 v64, v64
        v_add_f32 v64, 1.0, v64
        v_rcp_f32 v64, v64
        v_cvt_pk_bf16_f32 v64, v64, v64
        v_and_b32 v64, 0xffff0000, v64
        v_lshlrev_b32 v65, 2, {LANE}
        s_lshl_b32 s10, s10, 8
        s_add_u32 s10, s10, {G_OFF}
        buffer_store_dword v64, v65, {WSRD}, s10 offen sc1
        s_branch L_g1_done
        """)
        return
    a("L_g1_done:")
    stamp(2)


def h_publish(vm=vmA, ACC=64):
    a(f"""
    s_lshl_b32 {RB}, {RB}, 1
    s_add_u32 {RB}, {RB}, {WT}
    s_lshl_b32 {CT}, {CT}, 1
    s_add_u32 {CT}, {CT}, {WF_}
    s_mul_i32 s16, {RB}, {54 * 4096}
    s_lshl_b32 s10, {CT}, 13
    s_add_u32 s16, s16, s10
    s_add_u32 s16, s16, {HF}
    s_add_u32 s17, s16, 4096
    s_lshl_b32 {HFO}, {RB}, 7
    s_lshl_b32 s10, {CT}, 2
    s_add_u32 {HFO}, {HFO}, s10
    s_cmp_lt_u32 {CT}, 27
    s_cselect_b32 s10, 0, {OOB}
    v_add_u32 {VUT}, s10, {L16}
    """)
    t = 160
    for m in range(2):
        for tt in range(4):
            for h in range(2):
                r = ACC + 16 * (2 * m + h) + 4 * tt
                a(f"v_cvt_pk_bf16_f32 v{t + 2 * h}, v{r}, v{r + 1}\nv_cvt_pk_bf16_f32 v{t + 2 * h + 1}, v{r + 2}, v{r + 3}")
            for k in range(4):
                a(f"v_pk_max_i16 v{t + k}, v{t + k}, 0")
            vm.issue("hst", f"buffer_store_dwordx4 {vr(t, 4)}, {VUT}, {WSRD}, s{16 + m} offen offset:{1024 * tt} sc1")
            t += 4


q_g1 = list(vmA.q)
gemm1(vmA)
gops = wload_ops()[NEARLY:NEARLY + NGAP]
if "expre" in OPT:
    h_publish()
else:
    expansion(h_publish)
for _ in range(6):
    emit_op(vmA, gops.pop(0))

HSLOT = [192, 208, 88, 104, 120, 136]
NH = 6


def hload(vm, i, k):
    vm.issue(f"h{i}_{k}", f"buffer_load_dwordx4 {vr(HSLOT[i % NH] + 4 * k, 4)}, {HV[k]}, {SRDB}, s{22 + i} offen sc1")


ROWS = [[(i, k) for k in range(4)] for i in range(11)]
g_ = [(i, k) for k in (1, 2, 3, 0) for i in range(11, 14)]
ROWS += [g_[0:4], g_[4:8], g_[8:12]]
HORDER = [x for r in ROWS for x in r]


def conv(vm, ops, rounds):
    main = rounds == 1
    if main:
        a(f"v_add_u32 v17, {CPB}, {VUL}")
        vm.wait("u")
        for n in range(2):
            a(f"ds_write_b128 v17, {vr(24 + 4 * n, 4)} offset:{L_U + 512 + 2048 * n}")
    a(f"""
    s_lshl_b32 s10, {WF_}, 6
    s_sub_u32 s10, {CHB}, s10
    v_and_b32 v19, 1, {L15}
    v_mul_u32_u24 v19, {L_KO - 2 - L_KE}, v19
    v_lshl_add_u32 v19, {G4}, 4, v19
    v_lshlrev_b32 v18, 1, {L15}
    v_sub_u32 v19, v19, v18
    v_add_u32 v19, s10, v19
    v_add_u32 v20, {L_KE + 4064 - 512}, v19
    v_add_u32 v21, {L_KE + 4064 - 512 * 3}, v19
    v_add_u32 v22, {L_KE + 4064 - 512 * 5}, v19
    v_add_u32 v23, {L_KE + 4064 - 512 * 7}, v19
    v_lshlrev_b32 v19, 5, {L15}
    v_lshl_add_u32 v19, {G4}, 4, v19
    v_add_u32 v19, s10, v19
    v_add_u32 v19, {L_U + 480}, v19
    s_waitcnt lgkmcnt(0)
    s_barrier
    """)
    stamp(3)
    ACCS = [32, 192]
    AS, BS = [64, 128], [96, 160]

    def loads(g):
        s = g & 1
        L = []
        for m in range(8):
            L.append(f"ds_read_b128 {vr(BS[s] + 4 * m, 4)}, v19 offset:{512 * m}")
        for q in range(8):
            o = 128 if q % 2 == 0 else 0
            r = AS[s] + 4 * q
            L.append(f"ds_read2_b32 {vr(r, 2)}, v{20 + q // 2} offset0:{o} offset1:{o + 1}")
            L.append(f"ds_read2_b32 {vr(r + 2, 2)}, v{20 + q // 2} offset0:{o + 2} offset1:{o + 3}")
        for r in range(19, 24):
            L.append(f"v_add_u32 v{r}, {2 * CHP + 384}, v{r}" if g % 4 == 3 else f"v_subrev_u32 v{r}, 128, v{r}")
        return L

    def send(ACC):
        l1, l2 = a.newlabel("Lx"), a.newlabel("Lx")
        a(f"s_cmp_eq_u32 {WF_}, 1\ns_cbranch_scc1 {l1}\ns_nop 5")
        for j in range(4):
            a(f"ds_write_b128 v17, {vr(ACC + 16 + 4 * j, 4)} offset:{1024 * j}")
        a(f"s_branch {l2}\n{l1}:\ns_nop 5")
        for j in range(4):
            a(f"ds_write_b128 v17, {vr(ACC + 4 * j, 4)} offset:{1024 * j}")
        a(f"{l2}:")

    def recv(ACC):
        l1, l2 = a.newlabel("Lx"), a.newlabel("Lx")
        a(f"s_cmp_eq_u32 {WF_}, 1\ns_cbranch_scc1 {l1}")
        for j in range(4):
            a(f"ds_read_b128 {vr(ACC + 16 + 4 * j, 4)}, v18 offset:{1024 * j}")
        a(f"s_branch {l2}\n{l1}:")
        for j in range(4):
            a(f"ds_read_b128 {vr(ACC + 4 * j, 4)}, v18 offset:{1024 * j}")
        a(f"{l2}:")

    def out_lines(ACC):
        L = []
        for j in range(4):
            L += [f"v_pk_add_f32 {vr(ACC + 4 * j, 2)}, {vr(ACC + 4 * j, 2)}, {vr(ACC + 16 + 4 * j, 2)}",
                  f"v_pk_add_f32 {vr(ACC + 4 * j + 2, 2)}, {vr(ACC + 4 * j + 2, 2)}, {vr(ACC + 18 + 4 * j, 2)}",
                  f"v_cvt_pk_bf16_f32 v{24 + 2 * j}, v{ACC + 4 * j}, v{ACC + 4 * j + 1}", f"v_cvt_pk_bf16_f32 v{25 + 2 * j}, v{ACC + 4 * j + 2}, v{ACC + 4 * j + 3}"]
        for jp in range(2):
            L += [f"v_permlane16_swap_b32 v{24 + 4 * jp}, v{26 + 4 * jp}", f"v_permlane16_swap_b32 v{25 + 4 * jp}, v{27 + 4 * jp}"]
        return L

    def out_store():
        for jp in range(2):
            vm.issue("ast", f"buffer_store_dwordx4 {vr(24 + 4 * jp, 4)}, {VPS}, {WSRD}, s16 offen offset:{1024 * jp} sc1")

    for l in loads(0):
        a(l)
    misc = f"""
    s_lshl_b32 s10, {WAVE}, 12
    s_add_u32 s10, s10, {L_W2}
    v_add_u32 v17, s10, {L16}
    s_xor_b32 s10, {WAVE}, 1
    s_lshl_b32 s10, s10, 12
    s_add_u32 s10, s10, {L_W2}
    v_add_u32 v18, s10, {L16}
    v_lshlrev_b32 {VPS}, 5, {L15}
    v_lshrrev_b32 {VPF}, 1, {G4}
    v_lshl_add_u32 {VPS}, {VPF}, 4, {VPS}
    v_and_b32 {VPF}, 1, {G4}
    v_lshl_add_u32 {VPS}, {VPF}, 9, {VPS}
    s_lshl_b32 s16, {CP}, 13
    s_add_u32 s16, s16, {W2K}
    s_add_u32 s16, s16, {AG}
    s_mul_i32 {PFO}, {WF_}, 2560
    s_lshl_b32 s10, {CP}, 3
    s_add_u32 {PFO}, {PFO}, s10
    s_lshl_b32 s10, {WT}, 2
    s_add_u32 {PFO}, {PFO}, s10
    s_add_u32 {PFO}, {PFO}, {AFLAG}
    """.strip().split("\n")
    tail_ops = [ops.pop() for _ in range(WTAIL if main else 0)][::-1]
    every = max(3, 130 // max(1, len(ops))) if main else 4
    for g in range(4 * rounds):
        r, p, s = g // 4, g % 4, g & 1
        ACC = ACCS[r & 1]
        nxt = loads(g + 1) if g + 1 < 4 * rounds else []
        a("s_waitcnt lgkmcnt(0)")
        if "phases" in OPT:
            stamp(g + 1, True)
        extra = h_addr() if g == 4 * rounds - 1 else []
        if main and "cvst" in OPT and p == HP:
            stamp(10)
        if main and p == HP:
            vm.wait("hst")
            flag_store(vm, HFO, ZERO)
        if main and "cvst" in OPT and p == HP:
            stamp(11)
        if main and "cvst" in OPT and p == 3:
            stamp(12)
        if not main and "cvst" in OPT and g in (4, 8):
            stamp(10 + g // 4)
        if r > 0 and p == 1:
            a("s_barrier")
            recv(ACCS[(r - 1) & 1])
        if r > 0 and p == 2:
            a("s_barrier")
            extra = out_lines(ACCS[(r - 1) & 1])
        if r > 0 and p == 3:
            out_store()
            a("s_add_u32 s16, s16, 8192")
        if r > 1 and p == 1:
            vm.wait("ast")
            flag_store(vm, PFO, ZERO)
            a(f"s_add_u32 {PFO}, {PFO}, 8")
        if not main and g == 3:
            vm.wait("look")
            poll(VWFL, LOOK1, first_issued=True, nap=8)
        n = 0
        for q in range(8):
            for j in range(q, 8):
                c = "0" if (p == 0 and q == 0) else vr(ACC + 4 * j, 4)
                a(f"v_mfma_f32_16x16x32_bf16 {vr(ACC + 4 * j, 4)}, {vr(AS[s] + 4 * q, 4)}, {vr(BS[s] + 4 * (j - q), 4)}, {c}")
                isop = ops and n % every == every - 1 and (main or g >= 3)
                if isop:
                    emit_op(vm, ops.pop(0))
                if "share" in OPT:
                    if nxt:
                        a(nxt.pop(0))
                    if not isop:
                        if extra:
                            a(extra.pop(0))
                        elif misc:
                            a(misc.pop(0))
                elif not isop:
                    if nxt:
                        a(nxt.pop(0))
                        if nxt and len(nxt) > (35 - n) * (every - 1) // every - 1:
                            a(nxt.pop(0))
                        elif extra:
                            a(extra.pop(0))
                    else:
                        for _ in range(2):
                            if extra:
                                a(extra.pop(0))
                            elif misc:
                                a(misc.pop(0))
                if not main and g == 1 and n == 30:
                    vm.issue("look", f"buffer_load_dword {LOOK1}, {VWFL}, {WSRD}, 0 offen sc1")
                if g == 4 * rounds - 1 and n == 30:
                    vm.issue("look", f"buffer_load_dword {LOOK1}, {VHFL}, {WSRD}, 0 offen sc1")
                n += 1
        for l in nxt + extra + (misc if p == 2 else []):
            a(l)
        if p == 2:
            misc = []
        if p == 3:
            if g == 4 * rounds - 1:
                stamp(4)
            send(ACC)
            if g == 4 * rounds - 1:
                for op in tail_ops:
                    emit_op(vm, op)
    assert not misc and not ops
    if not main:
        vm.wait("ast")
        flag_store(vm, PFO, ZERO)
        a(f"s_add_u32 {PFO}, {PFO}, 8")
    a("s_waitcnt lgkmcnt(0)\ns_barrier")
    recv(ACCS[0])
    a("s_waitcnt lgkmcnt(0)")
    for l in out_lines(ACCS[0]):
        a(l)
    out_store()


conv(vmA, gops, 1)
q_g2 = list(vmA.q)
a("L_gemm2:")


def gemm2(vm):
    a(f"s_mul_i32 s10, {TB}, {54 * 4096}\ns_add_u32 s10, s10, {HF}")
    srd(52, 42, 43, "s10", 54 * 4096)
    for i in range(3):
        a(f"s_add_u32 s{22 + i}, {HSO}, {4096 * i}")
    vm.wait("look")
    poll(VHFL, LOOK1, first_issued=True)
    stamp(5)
    hq = list(HORDER)
    LEAD = opt_int("lead", 12)
    for n in range(LEAD):
        hload(vm, *hq.pop(0))
    wrest = wload_ops()[NEARLY + NGAP:]
    ACC = 8
    X, Y = 152, 172
    XW = Y + 12
    GA, AR, PR = (192, X + 8, 88) if "noga" in OPT else (88, X + 8, 192)
    for i in range(3, 14):
        a(f"s_add_u32 s{22 + i}, {HSO}, {4096 * i}")
    a(f"""
    s_mul_i32 s18, {WAVE}, 20480
    v_add_u32 v{XW}, s18, {L16}
    """)
    for k in range(1, 4):
        a(f"s_sub_u32 s10, {WAVE}, {k}\ns_and_b32 s10, s10, 3\ns_mul_i32 s10, s10, 20480\nv_add_u32 v{XW + k}, s10, {L16}")
    a(f"""
    s_lshr_b32 s10, {TB}, 4
    s_mul_i32 s10, s10, 2560
    s_mul_i32 s16, {CS}, 320
    s_add_u32 s10, s10, s16
    s_add_u32 s10, s10, {AFLAG}
    v_lshl_add_u32 v{X + 5}, {LANE}, 3, s10
    s_lshl_b32 s10, {TB}, 7
    s_add_u32 s10, s10, {26 * 4}
    v_mov_b32 v{X + 6}, s10
    v_cmp_gt_u32 vcc, 40, {LANE}
    v_lshrrev_b32 v{X + 2}, 5, {LANE}
    v_bfe_u32 v{X + 3}, {LANE}, 3, 2
    v_cndmask_b32 v{X + 5}, v{X + 6}, v{X + 5}, vcc
    v_lshl_add_u32 v{X + 2}, v{X + 2}, 4, v{X + 3}
    v_and_b32 v{X + 3}, 7, {LANE}
    v_lshlrev_b32 v{X + 2}, 12, v{X + 2}
    v_lshl_add_u32 v{X + 2}, v{X + 3}, 4, v{X + 2}
    s_mul_i32 s16, {CS}, {80 * 4096}
    s_lshl_b32 s10, {TB}, 7
    s_add_u32 s16, s16, s10
    s_add_u32 s16, s16, {AG}
    s_lshl_b32 s17, {TB}, 8
    s_lshl_b32 s10, {WAVE}, 6
    s_add_u32 s17, s17, s10
    s_add_u32 s17, s17, {G_OFF}
    v_lshlrev_b32 v{X + 3}, 2, {L15}
    s_lshl_b32 s20, {WAVE}, 14
    s_lshl_b32 s19, {TB}, 6
    s_lshl_b32 s10, {WAVE}, 4
    s_add_u32 s19, s19, s10
    s_mul_i32 s19, s19, 1280
    s_mul_i32 s10, {CS}, 160
    s_add_u32 s19, s19, s10
    s_mov_b32 s48, s38
    s_mov_b32 s49, s39
    s_mov_b32 s50, {2048 * 1280}
    s_mov_b32 s51, 0x20000
    s_add_u32 s21, s18, 17920
    v_mul_u32_u24 v{Y + 4}, 160, {L15}
    v_lshl_add_u32 v{Y + 4}, {G4}, 3, v{Y + 4}
    v_add_u32 v{Y + 4}, s21, v{Y + 4}
    v_mul_u32_u24 v{Y + 5}, 20480, {G4}
    v_bfe_u32 v{Y + 6}, {LANE}, 2, 2
    v_lshl_add_u32 v{Y + 5}, v{Y + 6}, 7, v{Y + 5}
    v_and_b32 v{Y + 6}, 3, {LANE}
    v_lshl_add_u32 v{Y + 5}, v{Y + 6}, 3, v{Y + 5}
    s_lshl_b32 s10, {WAVE}, 5
    s_add_u32 s10, s10, 15360
    v_add_u32 v{Y + 5}, s10, v{Y + 5}
    """)
    for n in range(3):
        q, r_, ga = Y + 6, Y + 7, Y + 8 + n
        a(f"v_add_u32 v{q}, {64 * n}, {LANE}\nv_mul_u32_u24 v{r_}, 205, v{q}\nv_lshrrev_b32 v{r_}, 11, v{r_}\nv_mul_u32_u24 v{r_}, 1120, v{r_}\nv_lshl_add_u32 v{ga}, v{q}, 4, v{r_}")
    vm.wait("ast")
    flag_store(vm, PFO, ZERO)
    done = set()
    wq = []
    ALOOK, ACHK = opt_int("alook", 8), opt_int("achk", 11)
    for i, rw in enumerate(ROWS):
        if 1 <= i <= 12 and 'phases' not in OPT:
            stamp(i, True)
        if i == ALOOK:
            vm.issue("look", f"buffer_load_dwordx2 {vr(X + 6, 2)}, v{X + 5}, {WSRD}, 0 offen sc1")
        if i == ACHK:
            assert not wrest
            vm.wait("look")
            lab = a.newlabel("La")
            a(f"v_cmp_ne_u32 vcc, {TAG}, v{X + 6}\nv_cmp_ne_u32 s[12:13], {TAG}, v{X + 7}\ns_or_b64 vcc, vcc, s[12:13]\ns_cbranch_scc0 {lab}")
            poll(f"v{X + 5}", f"v{X + 6}")
            a(f"v_add_u32 v{X + 5}, 4, v{X + 5}")
            poll(f"v{X + 5}", f"v{X + 6}")
            a(f"{lab}:\ns_add_u32 s56, s42, s16\ns_addc_u32 s57, s43, 0\ns_mov_b32 s58, {80 * 4096 - 3968}")
            wrest = [(f"s_add_u32 m0, s18, {15360 + 1024 * m}\ns_nop 0\nbuffer_load_dwordx4 v{X + 2}, {SRDC}, s20 offen sc1 lds", "ag", f"s_add_u32 s20, s20, {32 * 4096}") for m in range(3)]
            wrest += [(f"buffer_load_dword v{X + 4}, v{X + 3}, {WSRD}, s17 offen sc1", "ag", None)]
        pre = []
        if i == 13 and "noga" not in OPT:
            vm.wait("ag")
            a("s_barrier")
            for dt in range(5):
                a(f"ds_read_b64_tr_b16 {vr(AR + 2 * dt, 2)}, v{Y + 5} offset:{512 * dt}")
            pre = [f"v_sub_f32 v{X + 6}, 1.0, v{X + 4}", f"v_cvt_pk_bf16_f32 v{X + 6}, v{X + 6}, v{X + 6}", f"v_and_b32 v{X + 6}, 0xffff0000, v{X + 6}", "LGKM"]
            for q in range(10):
                pre += [f"v_lshlrev_b32 v{GA + 2 * q}, 16, v{AR + q}", f"v_and_b32 v{GA + 2 * q + 1}, 0xffff0000, v{AR + q}"]
            pre += [f"v_mul_f32 v{GA + q}, v{X + 4}, v{GA + q}" for q in range(20)]
        nw = 0
        n = 0
        for (x, k) in rw:
            vm.wait(f"h{x}_{k}", f"W{x}")
            for dt in range(5):
                d = vr(ACC + 20 * k + 4 * dt, 4)
                a(f"v_mfma_f32_16x16x32_bf16 {d}, {WSLOT[5 * x + dt]}, {vr(HSLOT[x % NH] + 4 * k, 4)}, {'0' if x == 0 else d}")
                if wq and wq[0][0] <= 20 * i + n:
                    a(wq.pop(0)[1])
                    nw += 1
                elif pre and n >= 2:
                    for _ in range(2):
                        if pre:
                            m = pre.pop(0)
                            a(f"s_waitcnt lgkmcnt({nw})" if m == "LGKM" else m)
                if dt == 4:
                    done.add((x, k))
                if dt == 2 and hq and (hq[0][0] < NH or (hq[0][0] - NH, hq[0][1]) in done):
                    hload(vm, *hq.pop(0))
                elif dt == 0 and wrest:
                    emit_op(vm, wrest.pop(0))
                n += 1
            if x == 13 and k:
                wq += [(20 * i + n + 1 + 3 * dt, f"ds_write_b128 v{XW}, {vr(ACC + 20 * k + 4 * dt, 4)} offset:{5120 * (k - 1) + 1024 * dt}") for dt in range(5)]
    for _, w in wq:
        a(w)
    for m in pre:
        a(m)
    assert not hq and not wrest
    stamp(6)
    a(f"""
    s_waitcnt vmcnt(0) lgkmcnt(0)
    s_barrier
    """)
    if "noga" in OPT:
        for dt in range(5):
            a(f"ds_read_b64_tr_b16 {vr(AR + 2 * dt, 2)}, v{Y + 5} offset:{512 * dt}")
        for k in range(1, 4):
            for dt in range(5):
                a(f"ds_read_b128 {vr(PR + 20 * (k - 1) + 4 * dt, 4)}, v{XW + k} offset:{5120 * (k - 1) + 1024 * dt}")
        a(f"""
        v_sub_f32 v{X + 6}, 1.0, v{X + 4}
        v_cvt_pk_bf16_f32 v{X + 6}, v{X + 6}, v{X + 6}
        v_and_b32 v{X + 6}, 0xffff0000, v{X + 6}
        s_waitcnt lgkmcnt(15)
        """)
        for i in range(10):
            a(f"v_lshlrev_b32 v{GA + 2 * i}, 16, v{AR + i}\nv_and_b32 v{GA + 2 * i + 1}, 0xffff0000, v{AR + i}")
        for i in range(10):
            a(f"v_pk_mul_f32 {vr(GA + 2 * i, 2)}, {vr(GA + 2 * i, 2)}, {vr(X + 4, 2)} op_sel_hi:[1,0]")
    else:
        for k in range(1, 4):
            for dt in range(5):
                a(f"ds_read_b128 {vr(PR + 20 * (k - 1) + 4 * dt, 4)}, v{XW + k} offset:{5120 * (k - 1) + 1024 * dt}")
    for k in range(2):
        a(f"s_waitcnt lgkmcnt({10 - 5 * k})")
        for i in range(10):
            a(f"v_pk_add_f32 {vr(ACC + 2 * i, 2)}, {vr(ACC + 2 * i, 2)}, {vr(PR + 20 * k + 2 * i, 2)}")
    a("s_waitcnt lgkmcnt(0)")
    for dt in range(5):
        for x in (2 * dt, 2 * dt + 1):
            a(f"v_pk_add_f32 {vr(ACC + 2 * x, 2)}, {vr(ACC + 2 * x, 2)}, {vr(PR + 40 + 2 * x, 2)}")
        for x in (2 * dt, 2 * dt + 1):
            a(f"v_pk_fma_f32 {vr(GA + 2 * x, 2)}, {vr(ACC + 2 * x, 2)}, {vr(X + 6, 2)}, {vr(GA + 2 * x, 2)} op_sel_hi:[1,0,1]")
        a(f"v_cvt_pk_bf16_f32 v{AR + 2 * dt}, v{GA + 4 * dt}, v{GA + 4 * dt + 1}\nv_cvt_pk_bf16_f32 v{AR + 2 * dt + 1}, v{GA + 4 * dt + 2}, v{GA + 4 * dt + 3}")
        a(f"ds_write_b64 v{Y + 4}, {vr(AR + 2 * dt, 2)} offset:{32 * dt}")
    for n in range(3):
        a(f"ds_read_b128 {vr(PR + 4 * n, 4)}, v{XW} offset:{17920 + 1024 * n}")
    for n in range(3):
        a(f"s_waitcnt lgkmcnt({2 - n})")
        if n == 2:
            a("s_mov_b32 exec_hi, 0")
        a(f"buffer_store_dwordx4 {vr(PR + 4 * n, 4)}, v{Y + 8 + n}, {SRDA}, s19 offen nt")
    if DIAG:
        a("s_mov_b64 exec, -1\ns_waitcnt vmcnt(0)")
        stamp(13)
        a(f"""
        s_lshl_b32 s10, s2, 8
        s_lshl_b32 s11, {WAVE}, 6
        s_add_u32 s10, s10, s11
        s_add_u32 s10, s10, {STAMP}
        s_mov_b64 exec, 1
        """)
        for i in range(14):
            a(f"v_mov_b32 v{8 + i}, s{74 + 2 * i}")
        for i in range(4):
            a(f"buffer_store_dwordx4 v[{8 + 4 * i}:{11 + 4 * i}], {ZERO}, {WSRD}, s10 offen offset:{16 * i}")
        if "dbgspan" in OPT:
            a(f"v_not_b32 v30, v8\nglobal_atomic_umax {ZERO}, v30, {DBG} offset:4 sc1")
            for k, i in enumerate((0, 1, 2, 3, 4, 5, 6, 13)):
                a(f"global_atomic_umax {ZERO}, v{8 + i}, {DBG} offset:{8 + 4 * k} sc1")
    if opt_int("holdus", 0):
        a(f"L_hold:\ns_memrealtime s[12:13]\ns_waitcnt lgkmcnt(0)\ns_sub_u32 s12, s12, {TAG}\ns_cmp_lt_u32 s12, {100 * opt_int('holdus', 0)}\ns_cbranch_scc1 L_hold")
    a("L_end:\ns_endpgm")


gemm2(vmA)


def typeC():
    vm = VM(a)
    a(f"""
    L_typeC:
    s_sub_u32 {CP}, s2, 224
    s_mul_i32 {CP}, {CP}, 3
    s_add_u32 {CP}, {CP}, 224
    s_mov_b32 {CPB}, 0
    s_mov_b32 {KCB}, {CB}
    s_lshl_b32 {W2K}, {WAVE}, 11
    s_mul_i32 {CHB}, {WT}, {CHP}
    s_lshl_b32 s10, {CP}, 9
    v_lshl_add_u32 v68, v0, 1, s10
    s_lshl_b32 s69, {CP}, 2
    s_waitcnt lgkmcnt(0)
    {WSHIFT}
    """)
    param_loads(vm, 3)
    for r in range(3):
        a(f"s_load_dword s{48 + r}, {LDT}, s69\ns_load_dword s{52 + r}, {DSK}, s69\ns_add_u32 s69, s69, 4")
    a("s_mov_b32 s44, s42\ns_mov_b32 s45, s43\ns_mov_b32 s30, s16\ns_mov_b32 s31, s17")
    tlb_touch("C0")
    for l in kgen_addr() + late_addr():
        a(l)
    srd(56, 42, 43, W2F, 54 * 40960); k_order()
    a(f"s_lshl_b32 s10, {WF_}, 8\ns_add_u32 s10, s10, {CHB}\nv_lshl_add_u32 v70, {LANE}, 2, s10")
    a(f"ds_write_b32 v70, {ZERO} offset:{2 * CHP}\nds_write_b32 v70, {ZERO} offset:{4 * CHP}")
    a(f"s_lshl_b32 s10, {WT}, 4\ns_waitcnt lgkmcnt(0)")
    for r in range(3):
        for b, d in ((48, SDT), (52, SDS)):
            a(f"s_lshr_b32 s{d + r}, s{b + r}, s10\ns_lshl_b32 s{d + r}, s{d + r}, 16")
    a("s_waitcnt vmcnt(8)")
    stamp(8)
    K = [kgen_sections(CPAR[r], f"s{SDT + r}", f"s{SDS + r}", 2 * CHP * r) for r in range(3)]
    for l in K[0][0]:
        a(l)
    for r in range(3):
        for sec in K[r][1:5]:
            for l in sec:
                a(l)
        if r == 0:
            a("s_waitcnt vmcnt(0)")
            tlb_touch()
        if r == 1:
            a(f"global_load_dword {VTAG}, {ZERO}, {DBG} sc1")
        if r < 2:
            for l in K[r + 1][0]:
                a(l)
        else:
            a(f"""
            s_lshr_b32 s10, {CP}, 5
            s_lshl_b32 s10, s10, 8
            s_add_u32 s10, s10, {UFLAG}
            v_lshl_add_u32 v17, {LANE}, 2, s10
            s_add_u32 s10, {CP}, 2
            s_lshr_b32 s10, s10, 5
            s_lshl_b32 s10, s10, 8
            s_add_u32 s10, s10, {UFLAG}
            v_lshl_add_u32 {VUFL}, {LANE}, 2, s10
            s_waitcnt vmcnt(0)
            buffer_load_dword {LOOK2}, {VUFL}, {WSRD}, 0 offen sc1
            buffer_load_dword v18, v17, {WSRD}, 0 offen sc1
            """)
            get_tag()
        for l in K[r][5]:
            a(l)
        if r < 2:
            for x in range(TW, TR + 1):
                a(f"v_add_u32 v{x}, {2 * CHP}, v{x}")
            for x in range(228, 232):
                a(f"v_add_u32 v{x}, 12288, v{x}")
    stamp(1)
    a("s_waitcnt lgkmcnt(0)\ns_barrier")
    for r in range(3):
        expansion()
        a(f"s_add_u32 {CHB}, {CHB}, {2 * CHP}\ns_add_u32 {KCB}, {KCB}, 12288")
        if r == 0:
            stamp(9)
            a("s_waitcnt vmcnt(0)")
            poll(VUFL, LOOK2, first_issued=True, nap=8)
            poll("v17", "v18", first_issued=True, nap=8)
            stamp(10)
            a(f"s_lshl_b32 {ULO}, {CP}, 7\ns_add_u32 {ULO}, {ULO}, {UT}\ns_add_u32 s10, {ULO}, {32 * 40960}")
            for q in range(3):
                a(f"buffer_load_dwordx4 {vr(64 + 8 * q, 4)}, {VUG}, {WSRD}, {ULO} offen offset:{128 * q} sc1")
                a(f"buffer_load_dwordx4 {vr(68 + 8 * q, 4)}, {VUG}, {WSRD}, s10 offen offset:{128 * q} sc1")
    a(f"s_mul_i32 {CHB}, {WT}, {CHP}\ns_waitcnt vmcnt(0)")
    for r in range(3):
        for n in range(2):
            a(f"ds_write_b128 {VUL}, {vr(64 + 8 * r + 4 * n, 4)} offset:{2 * CHP * r + L_U + 512 + 2048 * n}")
    stamp(2)
    vm.q = []
    conv(vm, wload_ops()[:NEARLY + NGAP], 3)
    vm.wait("look")
    assert q_g2[-2:] == ["ast", "ast"] and vm.q[-2:] == ["ast", "ast"]
    a("s_branch L_gemm2")


typeC()
vmG = VM(a)
vmG.q = q_g1
gemm1(vmG, gate=True)
a("L_code1:")

body = a.render()
head = open(f"cdna_kernels/{NAME}.s.ref").read().split("; Override launch")[0]
text = head + f"""; Generated by the author's own generator script; single fused kernel, one workgroup per CU.
; @launch grid=(256,1,1) block=(256,1,1) lds=163840
.amdgcn_target "amdgcn-amd-amdhsa--gfx950"
.text
.globl {NAME}_kernel
.p2align 8
.type {NAME}_kernel,@function
{NAME}_kernel:
{body}.section .rodata,"a"
.p2align 6
.amdhsa_kernel {NAME}_kernel
  .amdhsa_next_free_vgpr 512
  .amdhsa_next_free_sgpr 102
  .amdhsa_accum_offset 256
  .amdhsa_group_segment_fixed_size 0
  .amdhsa_kernarg_size 112
  .amdhsa_user_sgpr_count 2
  .amdhsa_user_sgpr_kernarg_segment_ptr 1
  .amdhsa_system_sgpr_workgroup_id_x 1
.end_amdhsa_kernel
"""
open(OUT, "w").write(text)
print("wrote", OUT, "lines", text.count("\n"), "auto nops", a.nops)
```

```python
import sys, struct
from asmlib import Asm, VM

NAME = "gated_mix__ssm_conv_s4d__dense_activation_relu__prompt"
DIAG = "--diag" in sys.argv
OPT = set(x[2:] for x in sys.argv if x.startswith("--"))
OUT = [x for x in sys.argv[1:] if not x.startswith("--")]
OUT = OUT[0] if OUT else f"cdna_kernels/{NAME}.s"

HFLAG, UFLAG, G_OFF, WFLAG, GFLAG, AFLAG = 0x0, 0x1000, 0x2000, 0x5000, 0x5800, 0x6000
UT = 0x10000
W2F = UT + 64 * 40960
HF = W2F + 54 * 40960
AG = HF + 32 * 54 * 4096
STAMP = AG + 160 * 16384
WS_END = STAMP + 512 * 4 * 64
SPIN_LIMIT = 400000
OOB = 0x40000000
WSHIFT = "\ns_add_u32 s42, s42, 0xF000000\ns_addc_u32 s43, s43, 0" if "wsend" in OPT else ""

XB, WB, CB = 0, 49152, 98304
NWS = 6
L_U, L_KE, L_KO, CHP = 0, 4608, 9280, 13952
L_KC = CB + 2 * CHP
L_W2 = L_KC + 4 * 3072
L_AT = 81920
TP = 288


def f32(x):
    return "0x%08x" % struct.unpack("<I", struct.pack("<f", x))[0]


def vr(b, n=1, f="v"):
    return f"{f}{b}" if n == 1 else f"{f}[{b}:{b + n - 1}]"


a = Asm()
LOGA, AIM, CR, CI, LDT, DSK = "s[18:19]", "s[20:21]", "s[22:23]", "s[24:25]", "s[26:27]", "s[28:29]"
DBG, WSRD = "s[40:41]", "s[44:47]"
SRDA, SRDB, SRDC = "s[48:51]", "s[52:55]", "s[56:59]"
WAVE, TAG, XCD, J = "s3", "s4", "s5", "s6"
RB, CT = "s7", "s8"
W2K, WT, WF_ = "s11", "s14", "s15"
XS, WSS = 16, 26
HFO, W4K, D0, UTO, UFO = "s60", "s62", "s63", "s64", "s65"
CP, CPB, CHB, PFO, PF2 = "s67", "s70", "s61", "s71", "s68"
ULO = "s69"
TB, CS = "s72", "s73"
WSO, HSO = "s36", "s37"
LANE, ZERO = "v1", "v3"
VXS, VWS, VXR, VWR = [236, 237, 238, 239], [240, 241, 242, 243], [244, 245], [246, 247, 248, 249]
L16, VUT, VTAG = "v250", "v251", "v252"
L15, G4 = "v254", "v255"


def stamp(i, rowst=False):
    if DIAG and (('rows' in OPT) == rowst or i in (0, 13)):
        a(f"s_memrealtime s[{74 + 2 * i}:{75 + 2 * i}]\ns_waitcnt lgkmcnt(0)")


def srd(dst, lo, hi, off_s, size):
    if off_s is None:
        a(f"s_mov_b32 s{dst}, s{lo}\ns_mov_b32 s{dst + 1}, s{hi}")
    else:
        a(f"s_add_u32 s{dst}, s{lo}, {off_s}\ns_addc_u32 s{dst + 1}, s{hi}, 0")
    a(f"s_mov_b32 s{dst + 2}, {size}\ns_mov_b32 s{dst + 3}, 0x20000")


def poll(voff, vf, first_issued=False, nap=4):
    lp, chk, done = (a.newlabel(x) for x in ("Lp", "Lc", "Ld"))
    if first_issued:
        a(f"v_cmp_ne_u32 vcc, {TAG}, {vf}\ns_cmp_eq_u64 vcc, 0\ns_cbranch_scc1 {done}")
    a(f"""
    s_mov_b32 s66, 0
    {lp}:
    buffer_load_dword {vf}, {voff}, {WSRD}, 0 offen sc1
    s_waitcnt vmcnt(0)
    v_cmp_ne_u32 vcc, {TAG}, {vf}
    s_cmp_eq_u64 vcc, 0
    s_cbranch_scc1 {done}
    s_sleep {nap}
    s_add_u32 s66, s66, 1
    s_cmp_lt_u32 s66, {SPIN_LIMIT}
    s_cbranch_scc1 {lp}
    {done}:
    """)


def get_tag():
    lp, done = a.newlabel("Lt"), a.newlabel("Ld")
    a(f"""
    v_readfirstlane_b32 {TAG}, {VTAG}
    s_cmp_lg_u32 {TAG}, 0
    s_cbranch_scc1 {done}
    s_mov_b32 s66, 0
    {lp}:
    global_load_dword {VTAG}, {ZERO}, {DBG} sc1
    s_waitcnt vmcnt(0)
    v_readfirstlane_b32 {TAG}, {VTAG}
    s_cmp_lg_u32 {TAG}, 0
    s_cbranch_scc1 {done}
    s_sleep 2
    s_add_u32 s66, s66, 1
    s_cmp_lt_u32 s66, {SPIN_LIMIT}
    s_cbranch_scc1 {lp}
    {done}:
    """)


def flag_store(vm, soff, voff):
    a("s_mov_b64 exec, 1")
    vm.issue("fl", f"buffer_store_dword {VTAG}, {voff}, {WSRD}, {soff} offen sc1")
    a("s_mov_b64 exec, -1")


def dmax(D, ms=range(4)):
    return [(f"s_add_u32 m0, {W4K}, {XB + (D % 3) * 16384 + 1024 * m}",
             f"buffer_load_dwordx4 v{VXS[m]}, {SRDA}, s{XS + D} offen {'nt' if ('xnt' in OPT and D < 3) else ''} lds", f"x{D}") for m in ms]


def dmaw(ks):
    return [(f"s_add_u32 m0, {W2K}, {WB + (ks % NWS) * 8192 + 1024 * m}",
             f"buffer_load_dwordx4 v{VWS[2 * (ks & 1) + m]}, {SRDB}, s{WSS + (ks >> 1)} offen {'nt' if ('wnt' in OPT and ks < 6) else ''} lds", f"w{ks}") for m in range(2)]


def emit_dma(vm, gs):
    for g in gs:
        a(g[0])
        vm.issue(g[2], g[1])


def soff(D):
    return [f"s_add_u32 s{XS + D}, s{XS + D - 1}, 128\ns_add_u32 s{WSS + D}, s{WSS + D - 1}, {64 * 3456}",
            f"s_cmp_eq_u32 s{XS + D}, 1280\ns_cselect_b32 s{XS + D}, 0, s{XS + D}\ns_cselect_b32 s{WSS + D}, 0, s{WSS + D}"]


def g1_setup_a():
    a(f"""
    s_mul_i32 {RB}, {J}, 37
    s_lshr_b32 {RB}, {RB}, 8
    s_mul_i32 {CT}, {RB}, 7
    s_sub_u32 {CT}, {J}, {CT}
    s_lshr_b32 s9, {XCD}, 1
    s_lshl_b32 s9, s9, 2
    s_add_u32 {RB}, {RB}, s9
    s_and_b32 s9, {XCD}, 1
    s_mul_i32 s9, s9, 7
    s_add_u32 {CT}, {CT}, s9
    v_lshrrev_b32 v4, 3, {LANE}
    s_lshl_b32 s10, {WAVE}, 5
    v_add_u32 v4, s10, v4
    v_mul_u32_u24 v4, 1280, v4
    v_and_b32 v6, 7, {LANE}
    v_xor_b32 v6, v6, {G4}
    v_lshl_add_u32 v{VXS[0]}, v6, 4, v4
    v_xor_b32 v{VXS[1]}, 64, v{VXS[0]}
    v_add_u32 v{VXS[1]}, 10240, v{VXS[1]}
    v_add_u32 v{VXS[2]}, 20480, v{VXS[0]}
    v_add_u32 v{VXS[3]}, 20480, v{VXS[1]}
    s_lshl_b32 s10, {WAVE}, 3
    v_add_u32 v4, s10, {G4}
    v_mul_u32_u24 v4, 3456, v4
    s_lshl_b32 s10, {WF_}, 2
    v_or_b32 v6, s10, {G4}
    v_lshlrev_b32 v6, 1, v6
    v_xor_b32 v6, v6, {L15}
    v_lshl_add_u32 v{VWS[0]}, v6, 4, v4
    s_cmp_eq_u32 {CT}, 13
    s_cselect_b32 s10, 27, 31
    v_and_b32 v6, 8, v6
    v_lshl_add_u32 v{VWS[0]}, v6, s10, v{VWS[0]}
    s_lshl_b32 s10, {CT}, 8
    v_add_u32 v{VWS[0]}, s10, v{VWS[0]}
    v_add_u32 v{VWS[1]}, 13824, v{VWS[0]}
    v_add_u32 v{VWS[2]}, {32 * 3456}, v{VWS[0]}
    v_add_u32 v{VWS[3]}, {32 * 3456}, v{VWS[1]}
    s_lshl_b32 {W2K}, {WAVE}, 11
    s_lshl_b32 {W4K}, {WAVE}, 12
    s_mul_i32 s12, {RB}, 3
    s_add_u32 s12, s12, {CT}
    s_mul_i32 s13, s12, 205
    s_lshr_b32 s13, s13, 11
    s_mul_i32 s13, s13, 10
    s_sub_u32 {D0}, s12, s13
    s_mul_i32 s9, {RB}, {128 * 1280}
    """)


def g1_setup_b():
    srd(48, 16, 17, "s9", 128 * 1280)
    srd(52, 32, 33, None, 640 * 3456)


def g1_setup_c():
    a(f"""
    s_lshl_b32 s10, {WT}, 13
    v_lshlrev_b32 v{VXR[0]}, 7, {L15}
    v_add_u32 v{VXR[0]}, s10, v{VXR[0]}
    v_bfe_u32 v4, {LANE}, 1, 3
    v_xor_b32 v4, v4, {G4}
    v_lshl_add_u32 v{VXR[0]}, v4, 4, v{VXR[0]}
    v_xor_b32 v{VXR[1]}, 64, v{VXR[0]}
    v_bfe_u32 v4, {LANE}, 2, 2
    v_lshl_add_u32 v6, {G4}, 3, v4
    v_lshlrev_b32 v{VWR[0]}, 8, v6
    v_and_b32 v6, 1, {G4}
    v_lshl_or_b32 v6, v6, 2, v4
    s_lshl_b32 s10, {WF_}, 2
    v_xor_b32 v6, s10, v6
    v_lshl_add_u32 v{VWR[0]}, v6, 5, v{VWR[0]}
    v_and_b32 v7, 3, {LANE}
    v_lshl_add_u32 v{VWR[0]}, v7, 3, v{VWR[0]}
    v_add_u32 v{VWR[0]}, {WB}, v{VWR[0]}
    v_xor_b32 v{VWR[1]}, 32, v{VWR[0]}
    v_xor_b32 v{VWR[2]}, 64, v{VWR[0]}
    v_xor_b32 v{VWR[3]}, 0x60, v{VWR[0]}
    v_lshl_add_u32 v6, v7, 3, v4
    v_lshlrev_b32 v253, 7, v6
    v_add_u32 v253, {W4K}, v253
    v_bfe_u32 v6, v6, 1, 3
    v_lshrrev_b32 v7, 5, {LANE}
    v_xor_b32 v6, v6, v7
    v_lshl_add_u32 v253, v6, 4, v253
    v_and_b32 v6, 1, {G4}
    v_lshl_add_u32 v253, v6, 3, v253
    s_lshl_b32 s10, {RB}, 2
    s_add_u32 s10, s10, {WAVE}
    s_mul_i32 {UTO}, s10, 40960
    s_lshl_b32 {UFO}, {D0}, 12
    s_add_u32 {UTO}, {UTO}, {UFO}
    s_add_u32 {UTO}, {UTO}, {UT}
    s_lshl_b32 {UFO}, {D0}, 8
    s_lshl_b32 s10, s10, 2
    s_add_u32 {UFO}, {UFO}, s10
    s_add_u32 {UFO}, {UFO}, {UFLAG}
    s_cmp_lt_u32 {CT}, 10
    s_cselect_b32 s10, 0, {OOB}
    v_lshlrev_b32 {VUT}, 8, {G4}
    v_lshl_add_u32 {VUT}, v4, 5, {VUT}
    v_bfe_u32 v6, {LANE}, 1, 1
    v_lshl_add_u32 {VUT}, v6, 7, {VUT}
    v_and_b32 v6, 1, {LANE}
    v_lshl_add_u32 {VUT}, v6, 4, {VUT}
    v_add_u32 {VUT}, s10, {VUT}
    """)


def ut_step(vm, t):
    vm.wait("x0")
    vm.issue("tag", f"global_load_dword {VTAG}, {ZERO}, {DBG} sc1")
    a(f"v_mov_b32 v{t + 16}, v253\nv_xor_b32 v{t + 17}, 32, v253\nv_xor_b32 v{t + 18}, 64, v253\nv_xor_b32 v{t + 19}, 0x60, v253")
    for dt in range(4):
        a(f"ds_read_b64_tr_b16 {vr(t + 4 * dt, 2)}, v{t + 16 + dt}\nds_read_b64_tr_b16 {vr(t + 2 + 4 * dt, 2)}, v{t + 16 + (dt ^ 1)} offset:512")
    for dt in range(4):
        a(f"s_waitcnt lgkmcnt({6 - 2 * dt})")
        vm.issue("ut", f"buffer_store_dwordx4 {vr(t + 4 * dt, 4)}, {VUT}, {WSRD}, {'s46' if 'nout' in OPT else UTO} offen offset:{1024 * dt} sc1")


def ut_flag(vm):
    vm.wait("ut")
    get_tag()
    flag_store(vm, UFO, VUT)


def opt_int(name, default):
    for x in OPT:
        if x.startswith(name + "="):
            return int(x.split("=")[1])
    return default


VWFL, VUFL, VHFL, VUG, VUL, LOOK1, LOOK2, VPS, VPF = "v8", "v9", "v10", "v11", "v12", "v13", "v14", "v15", "v16"
HV = ["v0", "v5", "v6", "v7"]
JUNK = "v233"
UNIT = "s71"
L_GW = L_W2 + 20480
KCB, HFM = "s9", "s[30:31]"

a("L_code0:")
CODEPF = f"""
s_getpc_b64 s[12:13]
L_pc0:
s_lshr_b32 s10, s2, 3
s_lshl_b32 s10, s10, 11
v_lshl_add_u32 v40, v0, 7, s10
v_min_u32 v40, L_code1-L_pc0-4, v40
v_cmp_gt_u32 vcc, 16, v0
s_and_saveexec_b64 s[8:9], vcc
s_cbranch_execz L_nopf
global_load_dword {JUNK}, v40, s[12:13]
L_nopf:
s_mov_b64 exec, -1
""" if "nopf" not in OPT else ""
stamp(0)
if "entryclk" in OPT:
    a("s_memrealtime s[100:101]")
a(f"""
s_cmp_ge_u32 s2, 256
s_cbranch_scc1 L_end
s_load_dwordx16 s[16:31], s[0:1], 0
s_load_dwordx8 s[32:39], s[0:1], 64
s_load_dwordx4 s[40:43], s[0:1], 96
{CODEPF}
v_lshrrev_b32 v2, 6, v0
v_and_b32 {LANE}, 63, v0
v_mov_b32 {ZERO}, 0
v_readfirstlane_b32 {WAVE}, v2
s_and_b32 {XCD}, s2, 7
s_lshr_b32 {J}, s2, 3
s_mov_b32 s46, {WS_END}
s_mov_b32 s47, 0x20000
v_and_b32 {L15}, 15, v0
v_bfe_u32 {G4}, v0, 4, 2
v_lshlrev_b32 {L16}, 4, {LANE}
s_lshr_b32 {WT}, {WAVE}, 1
s_and_b32 {WF_}, {WAVE}, 1
s_cmp_lt_u32 {J}, 28
s_cbranch_scc1 L_typeA
s_mul_i32 {CP}, s2, 3
s_sub_u32 {CP}, {CP}, 448
s_lshl_b32 s10, {CP}, 9
v_lshl_add_u32 v68, v0, 1, s10
s_lshl_b32 s69, {CP}, 2
s_waitcnt lgkmcnt(0)
global_load_ushort v208, v68, {LOGA} nt
global_load_ushort v209, v68, {AIM} nt
global_load_ushort v210, v68, {CR} nt
global_load_ushort v211, v68, {CI} nt
s_load_dword s48, {LDT}, s69
s_load_dword s52, {DSK}, s69
s_branch L_typeC
L_typeA:
""")


def tlb_touch(who="A"):
    mode = opt_int("tlb", 2)
    if mode == 3 or (mode == 1 and who != "C0") or (mode != 1 and who == "C0"):
        return
    lab = a.newlabel("Ltl")
    sh = 20 if mode == 2 else 18
    a(f"""
    s_cmp_lg_u32 {WAVE}, 1
    s_cbranch_scc1 {lab}
    v_lshlrev_b32 v99, {sh}, {LANE}
    v_add_u32 v99, 0xff80, v99
    buffer_load_dword {JUNK}, v99, {WSRD}, 0 offen sc1
    v_lshlrev_b32 v99, {sh if mode == 2 else 16}, {LANE}
    v_min_u32 v99, {2048 * 1280 - 4}, v99
    global_load_dword {JUNK}, v99, s[38:39] sc1
    {lab}:
    """)


def bf16_round_int(l):
    if l < 256:
        return l
    e = l.bit_length() - 8
    q, r = l >> e, l & ((1 << e) - 1)
    h = 1 << (e - 1)
    if r > h or (r == h and (q & 1)):
        q += 1
    return q << e


PAR = 208
SDT, SDS = 20, 23


def param_loads(vm, n=1):
    for r in range(n):
        for k, ptr in enumerate((LOGA, AIM, CR, CI)):
            vm.issue("par", f"global_load_ushort v{CPAR[r] + k}, v68, {ptr} offset:{512 * r} nt")


CPAR = [208, 212, 240]
def late_addr():
    L = f"""
    s_lshr_b32 {TB}, {XCD}, 1
    s_lshl_b32 {TB}, {TB}, 3
    s_lshr_b32 s10, {J}, 2
    s_add_u32 {TB}, {TB}, s10
    s_and_b32 {CS}, {XCD}, 1
    s_lshl_b32 {CS}, {CS}, 2
    s_and_b32 s10, {J}, 3
    s_add_u32 {CS}, {CS}, s10
    s_mul_i32 s10, {CS}, 5120
    v_add_u32 v2, s10, {L16}
    v_add_u32 v4, 4096, v2
    s_mul_i32 s10, {WAVE}, 14
    v_lshrrev_b32 {VWFL}, 2, {LANE}
    v_min_u32 {VWFL}, 13, {VWFL}
    v_add_u32 {VWFL}, s10, {VWFL}
    v_min_u32 {VWFL}, 53, {VWFL}
    v_lshlrev_b32 {VWFL}, 5, {VWFL}
    v_and_b32 v6, 3, {LANE}
    v_lshl_add_u32 {VWFL}, v6, 2, {VWFL}
    s_and_b32 s10, {XCD}, 1
    s_lshl_b32 s10, s10, 4
    s_add_u32 s10, s10, {WFLAG}
    v_add_u32 {VWFL}, s10, {VWFL}
    v_lshrrev_b32 v6, 3, v0
    v_mul_u32_u24 {VUG}, 40960, v6
    v_and_b32 v7, 7, {LANE}
    v_lshl_add_u32 {VUG}, v7, 4, {VUG}
    v_and_b32 v5, 1, {LANE}
    v_mul_u32_u24 {VUL}, {CHP}, v5
    v_lshl_add_u32 {VUL}, v6, 6, {VUL}
    v_lshrrev_b32 v7, 1, v7
    v_lshl_add_u32 {VUL}, v7, 4, {VUL}
    """.strip().replace("\n", "|").replace("@", "\n").split("|")
    return L


def h_addr():
    L = f"""
    s_mul_i32 s10, {WAVE}, 7
    v_min_u32 {VHFL}, 6, {LANE}
    v_add_u32 {VHFL}, s10, {VHFL}
    v_min_u32 {VHFL}, 26, {VHFL}
    v_lshlrev_b32 {VHFL}, 2, {VHFL}
    s_lshl_b32 s10, {TB}, 7
    v_add_u32 {VHFL}, s10, {VHFL}
    """.strip().split("\n")
    for k in range(4):
        L += [f"s_add_u32 s10, {WAVE}, {k}", "s_and_b32 s10, s10, 3", "s_lshl_b32 s10, s10, 10", f"v_add_u32 {HV[k]}, s10, {L16}"]
    return L


def k_order():
    a(f"s_mul_i32 {WSO}, {WAVE}, {14 * 40960}\ns_mul_i32 {HSO}, {WAVE}, {14 * 4096}")


def pair_addr():
    a(f"""
    s_lshr_b32 s10, {CP}, 5
    s_lshl_b32 s10, s10, 8
    s_add_u32 s10, s10, {UFLAG}
    v_lshl_add_u32 {VUFL}, {LANE}, 2, s10
    s_lshl_b32 {ULO}, {CP}, 7
    s_add_u32 {ULO}, {ULO}, {UT}
    s_mul_i32 {CHB}, {WT}, {CHP}
    s_add_u32 {CHB}, {CHB}, {CPB}
    """)


TW, TR = 58, 62


def kgen_addr():
    return f"""
    s_mul_i32 s10, {WF_}, {L_KO - L_KE}
    s_add_u32 s10, s10, {CHB}
    s_add_u32 s10, s10, {L_KE}
    s_mov_b32 s60, s10
    v_lshl_add_u32 v{TW}, {LANE}, 2, s10
    v_add_u32 v{TW + 1}, {4 * TP}, v{TW}
    v_add_u32 v{TW + 2}, {8 * TP}, v{TW}
    v_add_u32 v{TW + 3}, {12 * TP}, v{TW}
    v_mul_u32_u24 v{TR}, {TP}, {L15}
    v_lshl_add_u32 v{TR}, {G4}, 4, v{TR}
    v_add_u32 v{TR}, s10, v{TR}
    s_lshl_b32 s10, {WF_}, 8
    s_add_u32 s10, s10, {CHB}
    v_lshl_add_u32 v70, {LANE}, 2, s10
    ds_write_b32 v70, {ZERO} offset:{L_U}
    s_mul_i32 s10, {WAVE}, 3072
    s_add_u32 s10, s10, {KCB}
    v_lshrrev_b32 v70, 1, {G4}
    v_and_b32 v71, 1, {G4}
    v_lshlrev_b32 v228, 9, v70
    v_lshl_add_u32 v228, v71, 4, v228
    v_lshl_add_u32 v228, {L15}, 5, v228
    v_add_u32 v228, s10, v228
    v_lshlrev_b32 v73, 8, {G4}
    v_lshlrev_b32 v229, 4, {L15}
    v_lshlrev_b32 v230, 3, {L15}
    v_cmp_gt_u32 vcc, 2, {G4}
    v_add_u32 v231, s10, v73
    v_mov_b32 v78, 0x80
    v_cndmask_b32 v229, v230, v229, vcc
    v_cndmask_b32 v78, v78, 8, vcc
    v_add_u32 v229, v231, v229
    v_add_u32 v230, v229, v78
    v_lshl_add_u32 v231, {L15}, 2, v231
    v_or_b32 v70, {WF_}, {LANE}
    v_cmp_eq_u32 vcc, 0, v70
    v_cndmask_b32 v232, 0, 1.0, vcc
    """.strip().split("\n")


ADDTID = 'addtid' in OPT
TBM = 's60'


def kgen_sections(PAR=208, sdt='s66', sds='s69', tid_off=60000):
    L2E_HI = struct.unpack("<f", struct.pack("<f", 1.4426950408889634))[0]
    L2E_LO = 1.4426950408889634 - L2E_HI
    S = [[]]

    def e(t):
        S[-1].extend(x.strip() for x in t.strip().split("\n"))

    R_, Z8, G1, GC, T1, O1 = 32, 34, 36, 38, 40, 42
    P = lambda k: 44 + 2 * (k - 1)
    RBF, QA, D = 192, [120, 136], [216, 220, 224]
    e(f"s_mov_b32 s12, {f32(L2E_HI)}\ns_mov_b32 s13, {f32(L2E_LO)}")
    e(f"v_mov_b32 v70, {sdt}\nv_lshlrev_b32 v71, 16, v{PAR}")
    for t in ("v_mul_f32 v{a}, s12, v{x}", "v_fma_f32 v{b}, v{x}, s12, -v{a}", "v_exp_f32 v{a}, v{a}", "v_fma_f32 v{b}, v{x}, s13, v{b}",
              "v_mul_f32 v{b}, " + f32(0.6931471805599453) + ", v{b}", "v_fma_f32 v{a}, v{a}, v{b}, v{a}"):
        for i in range(2):
            e(t.format(a=72 + i, b=74 + i, x=70 + i))
    e(f"""
    v_cvt_pk_bf16_f32 v71, v72, v73
    v_lshlrev_b32 v70, 16, v71
    v_and_b32 v71, 0xffff0000, v71
    v_mul_f32 v71, v71, v70
    v_mul_f32 v71, {f32(-1.4426950408889634)}, v71
    v_lshlrev_b32 v72, 16, v{PAR + 1}
    v_mul_f32 v72, v72, v70
    v_mul_f32 v72, 0.15915494, v72
    v_add_f32 v73, v70, v70
    v_lshlrev_b32 v74, 16, v{PAR + 2}
    v_lshlrev_b32 v75, 16, v{PAR + 3}
    v_mul_f32 v{R_}, v74, v73
    v_mul_f32 v{R_ + 1}, -v75, v73
    v_mul_f32 v76, {f32(8.0)}, v71
    v_mul_f32 v77, {f32(128.0)}, v71
    v_mul_f32 v79, {f32(8.0)}, v72
    v_mul_f32 v80, {f32(128.0)}, v72
    v_exp_f32 v76, v76
    v_exp_f32 v77, v77
    v_exp_f32 v78, v71
    v_fract_f32 v79, v79
    v_fract_f32 v80, v80
    v_fract_f32 v81, v72
    v_cos_f32 v82, v79
    v_sin_f32 v83, v79
    v_cos_f32 v84, v80
    v_sin_f32 v85, v80
    v_cos_f32 v86, v81
    v_sin_f32 v87, v81
    v_mul_f32 v{Z8}, v76, v82
    v_mul_f32 v{Z8 + 1}, -v76, v83
    v_mul_f32 v{G1}, v77, v84
    v_mul_f32 v{G1 + 1}, v77, v85
    v_mul_f32 v{P(1)}, v78, v86
    v_mul_f32 v{P(1) + 1}, v78, v87
    """)
    st = {"n": 0}

    def put(row, reg, last=False):
        t = 88 + (st["n"] & 3)
        st["n"] += 1
        e(f"v_mov_b32 v{t}, 0x3f80" if reg is None else f"v_cvt_pk_bf16_f32 v{t}, v{reg}, v{reg + 1}")
        if ADDTID:
            e(f"ds_write_addtid_b32 v{t} offset:{tid_off + row * TP}")
        elif row & 1:
            e(f"ds_write2_b32 v{TW + row // 4}, v{t - 1}, v{t} offset0:{((row - 1) % 4) * TP // 4} offset1:{(row % 4) * TP // 4}")
        elif last:
            e(f"ds_write_b32 v{TW + row // 4}, v{t} offset:{(row % 4) * TP}")
            st["n"] += 1

    def cm(out, x, y):
        e(f"v_pk_mul_f32 {vr(T1, 2)}, {vr(x, 2)}, {vr(y, 2)} op_sel:[0,0] op_sel_hi:[1,0]")
        e(f"v_pk_fma_f32 {vr(out, 2)}, {vr(x, 2)}, {vr(y, 2)}, {vr(T1, 2)} op_sel:[1,1,0] op_sel_hi:[0,1,1] neg_lo:[1,0,0]")

    def rd(base):
        for ks in range(4):
            e(f"ds_read_b128 {vr(base + 4 * ks, 4)}, v{TR} offset:{64 * ks}")

    def mm(d, q, zero):
        for ks in range(4):
            e(f"v_mfma_f32_16x16x32_bf16 {vr(d, 4)}, {vr(q + 4 * ks, 4)}, {vr(RBF + 4 * ks, 4)}, {'0' if (zero and ks == 0) else vr(d, 4)}")

    def sec():
        S.append([f"s_mov_b32 m0, {TBM}"] if ADDTID else [])

    sec()
    for x in range(16):
        put(x, R_)
        if x < 15:
            cm(R_, R_, Z8)
    rd(RBF)
    sec()
    put(0, None)
    for k in range(1, 8):
        put(k, P(k))
        if k < 7:
            cm(P(k + 1), P(k), P(1))
    put(8, G1)
    cm(GC, G1, G1)
    for k in range(1, 8):
        cm(O1, G1, P(k))
        put(8 + k, O1)
    sec()
    rd(QA[0])
    row = 0
    for i in range(2, 8):
        put(row, GC)
        row += 1
        for k in ((2, 4, 6) if i < 4 else (4,)):
            cm(O1, GC, P(k))
            put(row, O1)
            row += 1
        cm(GC, GC, G1)
        if i == 3:
            e(f"v_mul_f32 v{D[0]}, {sds}, v232\nv_mov_b32 v{D[0] + 1}, 0\nv_mov_b32 v{D[0] + 2}, 0\nv_mov_b32 v{D[0] + 3}, 0\ns_waitcnt lgkmcnt({8 if ADDTID else 4})")
            mm(D[0], QA[0], False)
    sec()
    rd(QA[1])
    for i in range(8, 17):
        put(i - 8, GC, last=(i == 16))
        if i < 16:
            cm(GC, GC, G1)
    rd(QA[0])
    e(f"ds_write_b128 v228, {vr(D[0], 4)}\ns_waitcnt lgkmcnt({14 if ADDTID else 10})")
    mm(D[1], QA[1], True)
    S.append([])
    e("s_waitcnt lgkmcnt(0)")
    mm(D[2], QA[0], True)
    e(f"ds_write_b64 v229, {vr(D[1], 2)} offset:1024\nds_write_b64 v230, {vr(D[1] + 2, 2)} offset:1024")
    for j in range(4):
        e(f"ds_write_b32 v231, v{D[2] + j} offset:{2048 + 64 * j}")
    return S


def emit_mixed(vm, lines, ops, every):
    for n, l in enumerate(lines):
        a(l)
        if ops and n % every == every - 1:
            emit_op(vm, ops.pop(0))


def expansion(between=None):
    E = {3: 36, 2: 36, 1: 40, 0: 44}
    F = {3: 52, 2: 52, 1: 56, 0: 192}
    l1, l2, l3, l4 = (a.newlabel("Le") for _ in range(4))
    a(f"""
    s_mul_i32 s10, {WT}, 6144
    s_add_u32 s10, s10, {KCB}
    v_sub_u32 v32, 63, {LANE}
    v_lshl_add_u32 v33, v32, 3, s10
    s_cmp_eq_u32 {WF_}, 1
    s_cbranch_scc1 {l1}
    """)

    def rd3(s, idx):
        for h, R in enumerate((E, F)):
            a(f"ds_read_b64 {vr(R[s], 2)}, v33 offset:{3072 * h + 4 * idx}\nds_read_b32 v{R[s] + 2}, v33 offset:{3072 * h + 4 * idx + 8}")

    rd3(3, 512)
    a(f"s_branch {l2}\n{l1}:\nv_lshl_add_u32 v34, v32, 4, s10")
    rd3(2, 384)
    rd3(1, 256)
    for h, R in enumerate((E, F)):
        a(f"ds_read_b128 {vr(R[0], 4)}, v34 offset:{3072 * h}\nds_read_b32 v{R[0] + 4}, v34 offset:{3072 * h + 16}")
    a(f"{l2}:")
    if between:
        between()
    a(f"s_cmp_eq_u32 {WF_}, 1\ns_cbranch_scc1 {l3}\nv_lshl_add_u32 v32, {LANE}, 5, {CHB}\ns_waitcnt lgkmcnt(0)")

    def add3(s):
        a(f"v_pk_add_f32 {vr(E[s], 2)}, {vr(E[s], 2)}, {vr(F[s], 2)}\nv_add_f32 v{E[s] + 2}, v{E[s] + 2}, v{F[s] + 2}")

    def pack(s, l0, Bn, step, sh, t):
        val = lambda x: E[s] + (bf16_round_int(l0 + 64 + x) - (l0 + 64)) // step
        for m in range(Bn // 2):
            a(f"v_cvt_pk_bf16_f32 v{t + m}, v{val(Bn - sh - 2 * m)}, v{val(Bn - sh - 1 - 2 * m)}")

    add3(3)
    for sh, base in ((0, L_KE), (1, L_KO)):
        t = 192 + 8 * sh
        pack(3, 1024, 16, 8, sh, t)
        a(f"ds_write_b128 v32, {vr(t, 4)} offset:{base}\nds_write_b128 v32, {vr(t + 4, 4)} offset:{base + 16}")
    a(f"""
    s_branch {l4}
    {l3}:
    v_lshl_add_u32 v33, {LANE}, 4, {CHB}
    v_lshl_add_u32 v34, {LANE}, 3, {CHB}
    v_lshl_add_u32 v35, v32, 2, {CHB}
    v_cmp_eq_u32 vcc, 63, {LANE}
    s_waitcnt lgkmcnt(0)
    """)
    add3(2)
    add3(1)
    a(f"v_pk_add_f32 {vr(E[0], 2)}, {vr(E[0], 2)}, {vr(F[0], 2)}\nv_pk_add_f32 {vr(E[0] + 2, 2)}, {vr(E[0] + 2, 2)}, {vr(F[0] + 2, 2)}\nv_add_f32 v{E[0] + 4}, v{E[0] + 4}, v{F[0] + 4}")
    for sh, base in ((0, L_KE), (1, L_KO)):
        t = 192 + 8 * sh
        pack(2, 512, 8, 4, sh, t)
        pack(1, 256, 4, 2, sh, t + 4)
        pack(0, 0, 4, 1, sh, t + 6)
        a(f"ds_write_b128 v33, {vr(t, 4)} offset:{base + 2048}\nds_write_b64 v34, {vr(t + 4, 2)} offset:{base + 3072}\nds_write_b64 v34, {vr(t + 6, 2)} offset:{base + 3584}")
    a(f"""
    v_cvt_pk_bf16_f32 v208, v{E[0]}, {ZERO}
    v_cndmask_b32 v208, 0, v208, vcc
    ds_write_b32 v35, {ZERO} offset:{L_KO + 4096}
    ds_write_b32 v35, v208 offset:{L_KE + 4096}
    {l4}:
    """)


WSLOT = [vr(4 * i, 4, "a") for i in range(64)] + [vr(224 + 4 * i, 4) for i in range(6)]


def wload_ops():
    L = []
    for i in range(14):
        for dt in range(5):
            post = f"s_add_u32 {WSO}, {WSO}, 40960" if dt == 4 else None
            L.append((f"buffer_load_dwordx4 {WSLOT[5 * i + dt]}, {'v4' if dt == 4 else 'v2'}, {SRDC}, {WSO} offen offset:{1024 * (dt & 3)} sc1", f"W{i}", post))
    return L


def emit_op(vm, op):
    vm.issue(op[1], op[0])
    if op[2]:
        a(op[2])


def uload_ops():
    return [(f"buffer_load_dwordx4 {vr(24 + 4 * n, 4)}, {VUG}, {WSRD}, {ULO} offen sc1", "u",
             f"s_add_u32 {ULO}, {ULO}, {32 * 40960}" if n == 0 else None) for n in range(2)]


NEARLY = opt_int("nearly", 22)
NGAP = opt_int("ngap", 70 - NEARLY)
WTAIL = opt_int("wtail", 10)
LOOKAT, CHECKAT = opt_int('lookat', 11), opt_int('checkat', 13)
HP = opt_int('hp', 0)

def prep_block(vm, t=100):
    lab = a.newlabel("Lw")
    a(f"s_cmp_ge_u32 {UNIT}, 108\ns_cbranch_scc1 {lab}")
    for aa in range(5):
        a(f"ds_read_b64_tr_b16 {vr(t + 4 * aa, 2)}, v234 offset:{128 * aa}\nds_read_b64_tr_b16 {vr(t + 2 + 4 * aa, 2)}, v234 offset:{128 * aa + 10240}")
    for aa in range(5):
        a(f"s_waitcnt lgkmcnt({8 - 2 * aa})\ns_mov_b32 s10, {4096 * aa}")
        a(f"buffer_store_dwordx4 {vr(t + 4 * aa, 4)}, {VPS}, {WSRD}, s10 offen sc1")
    a(f"{lab}:")
    vm.issue("pst", f"buffer_load_dword {JUNK}, {ZERO}, {WSRD}, s46 offen")


vmA = VM(a)
a(f"""
s_mov_b32 {CP}, s2
s_mov_b32 {CPB}, {CB}
s_lshl_b32 s10, {CP}, 9
v_lshl_add_u32 v68, v0, 1, s10
s_lshl_b32 s69, {CP}, 2
""")
g1_setup_a()
a("s_waitcnt lgkmcnt(0)" + WSHIFT)
param_loads(vmA)
a(f"s_load_dword s66, {LDT}, s69\ns_load_dword s69, {DSK}, s69")
g1_setup_b()
a(f"""
s_mov_b32 s44, s42
s_mov_b32 s45, s43
s_lshl_b32 s{XS}, {D0}, 7
s_mul_i32 s{WSS}, {D0}, {64 * 3456}
""")
emit_dma(vmA, dmax(0))
tlb_touch()
stamp(7)
srd(56, 34, 35, None, 0 if "now2" in OPT else 1728 * 1280)
a(f"""
s_cmp_lg_u32 {J}, 17
s_cbranch_scc1 L_a_notag
s_cmp_lg_u32 {WAVE}, 0
s_cbranch_scc1 L_a_notag
s_memrealtime s[12:13]
s_waitcnt lgkmcnt(0)
{"s_mov_b32 s12, s100" if "entryclk" in OPT else ""}
s_or_b32 s12, s12, 1
v_mov_b32 v40, s12
v_mov_b32 v41, 0
s_mov_b64 exec, 1
global_atomic_cmpswap {ZERO}, v[40:41], {DBG} sc1
s_mov_b64 exec, -1
L_a_notag:
""")
a(f"""
s_mul_i32 s10, {J}, 37
s_lshr_b32 s10, s10, 8
s_lshl_b32 s12, s10, 3
s_sub_u32 {UNIT}, s2, s12
s_mul_i32 s10, s10, 7
s_add_u32 s10, s10, 6
s_cmp_eq_u32 s10, {J}
s_cselect_b32 {UNIT}, 127, {UNIT}
s_lshr_b32 s9, {UNIT}, 1
s_mul_i32 s9, s9, 40960
s_and_b32 s12, {UNIT}, 1
s_mul_i32 s13, s12, 640
s_add_u32 s13, s13, s9
s_mul_i32 s10, {WAVE}, 10240
s_add_u32 s13, s13, s10
v_lshrrev_b32 v7, 3, {LANE}
""")
for m in range(5):
    a(f"""
    v_add_u32 v42, {8 * m}, v7
    v_mul_u32_u24 v42, 13, v42
    v_lshrrev_b32 v42, 6, v42
    v_and_b32 v43, 6, v42
    v_xor_b32 v43, v43, {LANE}
    v_mul_u32_u24 v42, 640, v42
    v_lshl_add_u32 v42, v43, 4, v42
    v_add_u32 v{92 + m}, s13, v42
    """)
a(f"""
v_add_u32 v96, 4096, v96
s_mul_i32 s10, {WAVE}, 5120
s_add_u32 s10, s10, {L_W2}
""")
LATEPRE = opt_int("latepre", 0)


def pre_dma():
    for m in range(5):
        a(f"s_add_u32 m0, s10, {4096 if m == 4 else 0}")
        vmA.issue("pre", f"buffer_load_dwordx4 v{92 + m}, {SRDC}, 0 offen offset:{1024 * (m & 3)} {'' if 'w2plain' in OPT else 'nt'} lds")


if not LATEPRE:
    pre_dma()
a(f"""
s_mul_i32 s12, s12, 20480
s_add_u32 s12, s12, s9
s_add_u32 s12, s12, {W2F}
s_lshl_b32 s10, {WAVE}, 10
s_add_u32 s12, s12, s10
s_cmp_lt_u32 {UNIT}, 108
s_cselect_b32 s10, 0, {OOB}
v_mov_b32 {VPF}, s10
s_add_u32 s12, s12, s10
v_add_u32 {VPS}, s12, {L16}
s_lshl_b32 {PF2}, {UNIT}, 4
s_lshl_b32 s10, {WAVE}, 2
s_add_u32 {PF2}, {PF2}, s10
s_add_u32 {PF2}, {PF2}, {WFLAG}
v_lshrrev_b32 v40, 2, {LANE}
v_mul_u32_u24 v234, 640, v40
v_bfe_u32 v40, {LANE}, 3, 2
v_xor_b32 v40, {WAVE}, v40
v_lshl_add_u32 v234, v40, 5, v234
v_and_b32 v40, 3, {LANE}
v_lshl_add_u32 v234, v40, 3, v234
v_add_u32 v234, {L_W2}, v234
""")
a(f"s_mov_b32 {KCB}, {L_KC}\ns_mul_i32 {CHB}, {WT}, {CHP}\ns_add_u32 {CHB}, {CHB}, {CPB}")
for l in kgen_addr():
    a(l)
for D in range(1, 10):
    for l in soff(D):
        a(l)
g1_setup_c()
for l in late_addr():
    a(l)
a(f"""
s_lshl_b32 s10, {WT}, 4
s_waitcnt lgkmcnt(0)
s_lshr_b32 s66, s66, s10
s_lshl_b32 s66, s66, 16
s_lshr_b32 s69, s69, s10
s_lshl_b32 s69, s69, 16
""")
KS = kgen_sections()
a("s_sub_u32 s60, s60, 60000")
vmA.wait("par")
stamp(8)
pend = dmaw(0) + dmaw(1) + dmax(1) + dmaw(2) + dmaw(3) + dmax(2) + dmaw(4) + dmaw(5)
for n, sec in enumerate(KS):
    for l in sec:
        a(l)
    if n == opt_int('gfat', 0):
        a(f"s_lshl_b32 s10, {CT}, 1\ns_add_u32 s10, s10, {WF_}\ns_cmp_lg_u32 s10, 27\ns_cbranch_scc1 L_a_nogf")
        srd(56, 36, 37, None, 1280)
        a(f"""
        s_lshl_b32 s10, {WT}, 11
        s_add_u32 m0, s10, {L_GW}
        s_add_u32 s10, s10, {L_GW}
        buffer_load_dwordx4 {L16}, {SRDC}, 0 offen lds
        buffer_load_dwordx4 {L16}, {SRDC}, 0 offen offset:1024 lds
        v_lshl_add_u32 v{VWR[0]}, {G4}, 4, s10
        L_a_nogf:
        """)
    if n < opt_int("pregrp", 5):
        emit_dma(vmA, pend[:4])
        pend = pend[4:]
    if n == 1:
        ut_step(vmA, 72)
    if n == opt_int('prepat', 3):
        if LATEPRE:
            vmA.wait("ut")
        else:
            vmA.wait("pre", "ut")
            a("s_barrier")
        get_tag()
        flag_store(vmA, UFO, VUT)
        if not LATEPRE:
            prep_block(vmA)
    if n == LATEPRE - 1:
        a(f"s_mul_i32 s10, {WAVE}, 5120\ns_add_u32 s10, s10, {L_W2}")
        pre_dma()
srd(56, 42, 43, W2F, 54 * 40960); k_order()
pair_addr()
if "expre" in OPT:
    a("s_waitcnt lgkmcnt(0)\ns_barrier")
    expansion()
stamp(9)


def gemm1(vm, gate=False):
    if gate:
        a("L_g1_gate:")
        if opt_int("gfat", 0):
            vm.wait("w5")
    else:
        a(f"s_lshl_b32 s10, {CT}, 1\ns_add_u32 s10, s10, {WF_}\ns_cmp_eq_u32 s10, 27\ns_cbranch_scc1 L_g1_gate")
    ACC = 64
    WF, XF = [128, 160], [144, 176]

    def reads(ks):
        s = ks & 1
        L = []
        if gate:
            L.append(f"v_add_u32 v{VWR[1]}, s{XS + (ks >> 1)}, v{VWR[0]}\nds_read_b128 {vr(WF[s], 4)}, v{VWR[1]} offset:{64 * s}")
        for i in range(4):
            L.append(f"ds_read_b128 {vr(XF[s] + 4 * i, 4)}, v{VXR[s]} offset:{XB + ((ks >> 1) % 3) * 16384 + 2048 * i}")
            if not gate:
                L.append(f"ds_read_b64_tr_b16 {vr(WF[s] + 4 * i, 2)}, v{VWR[i]} offset:{(ks % NWS) * 8192}")
                L.append(f"ds_read_b64_tr_b16 {vr(WF[s] + 4 * i + 2, 2)}, v{VWR[i]} offset:{(ks % NWS) * 8192 + 1024}")
        return L

    vm.wait("x0", "w0", "ut", extra="lgkmcnt(0)")
    PSTEP = opt_int("pstep", 5) if LATEPRE else -4
    a("s_barrier")
    stamp(1)
    for l in reads(0):
        a(l)
    misc = []
    ops = uload_ops() + wload_ops()[:NEARLY]
    for ks in range(20):
        s = ks & 1
        B2 = "bar1" not in OPT
        if B2 and ks % 2 == 0 and ks > 0:
            vm.wait(*(["look"] if ks == CHECKAT else []), extra="lgkmcnt(0)")
        elif ks < 19:
            vm.wait(f"x{(ks + 1) >> 1}", f"w{ks + 1}", *([f"w{ks + 2}"] if B2 and ks else []), *(["look"] if ks == CHECKAT else []), *(["pst"] if ks == PSTEP + 4 else []), *(["pre"] if ks == PSTEP else []), extra="lgkmcnt(0)")
            a("s_barrier")
        else:
            a("s_waitcnt lgkmcnt(0)")
        if ks in (5, 10, 15) and "g2st" not in OPT and "cvst" not in OPT:
            stamp(9 + ks // 5)
        if ks == PSTEP:
            prep_block(vm, 32)
        if ks == PSTEP + 4:
            flag_store(vm, PF2, VPF)
        if ks == CHECKAT:
            poll(VWFL, LOOK1, first_issued=True)
            poll(VUFL, LOOK2, first_issued=True)
        rd_ = reads(ks + 1) if ks < 19 else []
        dm = []
        kw = ks + NWS - (1 if B2 else 0)
        if kw < 20 and kw >= NWS:
            dm += dmaw(kw)
        if ks >= 1:
            D = (ks - 1) // 2 + 3
            if D < 10:
                dm += dmax(D, (0, 1) if ks & 1 else (2, 3))
        if ks == 0:
            dm = list(pend) + dm
        many = len(dm) > 4
        n = 0
        for ft in range(4):
            for tt in range(4):
                d = vr(ACC + 16 * ft + 4 * tt, 4)
                slot = (n % 2 == 1 if many else n % 4 == 1) if ks < 15 else n % 3 == 1
                g = dm.pop(0) if (dm and slot) else None
                if g:
                    a(g[0])
                if not gate or ft == 0:
                    a(f"v_mfma_f32_16x16x32_bf16 {d}, {vr(WF[s] + 4 * ft, 4)}, {vr(XF[s] + 4 * tt, 4)}, {'0' if ks == 0 else d}")
                if g:
                    vm.issue(g[2], g[1])
                elif ks >= CHECKAT and ops and (slot or ks == 19):
                    emit_op(vm, ops.pop(0))
                elif rd_:
                    a(rd_.pop(0))
                    if rd_ and (n % 4 == 2 or many):
                        a(rd_.pop(0))
                elif misc:
                    for _ in range(2):
                        if misc:
                            a(misc.pop(0))
                if ks == LOOKAT and n == 15:
                    assert not misc
                    vm.issue("look", f"buffer_load_dword {LOOK1}, {VWFL}, {WSRD}, 0 offen sc1")
                    vm.issue("look", f"buffer_load_dword {LOOK2}, {VUFL}, {WSRD}, 0 offen sc1")
                n += 1
        assert not dm and not rd_
    assert not ops
    if gate:
        a(f"""
        s_nop 7
        v_cmp_eq_u32 vcc, 1, {G4}
        v_cmp_eq_u32 s[12:13], 2, {G4}
        s_lshl_b32 s10, {RB}, 1
        v_cndmask_b32 v64, v64, v68, vcc
        v_cmp_eq_u32 vcc, 3, {G4}
        v_cndmask_b32 v64, v64, v72, s[12:13]
        s_add_u32 s10, s10, {WT}
        v_cndmask_b32 v64, v64, v76, vcc
        v_cvt_pk_bf16_f32 v64, v64, v64
        v_and_b32 v64, 0xffff0000, v64
        v_mul_f32 v64, {f32(-1.4426950408889634)}, v64
        v_exp_f32 v64, v64
        v_add_f32 v64, 1.0, v64
        v_rcp_f32 v64, v64
        v_cvt_pk_bf16_f32 v64, v64, v64
        v_and_b32 v64, 0xffff0000, v64
        v_lshlrev_b32 v65, 2, {LANE}
        s_lshl_b32 s10, s10, 8
        s_add_u32 s10, s10, {G_OFF}
        buffer_store_dword v64, v65, {WSRD}, s10 offen sc1
        s_branch L_g1_done
        """)
        return
    a("L_g1_done:")
    stamp(2)


def h_publish(vm=vmA, ACC=64):
    a(f"""
    s_lshl_b32 {RB}, {RB}, 1
    s_add_u32 {RB}, {RB}, {WT}
    s_lshl_b32 {CT}, {CT}, 1
    s_add_u32 {CT}, {CT}, {WF_}
    s_mul_i32 s16, {RB}, {54 * 4096}
    s_lshl_b32 s10, {CT}, 13
    s_add_u32 s16, s16, s10
    s_add_u32 s16, s16, {HF}
    s_add_u32 s17, s16, 4096
    s_lshl_b32 {HFO}, {RB}, 7
    s_lshl_b32 s10, {CT}, 2
    s_add_u32 {HFO}, {HFO}, s10
    s_cmp_lt_u32 {CT}, 27
    s_cselect_b32 s10, 0, {OOB}
    v_add_u32 {VUT}, s10, {L16}
    """)
    t = 160
    for m in range(2):
        for tt in range(4):
            for h in range(2):
                r = ACC + 16 * (2 * m + h) + 4 * tt
                a(f"v_cvt_pk_bf16_f32 v{t + 2 * h}, v{r}, v{r + 1}\nv_cvt_pk_bf16_f32 v{t + 2 * h + 1}, v{r + 2}, v{r + 3}")
            for k in range(4):
                a(f"v_pk_max_i16 v{t + k}, v{t + k}, 0")
            vm.issue("hst", f"buffer_store_dwordx4 {vr(t, 4)}, {VUT}, {WSRD}, s{16 + m} offen offset:{1024 * tt} sc1")
            t += 4


q_g1 = list(vmA.q)
gemm1(vmA)
gops = wload_ops()[NEARLY:NEARLY + NGAP]
if "expre" in OPT:
    h_publish()
else:
    expansion(h_publish)
for _ in range(6):
    emit_op(vmA, gops.pop(0))

HSLOT = [192, 208, 88, 104, 120, 136]
NH = 6


def hload(vm, i, k):
    vm.issue(f"h{i}_{k}", f"buffer_load_dwordx4 {vr(HSLOT[i % NH] + 4 * k, 4)}, {HV[k]}, {SRDB}, s{22 + i} offen sc1")


ROWS = [[(i, k) for k in range(4)] for i in range(11)]
g_ = [(i, k) for k in (1, 2, 3, 0) for i in range(11, 14)]
ROWS += [g_[0:4], g_[4:8], g_[8:12]]
HORDER = [x for r in ROWS for x in r]


def conv(vm, ops, rounds):
    main = rounds == 1
    if main:
        a(f"v_add_u32 v17, {CPB}, {VUL}")
        vm.wait("u")
        for n in range(2):
            a(f"ds_write_b128 v17, {vr(24 + 4 * n, 4)} offset:{L_U + 512 + 2048 * n}")
    a(f"""
    s_lshl_b32 s10, {WF_}, 6
    s_sub_u32 s10, {CHB}, s10
    v_and_b32 v19, 1, {L15}
    v_mul_u32_u24 v19, {L_KO - 2 - L_KE}, v19
    v_lshl_add_u32 v19, {G4}, 4, v19
    v_lshlrev_b32 v18, 1, {L15}
    v_sub_u32 v19, v19, v18
    v_add_u32 v19, s10, v19
    v_add_u32 v20, {L_KE + 4064 - 512}, v19
    v_add_u32 v21, {L_KE + 4064 - 512 * 3}, v19
    v_add_u32 v22, {L_KE + 4064 - 512 * 5}, v19
    v_add_u32 v23, {L_KE + 4064 - 512 * 7}, v19
    v_lshlrev_b32 v19, 5, {L15}
    v_lshl_add_u32 v19, {G4}, 4, v19
    v_add_u32 v19, s10, v19
    v_add_u32 v19, {L_U + 480}, v19
    s_waitcnt lgkmcnt(0)
    s_barrier
    """)
    stamp(3)
    ACCS = [32, 192]
    AS, BS = [64, 128], [96, 160]

    def loads(g):
        s = g & 1
        L = []
        for m in range(8):
            L.append(f"ds_read_b128 {vr(BS[s] + 4 * m, 4)}, v19 offset:{512 * m}")
        for q in range(8):
            o = 128 if q % 2 == 0 else 0
            r = AS[s] + 4 * q
            L.append(f"ds_read2_b32 {vr(r, 2)}, v{20 + q // 2} offset0:{o} offset1:{o + 1}")
            L.append(f"ds_read2_b32 {vr(r + 2, 2)}, v{20 + q // 2} offset0:{o + 2} offset1:{o + 3}")
        for r in range(19, 24):
            L.append(f"v_add_u32 v{r}, {2 * CHP + 384}, v{r}" if g % 4 == 3 else f"v_subrev_u32 v{r}, 128, v{r}")
        return L

    def send(ACC):
        l1, l2 = a.newlabel("Lx"), a.newlabel("Lx")
        a(f"s_cmp_eq_u32 {WF_}, 1\ns_cbranch_scc1 {l1}\ns_nop 5")
        for j in range(4):
            a(f"ds_write_b128 v17, {vr(ACC + 16 + 4 * j, 4)} offset:{1024 * j}")
        a(f"s_branch {l2}\n{l1}:\ns_nop 5")
        for j in range(4):
            a(f"ds_write_b128 v17, {vr(ACC + 4 * j, 4)} offset:{1024 * j}")
        a(f"{l2}:")

    def recv(ACC):
        l1, l2 = a.newlabel("Lx"), a.newlabel("Lx")
        a(f"s_cmp_eq_u32 {WF_}, 1\ns_cbranch_scc1 {l1}")
        for j in range(4):
            a(f"ds_read_b128 {vr(ACC + 16 + 4 * j, 4)}, v18 offset:{1024 * j}")
        a(f"s_branch {l2}\n{l1}:")
        for j in range(4):
            a(f"ds_read_b128 {vr(ACC + 4 * j, 4)}, v18 offset:{1024 * j}")
        a(f"{l2}:")

    def out_lines(ACC):
        L = []
        for j in range(4):
            L += [f"v_pk_add_f32 {vr(ACC + 4 * j, 2)}, {vr(ACC + 4 * j, 2)}, {vr(ACC + 16 + 4 * j, 2)}",
                  f"v_pk_add_f32 {vr(ACC + 4 * j + 2, 2)}, {vr(ACC + 4 * j + 2, 2)}, {vr(ACC + 18 + 4 * j, 2)}",
                  f"v_cvt_pk_bf16_f32 v{24 + 2 * j}, v{ACC + 4 * j}, v{ACC + 4 * j + 1}", f"v_cvt_pk_bf16_f32 v{25 + 2 * j}, v{ACC + 4 * j + 2}, v{ACC + 4 * j + 3}"]
        for jp in range(2):
            L += [f"v_permlane16_swap_b32 v{24 + 4 * jp}, v{26 + 4 * jp}", f"v_permlane16_swap_b32 v{25 + 4 * jp}, v{27 + 4 * jp}"]
        return L

    def out_store():
        for jp in range(2):
            vm.issue("ast", f"buffer_store_dwordx4 {vr(24 + 4 * jp, 4)}, {VPS}, {WSRD}, s16 offen offset:{1024 * jp} sc1")

    for l in loads(0):
        a(l)
    misc = f"""
    s_lshl_b32 s10, {WAVE}, 12
    s_add_u32 s10, s10, {L_W2}
    v_add_u32 v17, s10, {L16}
    s_xor_b32 s10, {WAVE}, 1
    s_lshl_b32 s10, s10, 12
    s_add_u32 s10, s10, {L_W2}
    v_add_u32 v18, s10, {L16}
    v_lshlrev_b32 {VPS}, 5, {L15}
    v_lshrrev_b32 {VPF}, 1, {G4}
    v_lshl_add_u32 {VPS}, {VPF}, 4, {VPS}
    v_and_b32 {VPF}, 1, {G4}
    v_lshl_add_u32 {VPS}, {VPF}, 9, {VPS}
    s_lshl_b32 s16, {CP}, 13
    s_add_u32 s16, s16, {W2K}
    s_add_u32 s16, s16, {AG}
    s_mul_i32 {PFO}, {WF_}, 2560
    s_lshl_b32 s10, {CP}, 3
    s_add_u32 {PFO}, {PFO}, s10
    s_lshl_b32 s10, {WT}, 2
    s_add_u32 {PFO}, {PFO}, s10
    s_add_u32 {PFO}, {PFO}, {AFLAG}
    """.strip().split("\n")
    tail_ops = [ops.pop() for _ in range(WTAIL if main else 0)][::-1]
    every = max(3, 130 // max(1, len(ops))) if main else 4
    for g in range(4 * rounds):
        r, p, s = g // 4, g % 4, g & 1
        ACC = ACCS[r & 1]
        nxt = loads(g + 1) if g + 1 < 4 * rounds else []
        a("s_waitcnt lgkmcnt(0)")
        if "phases" in OPT:
            stamp(g + 1, True)
        extra = h_addr() if g == 4 * rounds - 1 else []
        if main and "cvst" in OPT and p == HP:
            stamp(10)
        if main and p == HP:
            vm.wait("hst")
            flag_store(vm, HFO, ZERO)
        if main and "cvst" in OPT and p == HP:
            stamp(11)
        if main and "cvst" in OPT and p == 3:
            stamp(12)
        if not main and "cvst" in OPT and g in (4, 8):
            stamp(10 + g // 4)
        if r > 0 and p == 1:
            a("s_barrier")
            recv(ACCS[(r - 1) & 1])
        if r > 0 and p == 2:
            a("s_barrier")
            extra = out_lines(ACCS[(r - 1) & 1])
        if r > 0 and p == 3:
            out_store()
            a("s_add_u32 s16, s16, 8192")
        if r > 1 and p == 1:
            vm.wait("ast")
            flag_store(vm, PFO, ZERO)
            a(f"s_add_u32 {PFO}, {PFO}, 8")
        if not main and g == 3:
            vm.wait("look")
            poll(VWFL, LOOK1, first_issued=True, nap=8)
        n = 0
        for q in range(8):
            for j in range(q, 8):
                c = "0" if (p == 0 and q == 0) else vr(ACC + 4 * j, 4)
                a(f"v_mfma_f32_16x16x32_bf16 {vr(ACC + 4 * j, 4)}, {vr(AS[s] + 4 * q, 4)}, {vr(BS[s] + 4 * (j - q), 4)}, {c}")
                isop = ops and n % every == every - 1 and (main or g >= 3)
                if isop:
                    emit_op(vm, ops.pop(0))
                if "share" in OPT:
                    if nxt:
                        a(nxt.pop(0))
                    if not isop:
                        if extra:
                            a(extra.pop(0))
                        elif misc:
                            a(misc.pop(0))
                elif not isop:
                    if nxt:
                        a(nxt.pop(0))
                        if nxt and len(nxt) > (35 - n) * (every - 1) // every - 1:
                            a(nxt.pop(0))
                        elif extra:
                            a(extra.pop(0))
                    else:
                        for _ in range(2):
                            if extra:
                                a(extra.pop(0))
                            elif misc:
                                a(misc.pop(0))
                if not main and g == 1 and n == 30:
                    vm.issue("look", f"buffer_load_dword {LOOK1}, {VWFL}, {WSRD}, 0 offen sc1")
                if g == 4 * rounds - 1 and n == 30:
                    vm.issue("look", f"buffer_load_dword {LOOK1}, {VHFL}, {WSRD}, 0 offen sc1")
                n += 1
        for l in nxt + extra + (misc if p == 2 else []):
            a(l)
        if p == 2:
            misc = []
        if p == 3:
            if g == 4 * rounds - 1:
                stamp(4)
            send(ACC)
            if g == 4 * rounds - 1:
                for op in tail_ops:
                    emit_op(vm, op)
    assert not misc and not ops
    if not main:
        vm.wait("ast")
        flag_store(vm, PFO, ZERO)
        a(f"s_add_u32 {PFO}, {PFO}, 8")
    a("s_waitcnt lgkmcnt(0)\ns_barrier")
    recv(ACCS[0])
    a("s_waitcnt lgkmcnt(0)")
    for l in out_lines(ACCS[0]):
        a(l)
    out_store()


conv(vmA, gops, 1)
q_g2 = list(vmA.q)
a("L_gemm2:")


def gemm2(vm):
    a(f"s_mul_i32 s10, {TB}, {54 * 4096}\ns_add_u32 s10, s10, {HF}")
    srd(52, 42, 43, "s10", 54 * 4096)
    for i in range(3):
        a(f"s_add_u32 s{22 + i}, {HSO}, {4096 * i}")
    vm.wait("look")
    poll(VHFL, LOOK1, first_issued=True)
    stamp(5)
    hq = list(HORDER)
    LEAD = opt_int("lead", 12)
    for n in range(LEAD):
        hload(vm, *hq.pop(0))
    wrest = wload_ops()[NEARLY + NGAP:]
    ACC = 8
    X, Y = 152, 172
    XW = Y + 12
    GA, AR, PR = (192, X + 8, 88) if "noga" in OPT else (88, X + 8, 192)
    for i in range(3, 14):
        a(f"s_add_u32 s{22 + i}, {HSO}, {4096 * i}")
    a(f"""
    s_mul_i32 s18, {WAVE}, 20480
    v_add_u32 v{XW}, s18, {L16}
    """)
    for k in range(1, 4):
        a(f"s_sub_u32 s10, {WAVE}, {k}\ns_and_b32 s10, s10, 3\ns_mul_i32 s10, s10, 20480\nv_add_u32 v{XW + k}, s10, {L16}")
    a(f"""
    s_lshr_b32 s10, {TB}, 4
    s_mul_i32 s10, s10, 2560
    s_mul_i32 s16, {CS}, 320
    s_add_u32 s10, s10, s16
    s_add_u32 s10, s10, {AFLAG}
    v_lshl_add_u32 v{X + 5}, {LANE}, 3, s10
    s_lshl_b32 s10, {TB}, 7
    s_add_u32 s10, s10, {26 * 4}
    v_mov_b32 v{X + 6}, s10
    v_cmp_gt_u32 vcc, 40, {LANE}
    v_lshrrev_b32 v{X + 2}, 5, {LANE}
    v_bfe_u32 v{X + 3}, {LANE}, 3, 2
    v_cndmask_b32 v{X + 5}, v{X + 6}, v{X + 5}, vcc
    v_lshl_add_u32 v{X + 2}, v{X + 2}, 4, v{X + 3}
    v_and_b32 v{X + 3}, 7, {LANE}
    v_lshlrev_b32 v{X + 2}, 12, v{X + 2}
    v_lshl_add_u32 v{X + 2}, v{X + 3}, 4, v{X + 2}
    s_mul_i32 s16, {CS}, {80 * 4096}
    s_lshl_b32 s10, {TB}, 7
    s_add_u32 s16, s16, s10
    s_add_u32 s16, s16, {AG}
    s_lshl_b32 s17, {TB}, 8
    s_lshl_b32 s10, {WAVE}, 6
    s_add_u32 s17, s17, s10
    s_add_u32 s17, s17, {G_OFF}
    v_lshlrev_b32 v{X + 3}, 2, {L15}
    s_lshl_b32 s20, {WAVE}, 14
    s_lshl_b32 s19, {TB}, 6
    s_lshl_b32 s10, {WAVE}, 4
    s_add_u32 s19, s19, s10
    s_mul_i32 s19, s19, 1280
    s_mul_i32 s10, {CS}, 160
    s_add_u32 s19, s19, s10
    s_mov_b32 s48, s38
    s_mov_b32 s49, s39
    s_mov_b32 s50, {2048 * 1280}
    s_mov_b32 s51, 0x20000
    s_add_u32 s21, s18, 17920
    v_mul_u32_u24 v{Y + 4}, 160, {L15}
    v_lshl_add_u32 v{Y + 4}, {G4}, 3, v{Y + 4}
    v_add_u32 v{Y + 4}, s21, v{Y + 4}
    v_mul_u32_u24 v{Y + 5}, 20480, {G4}
    v_bfe_u32 v{Y + 6}, {LANE}, 2, 2
    v_lshl_add_u32 v{Y + 5}, v{Y + 6}, 7, v{Y + 5}
    v_and_b32 v{Y + 6}, 3, {LANE}
    v_lshl_add_u32 v{Y + 5}, v{Y + 6}, 3, v{Y + 5}
    s_lshl_b32 s10, {WAVE}, 5
    s_add_u32 s10, s10, 15360
    v_add_u32 v{Y + 5}, s10, v{Y + 5}
    """)
    for n in range(3):
        q, r_, ga = Y + 6, Y + 7, Y + 8 + n
        a(f"v_add_u32 v{q}, {64 * n}, {LANE}\nv_mul_u32_u24 v{r_}, 205, v{q}\nv_lshrrev_b32 v{r_}, 11, v{r_}\nv_mul_u32_u24 v{r_}, 1120, v{r_}\nv_lshl_add_u32 v{ga}, v{q}, 4, v{r_}")
    vm.wait("ast")
    flag_store(vm, PFO, ZERO)
    done = set()
    wq = []
    ALOOK, ACHK = opt_int("alook", 8), opt_int("achk", 11)
    for i, rw in enumerate(ROWS):
        if 1 <= i <= 12 and 'phases' not in OPT:
            stamp(i, True)
        if i == ALOOK:
            vm.issue("look", f"buffer_load_dwordx2 {vr(X + 6, 2)}, v{X + 5}, {WSRD}, 0 offen sc1")
        if i == ACHK:
            assert not wrest
            vm.wait("look")
            lab = a.newlabel("La")
            a(f"v_cmp_ne_u32 vcc, {TAG}, v{X + 6}\nv_cmp_ne_u32 s[12:13], {TAG}, v{X + 7}\ns_or_b64 vcc, vcc, s[12:13]\ns_cbranch_scc0 {lab}")
            poll(f"v{X + 5}", f"v{X + 6}")
            a(f"v_add_u32 v{X + 5}, 4, v{X + 5}")
            poll(f"v{X + 5}", f"v{X + 6}")
            a(f"{lab}:\ns_add_u32 s56, s42, s16\ns_addc_u32 s57, s43, 0\ns_mov_b32 s58, {80 * 4096 - 3968}")
            wrest = [(f"s_add_u32 m0, s18, {15360 + 1024 * m}\ns_nop 0\nbuffer_load_dwordx4 v{X + 2}, {SRDC}, s20 offen sc1 lds", "ag", f"s_add_u32 s20, s20, {32 * 4096}") for m in range(3)]
            wrest += [(f"buffer_load_dword v{X + 4}, v{X + 3}, {WSRD}, s17 offen sc1", "ag", None)]
        pre = []
        if i == 13 and "noga" not in OPT:
            vm.wait("ag")
            a("s_barrier")
            for dt in range(5):
                a(f"ds_read_b64_tr_b16 {vr(AR + 2 * dt, 2)}, v{Y + 5} offset:{512 * dt}")
            pre = [f"v_sub_f32 v{X + 6}, 1.0, v{X + 4}", f"v_cvt_pk_bf16_f32 v{X + 6}, v{X + 6}, v{X + 6}", f"v_and_b32 v{X + 6}, 0xffff0000, v{X + 6}", "LGKM"]
            for q in range(10):
                pre += [f"v_lshlrev_b32 v{GA + 2 * q}, 16, v{AR + q}", f"v_and_b32 v{GA + 2 * q + 1}, 0xffff0000, v{AR + q}"]
            pre += [f"v_mul_f32 v{GA + q}, v{X + 4}, v{GA + q}" for q in range(20)]
        nw = 0
        n = 0
        for (x, k) in rw:
            vm.wait(f"h{x}_{k}", f"W{x}")
            for dt in range(5):
                d = vr(ACC + 20 * k + 4 * dt, 4)
                a(f"v_mfma_f32_16x16x32_bf16 {d}, {WSLOT[5 * x + dt]}, {vr(HSLOT[x % NH] + 4 * k, 4)}, {'0' if x == 0 else d}")
                if wq and wq[0][0] <= 20 * i + n:
                    a(wq.pop(0)[1])
                    nw += 1
                elif pre and n >= 2:
                    for _ in range(2):
                        if pre:
                            m = pre.pop(0)
                            a(f"s_waitcnt lgkmcnt({nw})" if m == "LGKM" else m)
                if dt == 4:
                    done.add((x, k))
                if dt == 2 and hq and (hq[0][0] < NH or (hq[0][0] - NH, hq[0][1]) in done):
                    hload(vm, *hq.pop(0))
                elif dt == 0 and wrest:
                    emit_op(vm, wrest.pop(0))
                n += 1
            if x == 13 and k:
                wq += [(20 * i + n + 1 + 3 * dt, f"ds_write_b128 v{XW}, {vr(ACC + 20 * k + 4 * dt, 4)} offset:{5120 * (k - 1) + 1024 * dt}") for dt in range(5)]
    for _, w in wq:
        a(w)
    for m in pre:
        a(m)
    assert not hq and not wrest
    stamp(6)
    a(f"""
    s_waitcnt vmcnt(0) lgkmcnt(0)
    s_barrier
    """)
    if "noga" in OPT:
        for dt in range(5):
            a(f"ds_read_b64_tr_b16 {vr(AR + 2 * dt, 2)}, v{Y + 5} offset:{512 * dt}")
        for k in range(1, 4):
            for dt in range(5):
                a(f"ds_read_b128 {vr(PR + 20 * (k - 1) + 4 * dt, 4)}, v{XW + k} offset:{5120 * (k - 1) + 1024 * dt}")
        a(f"""
        v_sub_f32 v{X + 6}, 1.0, v{X + 4}
        v_cvt_pk_bf16_f32 v{X + 6}, v{X + 6}, v{X + 6}
        v_and_b32 v{X + 6}, 0xffff0000, v{X + 6}
        s_waitcnt lgkmcnt(15)
        """)
        for i in range(10):
            a(f"v_lshlrev_b32 v{GA + 2 * i}, 16, v{AR + i}\nv_and_b32 v{GA + 2 * i + 1}, 0xffff0000, v{AR + i}")
        for i in range(10):
            a(f"v_pk_mul_f32 {vr(GA + 2 * i, 2)}, {vr(GA + 2 * i, 2)}, {vr(X + 4, 2)} op_sel_hi:[1,0]")
    else:
        for k in range(1, 4):
            for dt in range(5):
                a(f"ds_read_b128 {vr(PR + 20 * (k - 1) + 4 * dt, 4)}, v{XW + k} offset:{5120 * (k - 1) + 1024 * dt}")
    for k in range(2):
        a(f"s_waitcnt lgkmcnt({10 - 5 * k})")
        for i in range(10):
            a(f"v_pk_add_f32 {vr(ACC + 2 * i, 2)}, {vr(ACC + 2 * i, 2)}, {vr(PR + 20 * k + 2 * i, 2)}")
    a("s_waitcnt lgkmcnt(0)")
    for dt in range(5):
        for x in (2 * dt, 2 * dt + 1):
            a(f"v_pk_add_f32 {vr(ACC + 2 * x, 2)}, {vr(ACC + 2 * x, 2)}, {vr(PR + 40 + 2 * x, 2)}")
        for x in (2 * dt, 2 * dt + 1):
            a(f"v_pk_fma_f32 {vr(GA + 2 * x, 2)}, {vr(ACC + 2 * x, 2)}, {vr(X + 6, 2)}, {vr(GA + 2 * x, 2)} op_sel_hi:[1,0,1]")
        a(f"v_cvt_pk_bf16_f32 v{AR + 2 * dt}, v{GA + 4 * dt}, v{GA + 4 * dt + 1}\nv_cvt_pk_bf16_f32 v{AR + 2 * dt + 1}, v{GA + 4 * dt + 2}, v{GA + 4 * dt + 3}")
        a(f"ds_write_b64 v{Y + 4}, {vr(AR + 2 * dt, 2)} offset:{32 * dt}")
    for n in range(3):
        a(f"ds_read_b128 {vr(PR + 4 * n, 4)}, v{XW} offset:{17920 + 1024 * n}")
    for n in range(3):
        a(f"s_waitcnt lgkmcnt({2 - n})")
        if n == 2:
            a("s_mov_b32 exec_hi, 0")
        a(f"buffer_store_dwordx4 {vr(PR + 4 * n, 4)}, v{Y + 8 + n}, {SRDA}, s19 offen nt")
    if DIAG:
        a("s_mov_b64 exec, -1\ns_waitcnt vmcnt(0)")
        stamp(13)
        a(f"""
        s_lshl_b32 s10, s2, 8
        s_lshl_b32 s11, {WAVE}, 6
        s_add_u32 s10, s10, s11
        s_add_u32 s10, s10, {STAMP}
        s_mov_b64 exec, 1
        """)
        for i in range(14):
            a(f"v_mov_b32 v{8 + i}, s{74 + 2 * i}")
        for i in range(4):
            a(f"buffer_store_dwordx4 v[{8 + 4 * i}:{11 + 4 * i}], {ZERO}, {WSRD}, s10 offen offset:{16 * i}")
        if "dbgspan" in OPT:
            a(f"v_not_b32 v30, v8\nglobal_atomic_umax {ZERO}, v30, {DBG} offset:4 sc1")
            for k, i in enumerate((0, 1, 2, 3, 4, 5, 6, 13)):
                a(f"global_atomic_umax {ZERO}, v{8 + i}, {DBG} offset:{8 + 4 * k} sc1")
    if opt_int("holdus", 0):
        a(f"L_hold:\ns_memrealtime s[12:13]\ns_waitcnt lgkmcnt(0)\ns_sub_u32 s12, s12, {TAG}\ns_cmp_lt_u32 s12, {100 * opt_int('holdus', 0)}\ns_cbranch_scc1 L_hold")
    a("L_end:\ns_endpgm")


gemm2(vmA)


def typeC():
    vm = VM(a)
    a(f"""
    L_typeC:
    s_mov_b32 {CPB}, 0
    s_mov_b32 {KCB}, {CB}
    s_lshl_b32 {W2K}, {WAVE}, 11
    s_mul_i32 {CHB}, {WT}, {CHP}
    """)
    for r in (1, 2):
        for k, ptr in enumerate((LOGA, AIM, CR, CI)):
            a(f"global_load_ushort v{CPAR[r] + k}, v68, {ptr} offset:{512 * r} nt")
        a(f"s_add_u32 s69, s69, 4\ns_load_dword s{48 + r}, {LDT}, s69\ns_load_dword s{52 + r}, {DSK}, s69")
    a("s_mov_b32 s44, s42\ns_mov_b32 s45, s43\ns_mov_b32 s30, s16\ns_mov_b32 s31, s17")
    tlb_touch("C0")
    if "xtouch" in OPT:
        srd(56, 34, 35, None, 1728 * 1280)
        a(f"s_and_b32 s10, {J}, 3\ns_lshl_b32 s10, s10, 8\nv_add_u32 v100, s10, v0\ns_mov_b32 s12, 0xcccd\ns_xor_b32 s13, {XCD}, 4")
        for rep in range(3):
            a(f"""
            v_mul_u32_u24 v41, s12, v100
            v_lshrrev_b32 v41, 18, v41
            v_mul_u32_u24 v42, 5, v41
            v_sub_u32 v42, v100, v42
            v_lshrrev_b32 v43, 5, v41
            v_lshl_add_u32 v43, v43, 3, s13
            v_and_b32 v41, 31, v41
            v_mul_u32_u24 v41, 1280, v41
            v_lshl_add_u32 v41, v42, 7, v41
            v_lshrrev_b32 v42, 1, v43
            v_mul_u32_u24 v42, 40960, v42
            v_and_b32 v43, 1, v43
            v_mul_u32_u24 v43, 640, v43
            v_add3_u32 v41, v41, v42, v43
            buffer_load_dword {JUNK}, v41, {SRDC}, 0 offen
            v_add_u32 v100, 1024, v100
            """)
    for l in kgen_addr():
        a(l)
    a(f"s_lshl_b32 s10, {WF_}, 8\ns_add_u32 s10, s10, {CHB}\nv_lshl_add_u32 v70, {LANE}, 2, s10")
    a(f"ds_write_b32 v70, {ZERO} offset:{2 * CHP}\nds_write_b32 v70, {ZERO} offset:{4 * CHP}")
    a(f"s_lshl_b32 s10, {WT}, 4\ns_waitcnt lgkmcnt(0)")
    for r in range(3):
        for b, d in ((48, SDT), (52, SDS)):
            a(f"s_lshr_b32 s{d + r}, s{b + r}, s10\ns_lshl_b32 s{d + r}, s{d + r}, 16")
    a(f"s_waitcnt vmcnt({11 if 'xtouch' in OPT else 8})")
    stamp(8)
    K = [kgen_sections(CPAR[r], f"s{SDT + r}", f"s{SDS + r}", 2 * CHP * r) for r in range(3)]
    for l in K[0][0]:
        a(l)
    for r in range(3):
        for sec in K[r][1:5]:
            for l in sec:
                a(l)
        if r == 0:
            a(f"s_waitcnt vmcnt({3 if 'xtouch' in OPT else 0})")
            tlb_touch()
        if r == 1:
            a(f"global_load_dword {VTAG}, {ZERO}, {DBG} sc1")
        if r < 2:
            for l in K[r + 1][0]:
                a(l)
        else:
            a(f"""
            s_lshr_b32 s10, {CP}, 5
            s_lshl_b32 s10, s10, 8
            s_add_u32 s10, s10, {UFLAG}
            v_lshl_add_u32 v17, {LANE}, 2, s10
            s_add_u32 s10, {CP}, 2
            s_lshr_b32 s10, s10, 5
            s_lshl_b32 s10, s10, 8
            s_add_u32 s10, s10, {UFLAG}
            v_lshl_add_u32 {VUFL}, {LANE}, 2, s10
            s_waitcnt vmcnt(0)
            """)
            get_tag()
        for l in K[r][5]:
            a(l)
        if r < 2:
            for x in range(TW, TR + 1):
                a(f"v_add_u32 v{x}, {2 * CHP}, v{x}")
            for x in range(228, 232):
                a(f"v_add_u32 v{x}, 12288, v{x}")
    stamp(1)
    a("s_waitcnt lgkmcnt(0)\ns_barrier")
    def late():
        for l in late_addr():
            a(l)
        srd(56, 42, 43, W2F, 54 * 40960)
        k_order()

    for r in range(3):
        expansion(late if r == 0 else None)
        a(f"s_add_u32 {CHB}, {CHB}, {2 * CHP}\ns_add_u32 {KCB}, {KCB}, 12288")
        if r == opt_int("cpoll", 1) - 1:
            a(f"buffer_load_dword {LOOK2}, {VUFL}, {WSRD}, 0 offen sc1\nbuffer_load_dword v18, v17, {WSRD}, 0 offen sc1")
        if r == opt_int("cpoll", 1):
            stamp(9)
            a("s_waitcnt vmcnt(0)")
            poll(VUFL, LOOK2, first_issued=True, nap=8)
            poll("v17", "v18", first_issued=True, nap=8)
            stamp(10)
            a(f"s_lshl_b32 {ULO}, {CP}, 7\ns_add_u32 {ULO}, {ULO}, {UT}\ns_add_u32 s10, {ULO}, {32 * 40960}")
            for q in range(3):
                a(f"buffer_load_dwordx4 {vr(64 + 8 * q, 4)}, {VUG}, {WSRD}, {ULO} offen offset:{128 * q} sc1")
                a(f"buffer_load_dwordx4 {vr(68 + 8 * q, 4)}, {VUG}, {WSRD}, s10 offen offset:{128 * q} sc1")
    a(f"s_mul_i32 {CHB}, {WT}, {CHP}\ns_waitcnt vmcnt(0)")
    for r in range(3):
        for n in range(2):
            a(f"ds_write_b128 {VUL}, {vr(64 + 8 * r + 4 * n, 4)} offset:{2 * CHP * r + L_U + 512 + 2048 * n}")
    stamp(2)
    vm.q = []
    conv(vm, wload_ops()[:NEARLY + NGAP], 3)
    vm.wait("look")
    assert q_g2[-2:] == ["ast", "ast"] and vm.q[-2:] == ["ast", "ast"]
    a("s_branch L_gemm2")


typeC()
vmG = VM(a)
vmG.q = q_g1
gemm1(vmG, gate=True)
a("L_code1:")

body = a.render()
head = open(f"cdna_kernels/{NAME}.s.ref").read().split("; Override launch")[0]
text = head + f"""; Generated by the author's own generator script; single fused kernel, one workgroup per CU.
; @launch grid=(256,1,1) block=(256,1,1) lds=163840
.amdgcn_target "amdgcn-amd-amdhsa--gfx950"
.text
.globl {NAME}_kernel
.p2align 8
.type {NAME}_kernel,@function
{NAME}_kernel:
{body}.section .rodata,"a"
.p2align 6
.amdhsa_kernel {NAME}_kernel
  .amdhsa_next_free_vgpr 512
  .amdhsa_next_free_sgpr 102
  .amdhsa_accum_offset 256
  .amdhsa_group_segment_fixed_size 0
  .amdhsa_kernarg_size 112
  .amdhsa_user_sgpr_count 2
  .amdhsa_user_sgpr_kernarg_segment_ptr 1
  .amdhsa_system_sgpr_workgroup_id_x 1
.end_amdhsa_kernel
"""
open(OUT, "w").write(text)
print("wrote", OUT, "lines", text.count("\n"), "auto nops", a.nops)
```
